```python
import torch

def _softmax(x, axis=-1):
    return torch.softmax(x, dim=axis)

def _gelu(x):
    return torch.nn.functional.gelu(x, approximate='tanh')

def _silu(x):
    return torch.nn.functional.silu(x)

def _sigmoid(x):
    return torch.sigmoid(x)

def _layernorm(x, axis=-1, eps=1e-05):
    m = x.mean(dim=axis, keepdim=True)
    v = x.var(dim=axis, keepdim=True, unbiased=False)
    return (x - m) / torch.sqrt(v + eps)

def _scatter_add(tgt, idx, src, axis=0):
    return tgt.clone().index_add_(axis, idx, src)

def _segment_sum(src, seg, n):
    out = torch.zeros((n,) + src.shape[1:], dtype=src.dtype)
    return out.index_add_(0, seg, src)

def _pad(x, pw):
    flat = tuple((v for pair in reversed(pw) for v in pair))
    return torch.nn.functional.pad(x, flat)
kernel_name = 'standalone__tree_speculative_verify_tree_attention_over_candidate_token_tree__sampling'

def setup_inputs():

    _w = lambda a: (lambda t: t.to(torch.bfloat16) if t.is_floating_point() else t)(torch.as_tensor(a))
    B, Hq, Hkv, T, C, D = (8, 16, 8, 16, 8192, 256)
    tree_mask = torch.zeros((B, T, T), dtype=float)
    for b in range(B):
        parent = torch.zeros(T, dtype=torch.int64)
        for i in range(1, T):
            parent[i] = int(torch.randint(0, i, (1,)).item())
        for i in range(T):
            j = i
            tree_mask[b, i, j] = 1.0
            while j > 0:
                j = parent[j]
                tree_mask[b, i, j] = 1.0
    return {'q': _w((lambda *s: torch.randn(*s, dtype=torch.bfloat16) * 0.8)(B, Hq, T, D)), 'k_cache': _w((lambda *s: torch.randn(*s, dtype=torch.bfloat16) * 0.8)(B, Hkv, C, D)), 'v_cache': _w((lambda *s: torch.randn(*s, dtype=torch.bfloat16) * 0.05)(B, Hkv, C, D)), 'k_tree': _w((lambda *s: torch.randn(*s, dtype=torch.bfloat16) * 0.8)(B, Hkv, T, D)), 'v_tree': _w((lambda *s: torch.randn(*s, dtype=torch.bfloat16) * 0.05)(B, Hkv, T, D)), 'tree_mask': _w(tree_mask)}

def reference(q, k_cache, v_cache, k_tree, v_tree, tree_mask):
    B, Hq, T, D = q.shape
    Hkv, C = (k_cache.shape[1], k_cache.shape[2])
    rep = Hq // Hkv
    kc = (lambda x, n, axis: torch.repeat_interleave(x, n, dim=axis))(k_cache, rep, axis=1)
    vc = (lambda x, n, axis: torch.repeat_interleave(x, n, dim=axis))(v_cache, rep, axis=1)
    kt = (lambda x, n, axis: torch.repeat_interleave(x, n, dim=axis))(k_tree, rep, axis=1)
    vt = (lambda x, n, axis: torch.repeat_interleave(x, n, dim=axis))(v_tree, rep, axis=1)
    k = torch.concatenate([kc, kt], axis=2)
    v = torch.concatenate([vc, vt], axis=2)
    scale = D ** (-0.5)
    scores = torch.einsum('bhqd,bhkd->bhqk', q, k) * scale
    ctx_mask = torch.ones((B, 1, T, C), dtype=scores.dtype)
    tm = tree_mask[:, None, :, :].clone()
    full_mask = torch.concatenate([ctx_mask, tm], axis=-1)
    scores = scores + (1.0 - full_mask) * -1000000000.0
    p = _softmax(scores, axis=-1)
    return torch.einsum('bhqk,bhkd->bhqd', p, v)
```

```python
import argparse
import struct

NAME = "standalone__tree_speculative_verify_tree_attention_over_candidate_token_tree__sampling"

HEADER = """; Kernarg layout for this problem (72 bytes, ptrs only, base s[0:1]):
"""


def f32bits(x):
    return struct.unpack("<I", struct.pack("<f", x))[0]


LOG2E = 1.4426950408889634
CSCALE = 0.0625 * LOG2E
CMASK = -1.0e9 * LOG2E

V_LANE = 1
V_OFFK = 2
V_OFFV = 10
V_ADRK = 14
V_ADRV = 22
V_M = 26
V_L = 27
V_ALPHA = 28
V_T = 30
V_P = 36
V_MSK = 44
V_S = 48
V_O = 64
ACC_OFF = 192
A_Q = 0
A_K = 64
A_V = 128
N_AGPR = 192

S_SPLIT = 3
S_WAVE = 22
S_PAIR = 23
SRD_K = 24
SRD_V = 28
SRD_Q = 32
SRD_TK = 36
SRD_TV = 40
SRD_MSK = 44
SRD_OUT = 48
SRD_WS = 52
SRD_DBG = 56
S_OFF = 60
S_OFF2 = 61
S_IT = 62
S_C = 63
S_M0 = 64
S_T = 72
S_WB = 80
S_CM = 81

NT = 16
LDS_TREE = 131072
LDS_STAT = 147456
LDS_FLAG = LDS_STAT + 2048
LDS_TOTAL = LDS_FLAG + 256

WS_STAT = 8 << 20


class G:
    def __init__(self, args):
        self.a = args
        self.L = []

    def e(self, s):
        self.L.append("    " + s)

    def lab(self, s):
        self.L.append(s + ":")

    def c(self, s):
        self.L.append("    ; " + s)

    def srd(self, d, lo, hi, nbytes):
        if d != lo:
            self.e(f"s_mov_b32 s{d}, s{lo}")
        self.e(f"s_and_b32 s{d+1}, s{hi}, 0xffff")
        self.e(f"s_mov_b32 s{d+2}, {nbytes}")
        self.e(f"s_mov_b32 s{d+3}, 0x00020000")

    def srd_off(self, d, lo, hi, soff, nbytes):
        self.e(f"s_add_u32 s{d}, s{lo}, s{soff}")
        self.e(f"s_addc_u32 s{d+1}, s{hi}, 0")
        self.e(f"s_and_b32 s{d+1}, s{d+1}, 0xffff")
        self.e(f"s_mov_b32 s{d+2}, {nbytes}")
        self.e(f"s_mov_b32 s{d+3}, 0x00020000")

    def dma_k(self, srd, m0s, soffs, js):
        pol = self.a.pol
        for j in js:
            if j % 4 == 0 or j == js[0]:
                self.e(f"s_mov_b32 m0, {m0s[j >> 2]}")
                self.e("s_nop 0")
            imm = (j & 3) * 1024
            self.e(f"buffer_load_dwordx4 v{V_OFFK + (j & 7)}, s[{srd}:{srd+3}], {soffs[j >> 3]} offen offset:{imm}{pol} lds")

    def dma_v(self, srd, m0s, soffs, js):
        pol = self.a.pol
        for j in js:
            if j % 4 == 0 or j == js[0]:
                self.e(f"s_mov_b32 m0, {m0s[j >> 2]}")
                self.e("s_nop 0")
            imm = (j & 3) * 1024
            vo = V_OFFV + (j & 1) + 2 * ((j >> 2) & 1)
            self.e(f"buffer_load_dwordx4 v{vo}, s[{srd}:{srd+3}], {soffs[j >> 3]} offen offset:{imm}{pol} lds")

    def read_k(self, extra):
        for kk in range(16):
            off = (kk >> 3) * 256 + extra
            self.e(f"ds_read_b128 a[{A_K + 4*kk}:{A_K + 4*kk + 3}], v{V_ADRK + (kk & 7)} offset:{off}")

    def read_v(self, ks, extra):
        for dt in range(8):
            for jhi in range(2):
                off = (16 * ks + 8 * jhi) * 512 + (dt >> 2) * 256 + extra
                r = A_V + 32 * ks + 4 * dt + 2 * jhi
                self.e(f"ds_read_b64_tr_b16 a[{r}:{r+1}], v{V_ADRV + (dt & 3)} offset:{off}")

    def qk(self):
        for kk in range(16):
            cin = "0" if kk == 0 else f"v[{V_S}:{V_S+15}]"
            self.e(f"v_mfma_f32_32x32x16_bf16 v[{V_S}:{V_S+15}], a[{A_K+4*kk}:{A_K+4*kk+3}], "
                   f"a[{A_Q+4*kk}:{A_Q+4*kk+3}], {cin}")

    def pv(self, ks, first=False):
        for dt in range(8):
            o = V_O + 16 * dt
            r = A_V + 32 * ks + 4 * dt
            cin = "0" if first else f"v[{o}:{o+15}]"
            self.e(f"v_mfma_f32_32x32x16_bf16 v[{o}:{o+15}], a[{r}:{r+3}], v[{V_P+4*ks}:{V_P+4*ks+3}], {cin}")

    def xhalf(self, op, dst, a, b):
        self.e(f"v_mov_b32 v{b}, v{a}")
        self.e("s_nop 1")
        self.e(f"v_permlane32_swap_b32 v{a}, v{b}")
        self.e("s_nop 1")
        self.e(f"{op} v{dst}, v{a}, v{b}")

    def softmax(self):
        e = self.e
        S, T = V_S, V_T
        e(f"v_max3_f32 v{T}, v{S}, v{S+1}, v{S+2}")
        e(f"v_max3_f32 v{T+1}, v{S+3}, v{S+4}, v{S+5}")
        e(f"v_max3_f32 v{T+2}, v{S+6}, v{S+7}, v{S+8}")
        e(f"v_max3_f32 v{T+3}, v{S+9}, v{S+10}, v{S+11}")
        e(f"v_max3_f32 v{T}, v{T}, v{S+12}, v{S+13}")
        e(f"v_max3_f32 v{T+1}, v{T+1}, v{S+14}, v{S+15}")
        e(f"v_max3_f32 v{T}, v{T}, v{T+1}, v{T+2}")
        e(f"v_max_f32 v{T}, v{T}, v{T+3}")
        self.xhalf("v_max_f32", T, T, T + 1)
        e(f"v_mul_f32 v{T}, s{S_C}, v{T}")
        e(f"v_max_f32 v{T}, v{T}, v{V_M}")
        e(f"v_sub_f32 v{T+1}, v{V_M}, v{T}")
        e(f"v_mov_b32 v{V_M}, v{T}")
        e(f"v_exp_f32 v{V_ALPHA}, v{T+1}")
        for i in range(16):
            e(f"v_fma_f32 v{S+i}, v{S+i}, s{S_C}, -v{V_M}")
        for i in range(16):
            e(f"v_exp_f32 v{S+i}, v{S+i}")
        e(f"v_add_f32 v{T}, v{S}, v{S+1}")
        e(f"v_add_f32 v{T+1}, v{S+2}, v{S+3}")
        for i in range(4, 16, 2):
            e(f"v_add_f32 v{T}, v{T}, v{S+i}")
            e(f"v_add_f32 v{T+1}, v{T+1}, v{S+i+1}")
        e(f"v_add_f32 v{T}, v{T}, v{T+1}")
        e(f"v_fma_f32 v{V_L}, v{V_L}, v{V_ALPHA}, v{T}")
        for i in range(8):
            e(f"v_cvt_pk_bf16_f32 v{V_P+i}, v{S+2*i}, v{S+2*i+1}")
        for i in range(0, 128, 2):
            e(f"v_pk_mul_f32 v[{V_O+i}:{V_O+i+1}], v[{V_O+i}:{V_O+i+1}], v[{V_ALPHA}:{V_ALPHA+1}] op_sel_hi:[1,0]")
        e("s_nop 1")

    def gen(self):
        a = self.a
        e, lab, c = self.e, self.lab, self.c
        T = V_T
        K = NAME + "_kernel"
        out = HEADER + f"; @launch grid=(256,1,1) block=(256,1,1) lds={LDS_TOTAL}\n"
        out += '.amdgcn_target "amdgcn-amd-amdhsa--gfx950"\n.text\n'
        out += f".globl {K}\n.p2align 8\n.type {K},@function\n{K}:\n"

        e("s_cmp_ge_u32 s2, 256")
        e("s_cbranch_scc1 L_end")
        e("s_load_dwordx16 s[4:19], s[0:1], 0")
        e("s_load_dwordx2 s[20:21], s[0:1], 64")
        c("lane / wave decomposition")
        e(f"v_lshrrev_b32 v{T}, 6, v0")
        e(f"v_and_b32 v{V_LANE}, 63, v0")
        e(f"v_readfirstlane_b32 s{S_WAVE}, v{T}")
        e(f"v_lshrrev_b32 v{T+1}, 5, v{V_LANE}")
        e(f"v_and_b32 v{T+2}, 31, v{V_LANE}")
        e(f"s_and_b32 s{S_PAIR}, s2, 63")
        e(f"s_lshr_b32 s{S_SPLIT}, s2, 6")
        c("DMA source offsets (swizzled)")
        e(f"v_xor_b32 v{T+3}, v{T+2}, v{T+1}")
        e(f"v_lshlrev_b32 v{T+3}, 4, v{T+3}")
        e(f"v_lshl_or_b32 v{T+3}, v{T+1}, 9, v{T+3}")
        for jj in range(8):
            e(f"v_xor_b32 v{V_OFFK+jj}, {(2*jj << 4) | ((jj >> 2) << 12)}, v{T+3}")
        e(f"v_lshlrev_b32 v{T+4}, 2, v{T+1}")
        e(f"v_xor_b32 v{T+4}, v{T+2}, v{T+4}")
        e(f"v_lshlrev_b32 v{T+4}, 4, v{T+4}")
        e(f"v_lshl_or_b32 v{T+4}, v{T+1}, 9, v{T+4}")
        for x in range(4):
            e(f"v_xor_b32 v{V_OFFV+x}, {((x & 1) * 128) | ((x >> 1) << 12)}, v{T+4}")
        c("scalar setup")
        e(f"s_lshl_b32 s{S_WB}, s{S_WAVE}, 15")
        for i in range(8):
            e(f"s_add_u32 s{S_M0+i}, s{S_WB}, {i*4096}")
        e(f"s_lshl_b32 s{S_OFF}, s{S_SPLIT}, 20")
        if a.inter:
            e(f"s_lshl_b32 s{S_T}, s{S_WAVE}, 14")
        else:
            e(f"s_lshl_b32 s{S_T}, s{S_WAVE}, 18")
        e(f"s_add_u32 s{S_OFF}, s{S_OFF}, s{S_T}")
        e(f"s_add_u32 s{S_OFF2}, s{S_OFF}, 8192")
        e(f"s_lshl_b32 s{S_T}, s{S_PAIR}, 22")
        e(f"s_lshl_b32 s{S_T+1}, s{S_PAIR}, 14")
        e(f"s_lshl_b32 s{S_T+2}, s{S_PAIR}, 13")
        c("Q fragment offset: q*512 + h*16")
        e(f"v_lshlrev_b32 v{T+5}, 9, v{T+2}")
        e(f"v_lshl_or_b32 v{T+5}, v{T+1}, 4, v{T+5}")
        e("s_waitcnt lgkmcnt(0)")
        self.srd_off(SRD_K, 6, 7, S_T, 4 << 20)
        self.srd_off(SRD_V, 8, 9, S_T, 4 << 20)
        self.srd_off(SRD_Q, 4, 5, S_T + 1, 16384)
        self.srd_off(SRD_TK, 10, 11, S_T + 2, 8192)
        self.srd_off(SRD_TV, 12, 13, S_T + 2, 8192)
        self.srd(SRD_MSK, 14, 15, 4096)
        self.srd_off(SRD_OUT, 16, 17, S_T + 1, 16384)
        self.srd(SRD_WS, 20, 21, 16 << 20)
        self.srd(SRD_DBG, 18, 19, 256)
        m0k = [f"s{S_M0+i}" for i in range(4)]
        m0v = [f"s{S_M0+4+i}" for i in range(4)]
        soffs = [f"s{S_OFF}", f"s{S_OFF2}"]

        c("tree wave (split 3, wave 3): tree K/V + mask loads go first (oldest)")
        e(f"s_lshl_b32 s{S_T+3}, s{S_SPLIT}, 2")
        e(f"s_add_u32 s{S_T+3}, s{S_T+3}, s{S_WAVE}")
        e(f"s_cmp_lg_u32 s{S_T+3}, 15")
        e("s_cbranch_scc1 L_notree0")
        self.dma_k(SRD_TK, [str(LDS_TREE), str(LDS_TREE + 4096)], ["0"], list(range(8)))
        self.dma_v(SRD_TV, [str(LDS_TREE + 8192), str(LDS_TREE + 12288)], ["0"], list(range(8)))
        c("mask[b][t=q&15][4h..4h+3], [8+4h..]: byte off = b*512 + t*32 + h*8")
        e(f"v_and_b32 v{V_S}, 15, v{V_LANE}")
        e(f"v_lshlrev_b32 v{V_S}, 5, v{V_S}")
        e(f"v_lshl_or_b32 v{V_S}, v{T+1}, 3, v{V_S}")
        e(f"s_lshr_b32 s{S_T+4}, s{S_PAIR}, 3")
        e(f"s_lshl_b32 s{S_T+4}, s{S_T+4}, 9")
        e(f"buffer_load_dwordx2 v[{V_MSK}:{V_MSK+1}], v{V_S}, s[{SRD_MSK}:{SRD_MSK+3}], s{S_T+4} offen")
        e(f"buffer_load_dwordx2 v[{V_MSK+2}:{V_MSK+3}], v{V_S}, s[{SRD_MSK}:{SRD_MSK+3}], s{S_T+4} offen offset:16")
        lab("L_notree0")

        c("prologue loads: K0, Q, V0")
        self.dma_k(SRD_K, m0k, soffs, list(range(16)))
        for kk in range(16):
            e(f"buffer_load_dwordx4 a[{A_Q+4*kk}:{A_Q+4*kk+3}], v{T+5}, s[{SRD_Q}:{SRD_Q+3}], 0 offen offset:{kk*32}")
        self.dma_v(SRD_V, m0v, soffs, list(range(16)))
        step = 65536 if a.inter else 16384
        e(f"s_add_u32 s{S_OFF}, s{S_OFF}, {step}")
        e(f"s_add_u32 s{S_OFF2}, s{S_OFF2}, {step}")

        c("LDS read addresses")
        e(f"v_and_b32 v{T+3}, 15, v{T+2}")
        e(f"v_xor_b32 v{T+3}, v{T+3}, v{T+1}")
        e(f"v_lshlrev_b32 v{T+3}, 4, v{T+3}")
        e(f"v_lshl_or_b32 v{T+3}, v{T+2}, 9, v{T+3}")
        e(f"v_add_u32 v{T+3}, s{S_WB}, v{T+3}")
        for ee in range(8):
            e(f"v_xor_b32 v{V_ADRK+ee}, {2*ee << 4}, v{T+3}")
        e(f"v_bfe_u32 v{T+3}, v{V_LANE}, 2, 2")
        e(f"v_lshl_add_u32 v{T+4}, v{T+1}, 2, v{T+3}")
        e(f"v_lshlrev_b32 v{T+4}, 9, v{T+4}")
        e(f"v_lshl_or_b32 v{T+4}, v{T+3}, 6, v{T+4}")
        e(f"v_bfe_u32 v{T+3}, v{V_LANE}, 4, 1")
        e(f"v_lshl_or_b32 v{T+4}, v{T+3}, 5, v{T+4}")
        e(f"v_and_b32 v{T+3}, 3, v{V_LANE}")
        e(f"v_lshl_or_b32 v{T+4}, v{T+3}, 3, v{T+4}")
        e(f"v_add_u32 v{T+4}, s{S_M0+4}, v{T+4}")
        for ee in range(4):
            e(f"v_xor_b32 v{V_ADRV+ee}, {ee << 6}, v{T+4}")
        e(f"s_mov_b32 s{S_C}, 0x{f32bits(CSCALE):08x}")
        e(f"s_mov_b32 s{S_CM}, 0x{f32bits(CMASK):08x}")
        e(f"s_mov_b32 s{S_IT}, 0")

        e(f"s_cmp_lg_u32 s{S_T+3}, 15")
        e("s_cbranch_scc1 L_notree1")
        c("---- tree tile (16 keys, masked) ----")
        e("s_waitcnt vmcnt(16)")
        self.read_k(32768)
        self.read_v(0, 24576)
        c("mask term: (1 - m) * (-1e9*log2e)")
        for i in range(4):
            e(f"v_lshlrev_b32 v{V_O+2*i}, 16, v{V_MSK+i}")
            e(f"v_and_b32 v{V_O+2*i+1}, 0xffff0000, v{V_MSK+i}")
        for i in range(8):
            e(f"v_sub_f32 v{V_O+i}, 1.0, v{V_O+i}")
        for i in range(8):
            e(f"v_mul_f32 v{V_O+i}, s{S_CM}, v{V_O+i}")
        e("s_waitcnt lgkmcnt(0)")
        self.qk()
        e("s_nop 15")
        S = V_S
        for i in range(8):
            e(f"v_fma_f32 v{S+i}, v{S+i}, s{S_C}, v{V_O+i}")
        e(f"v_max3_f32 v{T}, v{S}, v{S+1}, v{S+2}")
        e(f"v_max3_f32 v{T+1}, v{S+3}, v{S+4}, v{S+5}")
        e(f"v_max3_f32 v{T}, v{T}, v{S+6}, v{S+7}")
        e(f"v_max_f32 v{T}, v{T}, v{T+1}")
        self.xhalf("v_max_f32", V_M, T, T + 1)
        for i in range(8):
            e(f"v_sub_f32 v{S+i}, v{S+i}, v{V_M}")
        for i in range(8):
            e(f"v_exp_f32 v{S+i}, v{S+i}")
        e("s_nop 0")
        e(f"v_add_f32 v{V_L}, v{S}, v{S+1}")
        for i in range(2, 8):
            e(f"v_add_f32 v{V_L}, v{V_L}, v{S+i}")
        for i in range(4):
            e(f"v_cvt_pk_bf16_f32 v{V_P+i}, v{S+2*i}, v{S+2*i+1}")
        e("s_nop 1")
        self.pv(0, first=True)
        e("s_branch L_loop")
        lab("L_notree1")
        e(f"v_mov_b32 v{V_M}, 0xff800000")
        e(f"v_mov_b32 v{V_L}, 0")
        for i in range(128):
            e(f"v_mov_b32 v{V_O+i}, 0")

        self.L.append(".p2align 6")
        lab("L_loop")
        e("s_waitcnt vmcnt(16)")
        self.read_k(0)
        e(f"s_cmp_eq_u32 s{S_IT}, {NT-1}")
        e("s_waitcnt lgkmcnt(0)")
        e("s_cbranch_scc1 L_skipK")
        self.dma_k(SRD_K, m0k, soffs, list(range(16)))
        lab("L_skipK")
        self.qk()
        e("s_nop 15")
        self.softmax()
        e(f"s_cmp_eq_u32 s{S_IT}, {NT-1}")
        e("s_cbranch_scc1 L_w1_last")
        e("s_waitcnt vmcnt(24)")
        e("s_branch L_w1")
        lab("L_w1_last")
        e("s_waitcnt vmcnt(8)")
        lab("L_w1")
        self.read_v(0, 0)
        e("s_waitcnt lgkmcnt(0)")
        e("s_cbranch_scc1 L_skipVa")
        self.dma_v(SRD_V, m0v, soffs, list(range(8)))
        lab("L_skipVa")
        self.pv(0)
        e("s_cbranch_scc1 L_w2_last")
        e("s_waitcnt vmcnt(24)")
        e("s_branch L_w2")
        lab("L_w2_last")
        e("s_waitcnt vmcnt(0)")
        lab("L_w2")
        self.read_v(1, 0)
        e("s_waitcnt lgkmcnt(0)")
        e("s_cbranch_scc1 L_skipVb")
        self.dma_v(SRD_V, m0v, soffs, list(range(8, 16)))
        lab("L_skipVb")
        self.pv(1)
        e(f"s_add_u32 s{S_OFF}, s{S_OFF}, {step}")
        e(f"s_add_u32 s{S_OFF2}, s{S_OFF2}, {step}")
        e(f"s_add_u32 s{S_IT}, s{S_IT}, 1")
        e(f"s_cmp_lt_u32 s{S_IT}, {NT}")
        e("s_cbranch_scc1 L_loop")

        c("---- intra-workgroup combine through LDS ----")
        c("l total over both key halves")
        self.xhalf("v_add_f32", V_L, V_L, T)
        e(f"v_lshlrev_b32 v{T+2}, 4, v{V_LANE}")
        e(f"v_add_u32 v{T+3}, s{S_WB}, v{T+2}")
        e(f"v_lshlrev_b32 v{T+4}, 3, v{V_LANE}")
        e(f"s_lshl_b32 s{S_T}, s{S_WAVE}, 9")
        e(f"v_add_u32 v{T+5}, s{S_T}, v{T+4}")
        e(f"v_add_u32 v{T+5}, {LDS_STAT}, v{T+5}")
        e(f"ds_write_b64 v{T+5}, v[{V_M}:{V_M+1}]")
        e("s_nop 7")
        for rq in range(32):
            e(f"ds_write_b128 v{T+3}, v[{V_O+4*rq}:{V_O+4*rq+3}] offset:{rq*1024}")
        e("s_waitcnt lgkmcnt(0)")
        e("s_barrier")
        c("read stats of the 4 waves -> v[S..S+7] (m,l pairs)")
        e(f"v_add_u32 v{T+4}, {LDS_STAT}, v{T+4}")
        for w in range(4):
            e(f"ds_read_b64 v[{S+2*w}:{S+2*w+1}], v{T+4} offset:{w*512}")
        c("read own d-slice from the 4 outboxes")
        e(f"s_lshl_b32 s{S_T}, s{S_WAVE}, 13")
        e(f"v_add_u32 v{T+3}, s{S_T}, v{T+2}")
        e(f"v_add_u32 v{T+5}, 65536, v{T+3}")
        for w in range(4):
            for rq in range(8):
                base = T + 3 if w < 2 else T + 5
                r = V_O + 32 * w + 4 * rq
                e(f"ds_read_b128 v[{r}:{r+3}], v{base} offset:{(w & 1)*32768 + rq*1024}")
        e("s_waitcnt lgkmcnt(15)")
        self.combine4(S)
        c("now v[V_O..V_O+31] = partial O, V_M = M, V_L = L")

        c("---- publish partial (write-through) ----")
        e(f"s_lshl_b32 s{S_T}, s{S_PAIR}, 2")
        e(f"s_add_u32 s{S_T}, s{S_T}, s{S_SPLIT}")
        e(f"s_lshl_b32 s{S_T}, s{S_T}, 2")
        e(f"s_add_u32 s{S_T}, s{S_T}, s{S_WAVE}")
        e(f"s_lshl_b32 s{S_T+1}, s{S_T}, 13")
        e(f"s_add_u32 s{S_T+2}, s{S_T+1}, 4096")
        e(f"s_lshl_b32 s{S_T+3}, s{S_T}, 9")
        e(f"s_add_u32 s{S_T+3}, s{S_T+3}, {WS_STAT}")
        e(f"v_lshlrev_b32 v{T+4}, 3, v{V_LANE}")
        for rq in range(8):
            so = S_T + 1 + (rq >> 2)
            e(f"buffer_store_dwordx4 v[{V_O+4*rq}:{V_O+4*rq+3}], v{T+2}, s[{SRD_WS}:{SRD_WS+3}], s{so} offen offset:{(rq & 3)*1024} sc1")
        e(f"buffer_store_dwordx2 v[{V_M}:{V_M+1}], v{T+4}, s[{SRD_WS}:{SRD_WS+3}], s{S_T+3} offen sc1")
        e("s_waitcnt vmcnt(0)")
        e("s_barrier")
        e(f"s_cmp_lg_u32 s{S_WAVE}, 0")
        e("s_cbranch_scc1 L_noatomic")
        e(f"s_lshl_b32 s{S_T+4}, s{S_PAIR}, 2")
        e(f"v_mov_b32 v{T}, 1")
        e(f"v_mov_b32 v{T+1}, 0")
        e("s_mov_b64 s[78:79], exec")
        e("s_mov_b64 exec, 1")
        e(f"buffer_atomic_add v{T}, v{T+1}, s[{SRD_DBG}:{SRD_DBG+3}], s{S_T+4} offen sc0 sc1")
        e("s_waitcnt vmcnt(0)")
        e(f"v_mov_b32 v{T+1}, {LDS_FLAG}")
        e(f"ds_write_b32 v{T+1}, v{T}")
        e("s_waitcnt lgkmcnt(0)")
        e("s_mov_b64 exec, s[78:79]")
        lab("L_noatomic")
        e("s_barrier")
        e(f"v_mov_b32 v{T+1}, {LDS_FLAG}")
        e(f"ds_read_b32 v{T}, v{T+1}")
        e("s_waitcnt lgkmcnt(0)")
        e(f"v_readfirstlane_b32 s{S_T+4}, v{T}")
        e("s_nop 3")
        e(f"s_cmp_lg_u32 s{S_T+4}, 3")
        e("s_cbranch_scc1 L_end")

        c("---- last arriver: combine the 4 splits ----")
        e(f"s_lshl_b32 s{S_T}, s{S_PAIR}, 4")
        e(f"s_add_u32 s{S_T}, s{S_T}, s{S_WAVE}")
        e(f"s_lshl_b32 s{S_T+3}, s{S_T}, 9")
        e(f"s_add_u32 s{S_T+3}, s{S_T+3}, {WS_STAT}")
        e(f"s_lshl_b32 s{S_T+1}, s{S_T}, 13")
        for sp in range(2):
            e(f"buffer_load_dwordx2 v[{S+2*sp}:{S+2*sp+1}], v{T+4}, s[{SRD_WS}:{SRD_WS+3}], s{S_T+3} offen offset:{sp*2048} sc1")
        e(f"s_add_u32 s{S_T+3}, s{S_T+3}, 4096")
        for sp in range(2, 4):
            e(f"buffer_load_dwordx2 v[{S+2*sp}:{S+2*sp+1}], v{T+4}, s[{SRD_WS}:{SRD_WS+3}], s{S_T+3} offen offset:{(sp-2)*2048} sc1")
        for sp in range(4):
            for half in range(2):
                for r4 in range(4):
                    rq = half * 4 + r4
                    r = V_O + 32 * sp + 4 * rq
                    e(f"buffer_load_dwordx4 v[{r}:{r+3}], v{T+2}, s[{SRD_WS}:{SRD_WS+3}], s{S_T+1} offen offset:{r4*1024} sc1")
                e(f"s_add_u32 s{S_T+1}, s{S_T+1}, {4096 if half == 0 else 32768 - 4096}")
        e("s_waitcnt vmcnt(0)")
        self.combine4(S, nowait=True)
        e(f"v_rcp_f32 v{V_ALPHA}, v{V_L}")
        e("s_nop 0")
        for i in range(32):
            e(f"v_mul_f32 v{V_O+i}, v{V_O+i}, v{V_ALPHA}")
        for i in range(16):
            e(f"v_cvt_pk_bf16_f32 v{V_O+32+i}, v{V_O+2*i}, v{V_O+2*i+1}")
        c("out[q][d]: q = l&31, d = 64*wave + 32*dtl + 8*g + 4*h + (0..3)")
        e(f"v_and_b32 v{T}, 31, v{V_LANE}")
        e(f"v_lshlrev_b32 v{T}, 9, v{T}")
        e(f"v_lshrrev_b32 v{T+1}, 5, v{V_LANE}")
        e(f"v_lshl_or_b32 v{T}, v{T+1}, 3, v{T}")
        e(f"s_lshl_b32 s{S_T}, s{S_WAVE}, 7")
        for g8 in range(8):
            r = V_O + 32 + 2 * g8
            e(f"buffer_store_dwordx2 v[{r}:{r+1}], v{T}, s[{SRD_OUT}:{SRD_OUT+3}], s{S_T} offen offset:{g8*16}")
        lab("L_end")
        e("s_endpgm")

        out += "\n".join(self.L) + "\n"
        out += f""".section .rodata,"a"
.p2align 6
.amdhsa_kernel {K}
  .amdhsa_next_free_vgpr {ACC_OFF + N_AGPR}
  .amdhsa_next_free_sgpr 96
  .amdhsa_accum_offset {ACC_OFF}
  .amdhsa_group_segment_fixed_size 0
  .amdhsa_kernarg_size 72
  .amdhsa_user_sgpr_count 2
  .amdhsa_user_sgpr_kernarg_segment_ptr 1
  .amdhsa_system_sgpr_workgroup_id_x 1
.end_amdhsa_kernel
"""
        return out

    def combine4(self, S, nowait=False):
        e = self.e
        T = V_T
        e(f"v_max_f32 v{T}, v{S}, v{S+2}")
        e(f"v_max3_f32 v{V_M}, v{T}, v{S+4}, v{S+6}")
        for i in range(4):
            e(f"v_sub_f32 v{S+8+i}, v{S+2*i}, v{V_M}")
        for i in range(4):
            e(f"v_exp_f32 v{S+8+i}, v{S+8+i}")
        e("s_nop 0")
        for i in range(4):
            e(f"v_mul_f32 v{S+12+i}, v{S+8+i}, v{S+2*i+1}")
        e(f"v_add_f32 v{S+12}, v{S+12}, v{S+13}")
        e(f"v_add_f32 v{S+14}, v{S+14}, v{S+15}")
        e(f"v_add_f32 v{V_L}, v{S+12}, v{S+14}")
        if not nowait:
            e("s_waitcnt lgkmcnt(0)")
        for i in range(4):
            for r in range(32):
                e(f"v_mul_f32 v{V_O+32*i+r}, v{V_O+32*i+r}, v{S+8+i}")
        for r in range(32):
            e(f"v_add_f32 v{V_O+r}, v{V_O+r}, v{V_O+32+r}")
            e(f"v_add_f32 v{V_O+64+r}, v{V_O+64+r}, v{V_O+96+r}")
        for r in range(32):
            e(f"v_add_f32 v{V_O+r}, v{V_O+r}, v{V_O+64+r}")


def main():
    ap = argparse.ArgumentParser()
    ap.add_argument("-o", default=f"cdna_kernels/{NAME}.s")
    ap.add_argument("--pol", default="")
    ap.add_argument("--inter", type=int, default=0)
    args = ap.parse_args()
    if args.pol:
        args.pol = " " + args.pol.replace(",", " ")
    open(args.o, "w").write(G(args).gen())


if __name__ == "__main__":
    main()
```

```python
import argparse
import struct

NAME = "standalone__tree_speculative_verify_tree_attention_over_candidate_token_tree__sampling"

HEADER = """; Kernarg layout for this problem (72 bytes, ptrs only, base s[0:1]):
"""


def f32bits(x):
    return struct.unpack("<I", struct.pack("<f", x))[0]


LOG2E = 1.4426950408889634
CSCALE = 0.0625 * LOG2E
CMASK = -1.0e9 * LOG2E

V_LANE = 1
V_OFFK = 2
V_OFFV = 10
V_ADRK = 14
V_ADRV = 22
V_M = 26
V_L = 27
V_ALPHA = 28
V_T = 30
V_P = 36
V_MSK = 44
V_S = 48
V_O = 64
ACC_OFF = 192
A_Q = 0
A_K = 64
A_V = 128
N_AGPR = 192

S_SPLIT = 3
S_WAVE = 22
S_PAIR = 23
SRD_K = 24
SRD_V = 28
SRD_Q = 32
SRD_TK = 36
SRD_TV = 40
SRD_MSK = 44
SRD_OUT = 48
SRD_WS = 52
SRD_DBG = 56
S_OFF = 60
S_OFF2 = 61
S_IT = 62
S_C = 63
S_M0 = 64
S_T = 72
S_WB = 80
S_CM = 81
S_ST = 84

NT = 16
LDS_TREE = 131072
LDS_STAT = 147456
LDS_FLAG = LDS_STAT + 2048
LDS_TOTAL = LDS_FLAG + 256

WS_STAT = 8 << 20


class G:
    def __init__(self, args):
        self.a = args
        self.L = []

    def e(self, s):
        self.L.append("    " + s)

    def lab(self, s):
        self.L.append(s + ":")

    def c(self, s):
        self.L.append("    ; " + s)

    def srd(self, d, lo, hi, nbytes):
        if d != lo:
            self.e(f"s_mov_b32 s{d}, s{lo}")
        self.e(f"s_and_b32 s{d+1}, s{hi}, 0xffff")
        self.e(f"s_mov_b32 s{d+2}, {nbytes}")
        self.e(f"s_mov_b32 s{d+3}, 0x00020000")

    def srd_off(self, d, lo, hi, soff, nbytes):
        self.e(f"s_add_u32 s{d}, s{lo}, s{soff}")
        self.e(f"s_addc_u32 s{d+1}, s{hi}, 0")
        self.e(f"s_and_b32 s{d+1}, s{d+1}, 0xffff")
        self.e(f"s_mov_b32 s{d+2}, {nbytes}")
        self.e(f"s_mov_b32 s{d+3}, 0x00020000")

    def stamp(self, i):
        if not self.a.stamps:
            return
        self.e(f"s_memrealtime s[{S_ST+2*i}:{S_ST+2*i+1}]")
        self.e("s_waitcnt lgkmcnt(0)")

    def stamp_store(self):
        if not self.a.stamps:
            return
        e = self.e
        self.stamp(5)
        e(f"s_getreg_b32 s{S_T}, hwreg(HW_REG_XCC_ID)")
        e(f"s_getreg_b32 s{S_T+1}, hwreg(HW_REG_HW_ID)")
        e(f"s_lshl_b32 s{S_T+2}, s2, 2")
        e(f"s_add_u32 s{S_T+2}, s{S_T+2}, s{S_WAVE}")
        e(f"s_lshl_b32 s{S_T+2}, s{S_T+2}, 6")
        e(f"s_add_u32 s{S_T+2}, s{S_T+2}, {32 << 20}")
        for i in range(6):
            e(f"v_mov_b32 v{V_S+i}, s{S_ST+2*i}")
        e(f"v_mov_b32 v{V_S+6}, s{S_T}")
        e(f"v_mov_b32 v{V_S+7}, s{S_T+1}")
        e(f"v_mov_b32 v{V_T}, 0")
        e("s_mov_b64 exec, 1")
        e(f"buffer_store_dwordx4 v[{V_S}:{V_S+3}], v{V_T}, s[{SRD_WS}:{SRD_WS+3}], s{S_T+2} offen")
        e(f"buffer_store_dwordx4 v[{V_S+4}:{V_S+7}], v{V_T}, s[{SRD_WS}:{SRD_WS+3}], s{S_T+2} offen offset:16")

    def dma_k(self, srd, m0s, soffs, js):
        pol = self.a.pol
        for j in js:
            if j % 4 == 0 or j == js[0]:
                self.e(f"s_mov_b32 m0, {m0s[j >> 2]}")
                self.e("s_nop 0")
            imm = (j & 3) * 1024
            self.e(f"buffer_load_dwordx4 v{V_OFFK + (j & 7)}, s[{srd}:{srd+3}], {soffs[j >> 3]} offen offset:{imm}{pol} lds")

    def dma_v(self, srd, m0s, soffs, js):
        pol = self.a.pol
        for j in js:
            if j % 4 == 0 or j == js[0]:
                self.e(f"s_mov_b32 m0, {m0s[j >> 2]}")
                self.e("s_nop 0")
            imm = (j & 3) * 1024
            vo = V_OFFV + (j & 1) + 2 * ((j >> 2) & 1)
            self.e(f"buffer_load_dwordx4 v{vo}, s[{srd}:{srd+3}], {soffs[j >> 3]} offen offset:{imm}{pol} lds")

    def read_k(self, extra):
        for kk in range(16):
            off = (kk >> 3) * 256 + extra
            self.e(f"ds_read_b128 a[{A_K + 4*kk}:{A_K + 4*kk + 3}], v{V_ADRK + (kk & 7)} offset:{off}")

    def read_v(self, ks, extra):
        for dt in range(8):
            for jhi in range(2):
                off = (16 * ks + 8 * jhi) * 512 + (dt >> 2) * 256 + extra
                r = A_V + 32 * ks + 4 * dt + 2 * jhi
                self.e(f"ds_read_b64_tr_b16 a[{r}:{r+1}], v{V_ADRV + (dt & 3)} offset:{off}")

    def qk(self):
        for kk in range(16):
            cin = "0" if kk == 0 else f"v[{V_S}:{V_S+15}]"
            self.e(f"v_mfma_f32_32x32x16_bf16 v[{V_S}:{V_S+15}], a[{A_K+4*kk}:{A_K+4*kk+3}], "
                   f"a[{A_Q+4*kk}:{A_Q+4*kk+3}], {cin}")

    def pv(self, ks, first=False):
        for dt in range(8):
            o = V_O + 16 * dt
            r = A_V + 32 * ks + 4 * dt
            cin = "0" if first else f"v[{o}:{o+15}]"
            self.e(f"v_mfma_f32_32x32x16_bf16 v[{o}:{o+15}], a[{r}:{r+3}], v[{V_P+4*ks}:{V_P+4*ks+3}], {cin}")

    def xhalf(self, op, dst, a, b):
        self.e(f"v_mov_b32 v{b}, v{a}")
        self.e("s_nop 1")
        self.e(f"v_permlane32_swap_b32 v{a}, v{b}")
        self.e("s_nop 1")
        self.e(f"{op} v{dst}, v{a}, v{b}")

    def softmax(self):
        e = self.e
        S, T = V_S, V_T
        e(f"v_max3_f32 v{T}, v{S}, v{S+1}, v{S+2}")
        e(f"v_max3_f32 v{T+1}, v{S+3}, v{S+4}, v{S+5}")
        e(f"v_max3_f32 v{T+2}, v{S+6}, v{S+7}, v{S+8}")
        e(f"v_max3_f32 v{T+3}, v{S+9}, v{S+10}, v{S+11}")
        e(f"v_max3_f32 v{T}, v{T}, v{S+12}, v{S+13}")
        e(f"v_max3_f32 v{T+1}, v{T+1}, v{S+14}, v{S+15}")
        e(f"v_max3_f32 v{T}, v{T}, v{T+1}, v{T+2}")
        e(f"v_max_f32 v{T}, v{T}, v{T+3}")
        self.xhalf("v_max_f32", T, T, T + 1)
        e(f"v_mul_f32 v{T}, s{S_C}, v{T}")
        e(f"v_max_f32 v{T}, v{T}, v{V_M}")
        e(f"v_sub_f32 v{T+1}, v{V_M}, v{T}")
        e(f"v_mov_b32 v{V_M}, v{T}")
        e(f"v_exp_f32 v{V_ALPHA}, v{T+1}")
        for i in range(16):
            e(f"v_fma_f32 v{S+i}, v{S+i}, s{S_C}, -v{V_M}")
        for i in range(16):
            e(f"v_exp_f32 v{S+i}, v{S+i}")
        e(f"v_add_f32 v{T}, v{S}, v{S+1}")
        e(f"v_add_f32 v{T+1}, v{S+2}, v{S+3}")
        for i in range(4, 16, 2):
            e(f"v_add_f32 v{T}, v{T}, v{S+i}")
            e(f"v_add_f32 v{T+1}, v{T+1}, v{S+i+1}")
        e(f"v_add_f32 v{T}, v{T}, v{T+1}")
        e(f"v_fma_f32 v{V_L}, v{V_L}, v{V_ALPHA}, v{T}")
        for i in range(8):
            e(f"v_cvt_pk_bf16_f32 v{V_P+i}, v{S+2*i}, v{S+2*i+1}")
        for i in range(0, 128, 2):
            e(f"v_pk_mul_f32 v[{V_O+i}:{V_O+i+1}], v[{V_O+i}:{V_O+i+1}], v[{V_ALPHA}:{V_ALPHA+1}] op_sel_hi:[1,0]")
        e("s_nop 1")

    def gen(self):
        a = self.a
        e, lab, c = self.e, self.lab, self.c
        T = V_T
        K = NAME + "_kernel"
        out = HEADER + f"; @launch grid=(256,1,1) block=(256,1,1) lds={LDS_TOTAL}\n"
        out += '.amdgcn_target "amdgcn-amd-amdhsa--gfx950"\n.text\n'
        out += f".globl {K}\n.p2align 8\n.type {K},@function\n{K}:\n"

        e("s_cmp_ge_u32 s2, 256")
        e("s_cbranch_scc1 L_end")
        self.stamp(0)
        e("s_load_dwordx16 s[4:19], s[0:1], 0")
        e("s_load_dwordx2 s[20:21], s[0:1], 64")
        c("lane / wave decomposition")
        e(f"v_lshrrev_b32 v{T}, 6, v0")
        e(f"v_and_b32 v{V_LANE}, 63, v0")
        e(f"v_readfirstlane_b32 s{S_WAVE}, v{T}")
        e(f"v_lshrrev_b32 v{T+1}, 5, v{V_LANE}")
        e(f"v_and_b32 v{T+2}, 31, v{V_LANE}")
        if a.map == 0:
            e(f"s_and_b32 s{S_PAIR}, s2, 63")
            e(f"s_lshr_b32 s{S_SPLIT}, s2, 6")
        elif a.map == 1:
            e(f"s_lshr_b32 s{S_PAIR}, s2, 2")
            e(f"s_and_b32 s{S_SPLIT}, s2, 3")
        elif a.map == 2:
            e(f"s_and_b32 s{S_PAIR}, s2, 7")
            e(f"s_lshl_b32 s{S_PAIR}, s{S_PAIR}, 3")
            e(f"s_bfe_u32 s{S_SPLIT}, s2, 0x30003")
            e(f"s_add_u32 s{S_PAIR}, s{S_PAIR}, s{S_SPLIT}")
            e(f"s_lshr_b32 s{S_SPLIT}, s2, 6")
        c("DMA source offsets (swizzled)")
        e(f"v_xor_b32 v{T+3}, v{T+2}, v{T+1}")
        e(f"v_lshlrev_b32 v{T+3}, 4, v{T+3}")
        e(f"v_lshl_or_b32 v{T+3}, v{T+1}, 9, v{T+3}")
        for jj in range(8):
            e(f"v_xor_b32 v{V_OFFK+jj}, {(2*jj << 4) | ((jj >> 2) << 12)}, v{T+3}")
        e(f"v_lshlrev_b32 v{T+4}, 2, v{T+1}")
        e(f"v_xor_b32 v{T+4}, v{T+2}, v{T+4}")
        e(f"v_lshlrev_b32 v{T+4}, 4, v{T+4}")
        e(f"v_lshl_or_b32 v{T+4}, v{T+1}, 9, v{T+4}")
        for x in range(4):
            e(f"v_xor_b32 v{V_OFFV+x}, {((x & 1) * 128) | ((x >> 1) << 12)}, v{T+4}")
        c("scalar setup")
        e(f"s_lshl_b32 s{S_WB}, s{S_WAVE}, 15")
        for i in range(8):
            e(f"s_add_u32 s{S_M0+i}, s{S_WB}, {i*4096}")
        e(f"s_lshl_b32 s{S_OFF}, s{S_SPLIT}, 20")
        if a.inter:
            e(f"s_lshl_b32 s{S_T}, s{S_WAVE}, 14")
        else:
            e(f"s_lshl_b32 s{S_T}, s{S_WAVE}, 18")
        e(f"s_add_u32 s{S_OFF}, s{S_OFF}, s{S_T}")
        e(f"s_add_u32 s{S_OFF2}, s{S_OFF}, 8192")
        e(f"s_lshl_b32 s{S_T}, s{S_PAIR}, 22")
        e(f"s_lshl_b32 s{S_T+1}, s{S_PAIR}, 14")
        e(f"s_lshl_b32 s{S_T+2}, s{S_PAIR}, 13")
        c("Q fragment offset: q*512 + h*16")
        e(f"v_lshlrev_b32 v{T+5}, 9, v{T+2}")
        e(f"v_lshl_or_b32 v{T+5}, v{T+1}, 4, v{T+5}")
        e("s_waitcnt lgkmcnt(0)")
        self.srd_off(SRD_K, 6, 7, S_T, 4 << 20)
        self.srd_off(SRD_V, 8, 9, S_T, 4 << 20)
        self.srd_off(SRD_Q, 4, 5, S_T + 1, 16384)
        self.srd_off(SRD_TK, 10, 11, S_T + 2, 8192)
        self.srd_off(SRD_TV, 12, 13, S_T + 2, 8192)
        self.srd(SRD_MSK, 14, 15, 4096)
        self.srd_off(SRD_OUT, 16, 17, S_T + 1, 16384)
        self.srd(SRD_WS, 20, 21, 64 << 20)
        self.srd(SRD_DBG, 18, 19, 256)
        m0k = [f"s{S_M0+i}" for i in range(4)]
        m0v = [f"s{S_M0+4+i}" for i in range(4)]
        soffs = [f"s{S_OFF}", f"s{S_OFF2}"]

        c("tree wave (split 3, wave 3): tree K/V + mask loads go first (oldest)")
        e(f"s_lshl_b32 s{S_T+3}, s{S_SPLIT}, 2")
        e(f"s_add_u32 s{S_T+3}, s{S_T+3}, s{S_WAVE}")
        e(f"s_cmp_lg_u32 s{S_T+3}, 15")
        e("s_cbranch_scc1 L_notree0")
        self.dma_k(SRD_TK, [str(LDS_TREE), str(LDS_TREE + 4096)], ["0"], list(range(8)))
        self.dma_v(SRD_TV, [str(LDS_TREE + 8192), str(LDS_TREE + 12288)], ["0"], list(range(8)))
        c("mask[b][t=q&15][4h..4h+3], [8+4h..]: byte off = b*512 + t*32 + h*8")
        e(f"v_and_b32 v{V_S}, 15, v{V_LANE}")
        e(f"v_lshlrev_b32 v{V_S}, 5, v{V_S}")
        e(f"v_lshl_or_b32 v{V_S}, v{T+1}, 3, v{V_S}")
        e(f"s_lshr_b32 s{S_T+4}, s{S_PAIR}, 3")
        e(f"s_lshl_b32 s{S_T+4}, s{S_T+4}, 9")
        e(f"buffer_load_dwordx2 v[{V_MSK}:{V_MSK+1}], v{V_S}, s[{SRD_MSK}:{SRD_MSK+3}], s{S_T+4} offen")
        e(f"buffer_load_dwordx2 v[{V_MSK+2}:{V_MSK+3}], v{V_S}, s[{SRD_MSK}:{SRD_MSK+3}], s{S_T+4} offen offset:16")
        lab("L_notree0")

        c("prologue loads: K0, Q, V0")
        self.dma_k(SRD_K, m0k, soffs, list(range(16)))
        for kk in range(16):
            e(f"buffer_load_dwordx4 a[{A_Q+4*kk}:{A_Q+4*kk+3}], v{T+5}, s[{SRD_Q}:{SRD_Q+3}], 0 offen offset:{kk*32}")
        self.dma_v(SRD_V, m0v, soffs, list(range(16)))
        step = 65536 if a.inter else 16384
        e(f"s_add_u32 s{S_OFF}, s{S_OFF}, {step}")
        e(f"s_add_u32 s{S_OFF2}, s{S_OFF2}, {step}")

        self.stamp(1)
        c("LDS read addresses")
        e(f"v_and_b32 v{T+3}, 15, v{T+2}")
        e(f"v_xor_b32 v{T+3}, v{T+3}, v{T+1}")
        e(f"v_lshlrev_b32 v{T+3}, 4, v{T+3}")
        e(f"v_lshl_or_b32 v{T+3}, v{T+2}, 9, v{T+3}")
        e(f"v_add_u32 v{T+3}, s{S_WB}, v{T+3}")
        for ee in range(8):
            e(f"v_xor_b32 v{V_ADRK+ee}, {2*ee << 4}, v{T+3}")
        e(f"v_bfe_u32 v{T+3}, v{V_LANE}, 2, 2")
        e(f"v_lshl_add_u32 v{T+4}, v{T+1}, 2, v{T+3}")
        e(f"v_lshlrev_b32 v{T+4}, 9, v{T+4}")
        e(f"v_lshl_or_b32 v{T+4}, v{T+3}, 6, v{T+4}")
        e(f"v_bfe_u32 v{T+3}, v{V_LANE}, 4, 1")
        e(f"v_lshl_or_b32 v{T+4}, v{T+3}, 5, v{T+4}")
        e(f"v_and_b32 v{T+3}, 3, v{V_LANE}")
        e(f"v_lshl_or_b32 v{T+4}, v{T+3}, 3, v{T+4}")
        e(f"v_add_u32 v{T+4}, s{S_M0+4}, v{T+4}")
        for ee in range(4):
            e(f"v_xor_b32 v{V_ADRV+ee}, {ee << 6}, v{T+4}")
        e(f"s_mov_b32 s{S_C}, 0x{f32bits(CSCALE):08x}")
        e(f"s_mov_b32 s{S_CM}, 0x{f32bits(CMASK):08x}")
        e(f"s_mov_b32 s{S_IT}, 0")

        e(f"s_cmp_lg_u32 s{S_T+3}, 15")
        e("s_cbranch_scc1 L_notree1")
        c("---- tree tile (16 keys, masked) ----")
        e("s_waitcnt vmcnt(16)")
        self.read_k(32768)
        self.read_v(0, 24576)
        c("mask term: (1 - m) * (-1e9*log2e)")
        for i in range(4):
            e(f"v_lshlrev_b32 v{V_O+2*i}, 16, v{V_MSK+i}")
            e(f"v_and_b32 v{V_O+2*i+1}, 0xffff0000, v{V_MSK+i}")
        for i in range(8):
            e(f"v_sub_f32 v{V_O+i}, 1.0, v{V_O+i}")
        for i in range(8):
            e(f"v_mul_f32 v{V_O+i}, s{S_CM}, v{V_O+i}")
        e("s_waitcnt lgkmcnt(0)")
        self.qk()
        e("s_nop 15")
        S = V_S
        for i in range(8):
            e(f"v_fma_f32 v{S+i}, v{S+i}, s{S_C}, v{V_O+i}")
        e(f"v_max3_f32 v{T}, v{S}, v{S+1}, v{S+2}")
        e(f"v_max3_f32 v{T+1}, v{S+3}, v{S+4}, v{S+5}")
        e(f"v_max3_f32 v{T}, v{T}, v{S+6}, v{S+7}")
        e(f"v_max_f32 v{T}, v{T}, v{T+1}")
        self.xhalf("v_max_f32", V_M, T, T + 1)
        for i in range(8):
            e(f"v_sub_f32 v{S+i}, v{S+i}, v{V_M}")
        for i in range(8):
            e(f"v_exp_f32 v{S+i}, v{S+i}")
        e("s_nop 0")
        e(f"v_add_f32 v{V_L}, v{S}, v{S+1}")
        for i in range(2, 8):
            e(f"v_add_f32 v{V_L}, v{V_L}, v{S+i}")
        for i in range(4):
            e(f"v_cvt_pk_bf16_f32 v{V_P+i}, v{S+2*i}, v{S+2*i+1}")
        e("s_nop 1")
        self.pv(0, first=True)
        e("s_branch L_preloop" if a.stamps else "s_branch L_loop")
        lab("L_notree1")
        e(f"v_mov_b32 v{V_M}, 0xff800000")
        e(f"v_mov_b32 v{V_L}, 0")
        for i in range(128):
            e(f"v_mov_b32 v{V_O+i}, 0")

        if a.stamps:
            lab("L_preloop")
            e("s_waitcnt vmcnt(16)")
            self.stamp(2)
        self.L.append(".p2align 6")
        lab("L_loop")
        e("s_waitcnt vmcnt(16)")
        self.read_k(0)
        e(f"s_cmp_eq_u32 s{S_IT}, {NT-1}")
        e("s_waitcnt lgkmcnt(0)")
        e("s_cbranch_scc1 L_skipK")
        self.dma_k(SRD_K, m0k, soffs, list(range(16)))
        lab("L_skipK")
        self.qk()
        e("s_nop 15")
        self.softmax()
        e(f"s_cmp_eq_u32 s{S_IT}, {NT-1}")
        e("s_cbranch_scc1 L_w1_last")
        e("s_waitcnt vmcnt(24)")
        e("s_branch L_w1")
        lab("L_w1_last")
        e("s_waitcnt vmcnt(8)")
        lab("L_w1")
        self.read_v(0, 0)
        e("s_waitcnt lgkmcnt(0)")
        e("s_cbranch_scc1 L_skipVa")
        self.dma_v(SRD_V, m0v, soffs, list(range(8)))
        lab("L_skipVa")
        self.pv(0)
        e("s_cbranch_scc1 L_w2_last")
        e("s_waitcnt vmcnt(24)")
        e("s_branch L_w2")
        lab("L_w2_last")
        e("s_waitcnt vmcnt(0)")
        lab("L_w2")
        self.read_v(1, 0)
        e("s_waitcnt lgkmcnt(0)")
        e("s_cbranch_scc1 L_skipVb")
        self.dma_v(SRD_V, m0v, soffs, list(range(8, 16)))
        lab("L_skipVb")
        self.pv(1)
        e(f"s_add_u32 s{S_OFF}, s{S_OFF}, {step}")
        e(f"s_add_u32 s{S_OFF2}, s{S_OFF2}, {step}")
        e(f"s_add_u32 s{S_IT}, s{S_IT}, 1")
        e(f"s_cmp_lt_u32 s{S_IT}, {NT}")
        e("s_cbranch_scc1 L_loop")

        self.stamp(3)
        c("---- intra-workgroup combine through LDS ----")
        c("l total over both key halves")
        self.xhalf("v_add_f32", V_L, V_L, T)
        e(f"v_lshlrev_b32 v{T+2}, 4, v{V_LANE}")
        e(f"v_add_u32 v{T+3}, s{S_WB}, v{T+2}")
        e(f"v_lshlrev_b32 v{T+4}, 3, v{V_LANE}")
        e(f"s_lshl_b32 s{S_T}, s{S_WAVE}, 9")
        e(f"v_add_u32 v{T+5}, s{S_T}, v{T+4}")
        e(f"v_add_u32 v{T+5}, {LDS_STAT}, v{T+5}")
        e(f"ds_write_b64 v{T+5}, v[{V_M}:{V_M+1}]")
        e("s_nop 7")
        for rq in range(32):
            e(f"ds_write_b128 v{T+3}, v[{V_O+4*rq}:{V_O+4*rq+3}] offset:{rq*1024}")
        e("s_waitcnt lgkmcnt(0)")
        e("s_barrier")
        c("read stats of the 4 waves -> v[S..S+7] (m,l pairs)")
        e(f"v_add_u32 v{T+4}, {LDS_STAT}, v{T+4}")
        for w in range(4):
            e(f"ds_read_b64 v[{S+2*w}:{S+2*w+1}], v{T+4} offset:{w*512}")
        c("read own d-slice from the 4 outboxes")
        e(f"s_lshl_b32 s{S_T}, s{S_WAVE}, 13")
        e(f"v_add_u32 v{T+3}, s{S_T}, v{T+2}")
        e(f"v_add_u32 v{T+5}, 65536, v{T+3}")
        for w in range(4):
            for rq in range(8):
                base = T + 3 if w < 2 else T + 5
                r = V_O + 32 * w + 4 * rq
                e(f"ds_read_b128 v[{r}:{r+3}], v{base} offset:{(w & 1)*32768 + rq*1024}")
        e("s_waitcnt lgkmcnt(15)")
        self.combine4(S)
        c("now v[V_O..V_O+31] = partial O, V_M = M, V_L = L")

        self.stamp(4)
        c("---- publish partial (write-through) ----")
        e(f"s_lshl_b32 s{S_T}, s{S_PAIR}, 2")
        e(f"s_add_u32 s{S_T}, s{S_T}, s{S_SPLIT}")
        e(f"s_lshl_b32 s{S_T}, s{S_T}, 2")
        e(f"s_add_u32 s{S_T}, s{S_T}, s{S_WAVE}")
        e(f"s_lshl_b32 s{S_T+1}, s{S_T}, 13")
        e(f"s_add_u32 s{S_T+2}, s{S_T+1}, 4096")
        e(f"s_lshl_b32 s{S_T+3}, s{S_T}, 9")
        e(f"s_add_u32 s{S_T+3}, s{S_T+3}, {WS_STAT}")
        e(f"v_lshlrev_b32 v{T+4}, 3, v{V_LANE}")
        for rq in range(8):
            so = S_T + 1 + (rq >> 2)
            e(f"buffer_store_dwordx4 v[{V_O+4*rq}:{V_O+4*rq+3}], v{T+2}, s[{SRD_WS}:{SRD_WS+3}], s{so} offen offset:{(rq & 3)*1024} sc1")
        e(f"buffer_store_dwordx2 v[{V_M}:{V_M+1}], v{T+4}, s[{SRD_WS}:{SRD_WS+3}], s{S_T+3} offen sc1")
        e("s_waitcnt vmcnt(0)")
        e("s_barrier")
        e(f"s_cmp_lg_u32 s{S_WAVE}, 0")
        e("s_cbranch_scc1 L_noatomic")
        e(f"s_lshl_b32 s{S_T+4}, s{S_PAIR}, 2")
        e(f"v_mov_b32 v{T}, 1")
        e(f"v_mov_b32 v{T+1}, 0")
        e("s_mov_b64 s[78:79], exec")
        e("s_mov_b64 exec, 1")
        e(f"buffer_atomic_add v{T}, v{T+1}, s[{SRD_DBG}:{SRD_DBG+3}], s{S_T+4} offen sc0 sc1")
        e("s_waitcnt vmcnt(0)")
        e(f"v_mov_b32 v{T+1}, {LDS_FLAG}")
        e(f"ds_write_b32 v{T+1}, v{T}")
        e("s_waitcnt lgkmcnt(0)")
        e("s_mov_b64 exec, s[78:79]")
        lab("L_noatomic")
        e("s_barrier")
        e(f"v_mov_b32 v{T+1}, {LDS_FLAG}")
        e(f"ds_read_b32 v{T}, v{T+1}")
        e("s_waitcnt lgkmcnt(0)")
        e(f"v_readfirstlane_b32 s{S_T+4}, v{T}")
        e("s_nop 3")
        e(f"s_cmp_lg_u32 s{S_T+4}, 3")
        e("s_cbranch_scc1 L_fin")

        c("---- last arriver: combine the 4 splits ----")
        e(f"s_lshl_b32 s{S_T}, s{S_PAIR}, 4")
        e(f"s_add_u32 s{S_T}, s{S_T}, s{S_WAVE}")
        e(f"s_lshl_b32 s{S_T+3}, s{S_T}, 9")
        e(f"s_add_u32 s{S_T+3}, s{S_T+3}, {WS_STAT}")
        e(f"s_lshl_b32 s{S_T+1}, s{S_T}, 13")
        for sp in range(2):
            e(f"buffer_load_dwordx2 v[{S+2*sp}:{S+2*sp+1}], v{T+4}, s[{SRD_WS}:{SRD_WS+3}], s{S_T+3} offen offset:{sp*2048} sc1")
        e(f"s_add_u32 s{S_T+3}, s{S_T+3}, 4096")
        for sp in range(2, 4):
            e(f"buffer_load_dwordx2 v[{S+2*sp}:{S+2*sp+1}], v{T+4}, s[{SRD_WS}:{SRD_WS+3}], s{S_T+3} offen offset:{(sp-2)*2048} sc1")
        for sp in range(4):
            for half in range(2):
                for r4 in range(4):
                    rq = half * 4 + r4
                    r = V_O + 32 * sp + 4 * rq
                    e(f"buffer_load_dwordx4 v[{r}:{r+3}], v{T+2}, s[{SRD_WS}:{SRD_WS+3}], s{S_T+1} offen offset:{r4*1024} sc1")
                e(f"s_add_u32 s{S_T+1}, s{S_T+1}, {4096 if half == 0 else 32768 - 4096}")
        e("s_waitcnt vmcnt(0)")
        self.combine4(S, nowait=True)
        e(f"v_rcp_f32 v{V_ALPHA}, v{V_L}")
        e("s_nop 0")
        for i in range(32):
            e(f"v_mul_f32 v{V_O+i}, v{V_O+i}, v{V_ALPHA}")
        for i in range(16):
            e(f"v_cvt_pk_bf16_f32 v{V_O+32+i}, v{V_O+2*i}, v{V_O+2*i+1}")
        c("out[q][d]: q = l&31, d = 64*wave + 32*dtl + 8*g + 4*h + (0..3)")
        e(f"v_and_b32 v{T}, 31, v{V_LANE}")
        e(f"v_lshlrev_b32 v{T}, 9, v{T}")
        e(f"v_lshrrev_b32 v{T+1}, 5, v{V_LANE}")
        e(f"v_lshl_or_b32 v{T}, v{T+1}, 3, v{T}")
        e(f"s_lshl_b32 s{S_T}, s{S_WAVE}, 7")
        for g8 in range(8):
            r = V_O + 32 + 2 * g8
            e(f"buffer_store_dwordx2 v[{r}:{r+1}], v{T}, s[{SRD_OUT}:{SRD_OUT+3}], s{S_T} offen offset:{g8*16}")
        if a.stamps:
            e("s_waitcnt vmcnt(0)")
        lab("L_fin")
        self.stamp_store()
        lab("L_end")
        e("s_endpgm")

        out += "\n".join(self.L) + "\n"
        out += f""".section .rodata,"a"
.p2align 6
.amdhsa_kernel {K}
  .amdhsa_next_free_vgpr {ACC_OFF + N_AGPR}
  .amdhsa_next_free_sgpr 100
  .amdhsa_accum_offset {ACC_OFF}
  .amdhsa_group_segment_fixed_size 0
  .amdhsa_kernarg_size 72
  .amdhsa_user_sgpr_count 2
  .amdhsa_user_sgpr_kernarg_segment_ptr 1
  .amdhsa_system_sgpr_workgroup_id_x 1
.end_amdhsa_kernel
"""
        return out

    def combine4(self, S, nowait=False):
        e = self.e
        T = V_T
        e(f"v_max_f32 v{T}, v{S}, v{S+2}")
        e(f"v_max3_f32 v{V_M}, v{T}, v{S+4}, v{S+6}")
        for i in range(4):
            e(f"v_sub_f32 v{S+8+i}, v{S+2*i}, v{V_M}")
        for i in range(4):
            e(f"v_exp_f32 v{S+8+i}, v{S+8+i}")
        e("s_nop 0")
        for i in range(4):
            e(f"v_mul_f32 v{S+12+i}, v{S+8+i}, v{S+2*i+1}")
        e(f"v_add_f32 v{S+12}, v{S+12}, v{S+13}")
        e(f"v_add_f32 v{S+14}, v{S+14}, v{S+15}")
        e(f"v_add_f32 v{V_L}, v{S+12}, v{S+14}")
        if not nowait:
            e("s_waitcnt lgkmcnt(0)")
        for i in range(4):
            for r in range(32):
                e(f"v_mul_f32 v{V_O+32*i+r}, v{V_O+32*i+r}, v{S+8+i}")
        for r in range(32):
            e(f"v_add_f32 v{V_O+r}, v{V_O+r}, v{V_O+32+r}")
            e(f"v_add_f32 v{V_O+64+r}, v{V_O+64+r}, v{V_O+96+r}")
        for r in range(32):
            e(f"v_add_f32 v{V_O+r}, v{V_O+r}, v{V_O+64+r}")


def main():
    ap = argparse.ArgumentParser()
    ap.add_argument("-o", default=f"cdna_kernels/{NAME}.s")
    ap.add_argument("--pol", default="")
    ap.add_argument("--inter", type=int, default=0)
    ap.add_argument("--stamps", type=int, default=0)
    ap.add_argument("--map", type=int, default=0)
    args = ap.parse_args()
    if args.pol:
        args.pol = " " + args.pol.replace(",", " ")
    open(args.o, "w").write(G(args).gen())


if __name__ == "__main__":
    main()
```

```python
import argparse
import struct

from gen import HEADER, NAME, f32bits, CSCALE, CMASK

V_LANE = 1
V_T = 2
V_M = 10
V_L = 11
V_ALPHA = 12
V_ZERO = 13
V_FLAGA = 14
V_CONA = 15
V_BK = 16
V_BV = 24
V_AK = 28
V_AV = 36
V_TK = 38
V_F = 39
V_P = 40
V_S = 48
V_O = 64
V_V = 96
V_K = 112
V_Q = 176
V_MSK = 240
V_MT = 244
NVGPR = 252
V_OFFK = V_BK
V_OFFV = V_BV

S_SPLIT = 3
S_WAVE = 22
S_PAIR = 23
SRD_K = 24
SRD_V = 28
SRD_Q = 32
SRD_TK = 36
SRD_TV = 40
SRD_MSK = 44
SRD_OUT = 48
SRD_WS = 52
SRD_DBG = 56
S_OFF = 60
S_OFF2 = 61
S_IT = 62
S_C = 63
S_CM = 64
S_SLOT = 65
S_CI = 66
S_NEED = 67
S_LANDED = 68
S_CTR = 69
S_CHK = 70
S_SPIN = 71
S_T = 72
S_ST = 84

NT = 64
LDS_TREE = 131072
LDS_FLAG = 147456
LDS_CONS = LDS_FLAG + 16
LDS_TOTAL = LDS_FLAG + 64

WS_STAT = 8 << 20
WS_CTR = 12 << 20
WS_STAMP = 32 << 20


class G:
    def __init__(self, args):
        self.a = args
        self.L = []
        self.uid = 0

    def e(self, s):
        self.L.append("    " + s)

    def lab(self, s):
        self.L.append(s + ":")

    def c(self, s):
        self.L.append("    ; " + s)

    def newlab(self, base):
        self.uid += 1
        return f"L_{base}_{self.uid}"

    def srd(self, d, lo, hi, nbytes):
        self.e(f"s_mov_b32 s{d}, s{lo}")
        self.e(f"s_and_b32 s{d+1}, s{hi}, 0xffff")
        self.e(f"s_mov_b32 s{d+2}, {nbytes}")
        self.e(f"s_mov_b32 s{d+3}, 0x00020000")

    def srd_off(self, d, lo, hi, soff, nbytes):
        self.e(f"s_add_u32 s{d}, s{lo}, s{soff}")
        self.e(f"s_addc_u32 s{d+1}, s{hi}, 0")
        self.e(f"s_and_b32 s{d+1}, s{d+1}, 0xffff")
        self.e(f"s_mov_b32 s{d+2}, {nbytes}")
        self.e(f"s_mov_b32 s{d+3}, 0x00020000")

    def stamp(self, i):
        if not self.a.stamps:
            return
        self.e(f"s_memrealtime s[{S_ST+2*i}:{S_ST+2*i+1}]")
        self.e("s_waitcnt lgkmcnt(0)")

    def stamp_store(self):
        if not self.a.stamps:
            return
        e = self.e
        e("s_memtime s[98:99]")
        self.stamp(5)
        e(f"s_getreg_b32 s{S_T}, hwreg(HW_REG_XCC_ID)")
        e(f"s_mul_i32 s{S_T+2}, s2, 5")
        e(f"s_add_u32 s{S_T+2}, s{S_T+2}, s{S_WAVE}")
        e(f"s_lshl_b32 s{S_T+2}, s{S_T+2}, 6")
        e(f"s_add_u32 s{S_T+2}, s{S_T+2}, {WS_STAMP}")
        for i in range(6):
            e(f"v_mov_b32 v{V_S+i}, s{S_ST+2*i}")
        e(f"v_mov_b32 v{V_S+6}, s{S_T}")
        e(f"v_mov_b32 v{V_S+7}, s{S_T+9}")
        e(f"v_mov_b32 v{V_S+8}, s96")
        e(f"v_mov_b32 v{V_S+9}, s98")
        e(f"s_getreg_b32 s{S_T}, hwreg(HW_REG_HW_ID)")
        e(f"v_mov_b32 v{V_S+10}, s{S_T}")
        e(f"v_mov_b32 v{V_S+11}, s{S_SPIN}")
        e(f"v_mov_b32 v{V_T}, 0")
        e("s_mov_b64 exec, 1")
        e(f"buffer_store_dwordx4 v[{V_S+8}:{V_S+11}], v{V_T}, s[{SRD_WS}:{SRD_WS+3}], s{S_T+2} offen offset:32")
        e(f"buffer_store_dwordx4 v[{V_S}:{V_S+3}], v{V_T}, s[{SRD_WS}:{SRD_WS+3}], s{S_T+2} offen")
        e(f"buffer_store_dwordx4 v[{V_S+4}:{V_S+7}], v{V_T}, s[{SRD_WS}:{SRD_WS+3}], s{S_T+2} offen offset:16")
        e("s_mov_b64 exec, -1")

    def piece(self, kind, j, srd, soffs, m0):
        pol = self.a.pol
        if j % 4 == 0:
            m0(j >> 2)
            self.e("s_nop 0")
        imm = (j & 3) * 1024
        if kind == "K":
            vo = V_OFFK + (j & 7)
        else:
            vo = V_OFFV + (j & 1) + 2 * ((j >> 2) & 1)
        self.e(f"buffer_load_dwordx4 v{vo}, s[{srd}:{srd+3}], {soffs[j >> 3]} offen offset:{imm}{pol} lds")

    def spin_guard(self):
        self.e(f"s_sub_u32 s{S_SPIN}, s{S_SPIN}, 1")
        self.e("s_cbranch_scc1 L_end")

    def claim_and_init(self, l_ready, l_busy):
        e = self.e
        T = V_T
        e(f"v_mov_b32 v{T+6}, 1")
        e(f"v_mov_b32 v{T+7}, 0")
        e("s_mov_b64 exec, 1")
        e(f"buffer_atomic_cmpswap v[{T+6}:{T+7}], v{V_ZERO}, s[{SRD_DBG}:{SRD_DBG+3}], 0 offen sc0")
        e("s_mov_b64 exec, -1")
        e("s_waitcnt vmcnt(0)")
        e(f"v_readfirstlane_b32 s{S_T}, v{T+6}")
        e("s_nop 0")
        e(f"s_cmp_eq_u32 s{S_T}, 3")
        e(f"s_cbranch_scc1 {l_ready}")
        e(f"s_cmp_lg_u32 s{S_T}, 0")
        e(f"s_cbranch_scc1 {l_busy}")
        e(f"v_lshlrev_b32 v{T+6}, 8, v{V_LANE}")
        for i in range(4):
            e(f"s_mov_b32 s{S_T}, {WS_CTR + i*16384}")
            e(f"buffer_store_dword v{V_ZERO}, v{T+6}, s[{SRD_WS}:{SRD_WS+3}], s{S_T} offen sc1")
        e("s_waitcnt vmcnt(0)")
        e(f"v_mov_b32 v{T+6}, 3")
        e("s_mov_b64 exec, 1")
        e(f"buffer_atomic_swap v{T+6}, v{V_ZERO}, s[{SRD_DBG}:{SRD_DBG+3}], 0 offen")
        e("s_mov_b64 exec, -1")
        e(f"s_branch {l_ready}")

    def poll(self, need_sreg):
        e = self.e
        lp, go = self.newlab("poll"), self.newlab("go")
        e(f"s_cmp_ge_u32 s{S_LANDED}, s{need_sreg}")
        e(f"s_cbranch_scc1 {go}")
        self.lab(lp)
        e(f"ds_read_b32 v{V_F}, v{V_FLAGA}")
        e("s_waitcnt lgkmcnt(0)")
        e(f"v_readfirstlane_b32 s{S_LANDED}, v{V_F}")
        e("s_nop 0")
        e(f"s_cmp_ge_u32 s{S_LANDED}, s{need_sreg}")
        e(f"s_cbranch_scc1 {go}")
        if self.a.sleep:
            e(f"s_sleep {self.a.sleep}")
        self.spin_guard()
        e(f"s_branch {lp}")
        self.lab(go)

    def read_k(self, base, extra):
        for kk in range(16):
            off = (kk >> 3) * 256 + extra
            self.e(f"ds_read_b128 v[{V_K+4*kk}:{V_K+4*kk+3}], v{base + (kk & 7)} offset:{off}")

    def read_v(self, base, kss, extra):
        for ks in kss:
            for dtl in range(2):
                for jhi in range(2):
                    off = (16 * ks + 8 * jhi) * 512 + extra
                    r = V_V + 8 * ks + 4 * dtl + 2 * jhi
                    self.e(f"ds_read_b64_tr_b16 v[{r}:{r+1}], v{base + dtl} offset:{off}")

    def qk(self, counted):
        for kk in range(16):
            if counted:
                self.e(f"s_waitcnt lgkmcnt({15 - kk})")
            cin = "0" if kk == 0 else f"v[{V_S}:{V_S+15}]"
            self.e(f"v_mfma_f32_32x32x16_bf16 v[{V_S}:{V_S+15}], v[{V_K+4*kk}:{V_K+4*kk+3}], "
                   f"v[{V_Q+4*kk}:{V_Q+4*kk+3}], {cin}")

    def pv(self, kss, first=False):
        for ks in kss:
            for dtl in range(2):
                o = V_O + 16 * dtl
                r = V_V + 8 * ks + 4 * dtl
                cin = "0" if first else f"v[{o}:{o+15}]"
                self.e(f"v_mfma_f32_32x32x16_bf16 v[{o}:{o+15}], v[{r}:{r+3}], v[{V_P+4*ks}:{V_P+4*ks+3}], {cin}")

    def xhalf(self, op, dst, a, b):
        self.e(f"v_mov_b32 v{b}, v{a}")
        self.e("s_nop 1")
        self.e(f"v_permlane32_swap_b32 v{a}, v{b}")
        self.e("s_nop 1")
        self.e(f"{op} v{dst}, v{a}, v{b}")

    def softmax(self):
        e = self.e
        S, T = V_S, V_T
        e(f"v_max3_f32 v{T}, v{S}, v{S+1}, v{S+2}")
        e(f"v_max3_f32 v{T+1}, v{S+3}, v{S+4}, v{S+5}")
        e(f"v_max3_f32 v{T+2}, v{S+6}, v{S+7}, v{S+8}")
        e(f"v_max3_f32 v{T+3}, v{S+9}, v{S+10}, v{S+11}")
        e(f"v_max3_f32 v{T}, v{T}, v{S+12}, v{S+13}")
        e(f"v_max3_f32 v{T+1}, v{T+1}, v{S+14}, v{S+15}")
        e(f"v_max3_f32 v{T}, v{T}, v{T+1}, v{T+2}")
        e(f"v_max_f32 v{T}, v{T}, v{T+3}")
        self.xhalf("v_max_f32", T, T, T + 1)
        e(f"v_mul_f32 v{T}, s{S_C}, v{T}")
        e(f"v_max_f32 v{T}, v{T}, v{V_M}")
        e(f"v_sub_f32 v{T+1}, v{V_M}, v{T}")
        e(f"v_mov_b32 v{V_M}, v{T}")
        e(f"v_exp_f32 v{V_ALPHA}, v{T+1}")
        for i in range(16):
            e(f"v_fma_f32 v{S+i}, v{S+i}, s{S_C}, -v{V_M}")
        for i in range(16):
            e(f"v_exp_f32 v{S+i}, v{S+i}")
        for i in range(0, 32, 2):
            e(f"v_pk_mul_f32 v[{V_O+i}:{V_O+i+1}], v[{V_O+i}:{V_O+i+1}], v[{V_ALPHA}:{V_ALPHA+1}] op_sel_hi:[1,0]")
        for i in range(8):
            e(f"v_cvt_pk_bf16_f32 v{V_P+i}, v{S+2*i}, v{S+2*i+1}")
        e(f"v_add_f32 v{T}, v{S}, v{S+1}")
        e(f"v_add_f32 v{T+1}, v{S+2}, v{S+3}")
        for i in range(4, 16, 2):
            e(f"v_add_f32 v{T}, v{T}, v{S+i}")
            e(f"v_add_f32 v{T+1}, v{T+1}, v{S+i+1}")
        e(f"v_add_f32 v{T}, v{T}, v{T+1}")
        e(f"v_fma_f32 v{V_L}, v{V_L}, v{V_ALPHA}, v{T}")

    def gen(self):
        a = self.a
        e, lab, c = self.e, self.lab, self.c
        T = V_T
        S = V_S
        Gp, R = a.group, a.ring
        GPT = 32 // Gp
        K = NAME + "_kernel"
        out = HEADER + f"; @launch grid=(256,1,1) block=(320,1,1) lds={LDS_TOTAL}\n"
        out += '.amdgcn_target "amdgcn-amd-amdhsa--gfx950"\n.text\n'
        out += f".globl {K}\n.p2align 8\n.type {K},@function\n{K}:\n"

        e("s_cmp_ge_u32 s2, 256")
        e("s_cbranch_scc1 L_end")
        if a.stamps:
            e("s_memtime s[96:97]")
        self.stamp(0)
        e("s_load_dwordx16 s[4:19], s[0:1], 0")
        e("s_load_dwordx2 s[20:21], s[0:1], 64")
        e(f"v_lshrrev_b32 v{T}, 6, v0")
        e(f"v_and_b32 v{V_LANE}, 63, v0")
        e(f"v_readfirstlane_b32 s{S_WAVE}, v{T}")
        e(f"v_lshrrev_b32 v{T+1}, 5, v{V_LANE}")
        e(f"v_and_b32 v{T+2}, 31, v{V_LANE}")
        e(f"s_and_b32 s{S_PAIR}, s2, 63")
        e(f"s_lshr_b32 s{S_SPLIT}, s2, 6")
        e(f"v_mov_b32 v{V_FLAGA}, {LDS_FLAG}")
        e(f"v_mov_b32 v{V_ZERO}, 0")
        e(f"s_mov_b32 s{S_SPIN}, {a.spin}")
        if a.stamps:
            e(f"s_mov_b32 s{S_T+9}, 0")
        e(f"s_cmp_lg_u32 s{S_WAVE}, 0")
        e("s_cbranch_scc1 L_consumer")

        c("================= loader wave =================")
        e("s_setprio 3")
        e(f"v_xor_b32 v{T+3}, v{T+2}, v{T+1}")
        e(f"v_lshlrev_b32 v{T+3}, 4, v{T+3}")
        e(f"v_lshl_or_b32 v{T+3}, v{T+1}, 9, v{T+3}")
        for jj in range(8):
            e(f"v_xor_b32 v{V_OFFK+jj}, {(2*jj << 4) | ((jj >> 2) << 12)}, v{T+3}")
        e(f"v_lshlrev_b32 v{T+4}, 2, v{T+1}")
        e(f"v_xor_b32 v{T+4}, v{T+2}, v{T+4}")
        e(f"v_lshlrev_b32 v{T+4}, 4, v{T+4}")
        e(f"v_lshl_or_b32 v{T+4}, v{T+1}, 9, v{T+4}")
        for x in range(4):
            e(f"v_xor_b32 v{V_OFFV+x}, {((x & 1) * 128) | ((x >> 1) << 12)}, v{T+4}")
        if a.noswz:
            e(f"v_lshlrev_b32 v{T+3}, 4, v{V_LANE}")
            for jj in range(8):
                e(f"v_add_u32 v{V_OFFK+jj}, {((jj >> 2) << 12)}, v{T+3}")
            for x in range(4):
                e(f"v_add_u32 v{V_OFFV+x}, {((x >> 1) << 12)}, v{T+3}")
        e(f"s_lshl_b32 s{S_OFF}, s{S_SPLIT}, 20")
        e(f"s_add_u32 s{S_OFF2}, s{S_OFF}, 8192")
        e(f"s_lshl_b32 s{S_T}, s{S_PAIR}, 22")
        e(f"s_lshl_b32 s{S_T+2}, s{S_PAIR}, 13")
        e(f"v_mov_b32 v{V_CONA}, {LDS_CONS}")
        e(f"s_mov_b32 s{S_SLOT}, 0")
        e(f"s_mov_b32 s{S_IT}, 0")
        e("s_waitcnt lgkmcnt(0)")
        self.srd_off(SRD_K, 6, 7, S_T, 4 << 20)
        self.srd_off(SRD_V, 8, 9, S_T, 4 << 20)
        soffs = [f"s{S_OFF}", f"s{S_OFF2}"]

        def m0_slot(base):
            def f(q):
                e(f"s_add_u32 m0, s{S_SLOT}, {base + q*4096}")
            return f

        def m0_abs(base):
            def f(q):
                e(f"s_mov_b32 m0, {base + q*4096}")
            return f

        def group(g):
            for p in range(g * Gp, (g + 1) * Gp):
                if p < 16:
                    self.piece("K", p, SRD_K, soffs, m0_slot(0))
                else:
                    self.piece("V", p - 16, SRD_V, soffs, m0_slot(16384))

        c("first groups of tile 0 go out immediately")
        assert R <= GPT
        for g in range(R):
            group(g)
        c("tree K/V for the split-3 workgroup (counted before group R completes: see below)")
        self.srd_off(SRD_TK, 10, 11, S_T + 2, 8192)
        self.srd_off(SRD_TV, 12, 13, S_T + 2, 8192)
        if a.stamps:
            self.srd(SRD_WS, 20, 21, 64 << 20)
        e(f"ds_write_b32 v{V_FLAGA}, v{V_ZERO}")
        e(f"s_cmp_lg_u32 s{S_SPLIT}, {99 if a.notree else 3}")
        e("s_cbranch_scc1 L_ld_notree")
        for j in range(8):
            self.piece("K", j, SRD_TK, ["0"], m0_abs(LDS_TREE))
        for j in range(8):
            self.piece("V", j, SRD_TV, ["0"], m0_abs(LDS_TREE + 8192))
        lab("L_ld_notree")
        e("s_waitcnt lgkmcnt(0)")
        e("s_barrier")
        self.stamp(1)
        e(f"v_mov_b32 v{V_F}, 0")
        c("rest of tile 0")

        def step(g, first_tile=False):
            e(f"s_waitcnt vmcnt({(R-1)*Gp})")
            e(f"v_add_u32 v{V_F}, 1, v{V_F}")
            e(f"ds_write_b32 v{V_FLAGA}, v{V_F}")
            group(g)

        for g in range(R, GPT):
            step(g)
        e(f"s_mov_b32 s{S_IT}, 1")
        def ld_loop(tag, Rw, last_tile, extra_first):
            lab(f"L_ld_loop{tag}")
            e(f"s_add_u32 s{S_OFF}, s{S_OFF}, 16384")
            e(f"s_add_u32 s{S_OFF2}, s{S_OFF2}, 16384")
            e(f"s_add_u32 s{S_SLOT}, s{S_SLOT}, 32768")
            e(f"s_and_b32 s{S_SLOT}, s{S_SLOT}, 0x1ffff")
            c("slot free? need min(consumed) + 3 >= tile index")
            e(f"ds_read_b128 v[{V_S}:{V_S+3}], v{V_CONA}")
            if not extra_first:
                e(f"s_waitcnt vmcnt({(Rw-1)*Gp})")
                e(f"v_add_u32 v{V_F}, 1, v{V_F}")
                e(f"ds_write_b32 v{V_FLAGA}, v{V_F}")
            lab(f"L_ld_chk{tag}")
            e("s_waitcnt lgkmcnt(0)")
            e(f"v_min_u32 v{V_S}, v{V_S}, v{V_S+1}")
            e(f"v_min3_u32 v{V_S}, v{V_S}, v{V_S+2}, v{V_S+3}")
            e("s_nop 0")
            e(f"v_readfirstlane_b32 s{S_T}, v{V_S}")
            e("s_nop 0")
            e(f"s_add_u32 s{S_T}, s{S_T}, 3")
            e(f"s_cmp_ge_u32 s{S_T}, s{S_IT}")
            e(f"s_cbranch_scc1 L_ld_free{tag}")
            if a.stamps:
                e(f"s_add_u32 s{S_T+9}, s{S_T+9}, 1")
            e("s_sleep 1")
            self.spin_guard()
            e(f"ds_read_b128 v[{V_S}:{V_S+3}], v{V_CONA}")
            e(f"s_branch L_ld_chk{tag}")
            lab(f"L_ld_free{tag}")
            if a.stamps:
                for ti, si in ((4, 1), (16, 2), (40, 4)):
                    l2 = self.newlab("pst")
                    e(f"s_cmp_lg_u32 s{S_IT}, {ti}")
                    e(f"s_cbranch_scc1 {l2}")
                    self.stamp(si)
                    lab(l2)
            group(0)
            for g in range(1, GPT):
                if g >= extra_first:
                    e(f"s_waitcnt vmcnt({(Rw-1)*Gp})")
                    e(f"v_add_u32 v{V_F}, 1, v{V_F}")
                    e(f"ds_write_b32 v{V_FLAGA}, v{V_F}")
                group(g)
            e(f"s_add_u32 s{S_IT}, s{S_IT}, 1")
            e(f"s_cmp_lt_u32 s{S_IT}, {last_tile}")
            e(f"s_cbranch_scc1 L_ld_loop{tag}")

        if a.endn:
            R2 = a.endr
            assert R < R2 <= R + GPT and (R2 - 1) * Gp <= 63 and R2 - 1 <= 3 * GPT
            ld_loop("A", R, NT - a.endn, 0)
            ld_loop("B", R2, NT - a.endn + 1, R2 - R)
            if a.endn > 1:
                ld_loop("C", R2, NT, 0)
            R = R2
        else:
            ld_loop("A", R, NT, 0)
        c("drain")
        for r in range(R - 1, -1, -1):
            e(f"s_waitcnt vmcnt({r*Gp})")
            e(f"v_add_u32 v{V_F}, 1, v{V_F}")
            e(f"ds_write_b32 v{V_FLAGA}, v{V_F}")
        self.stamp(3)
        self.stamp_store()
        e("s_endpgm")

        lab("L_consumer")
        c("================= consumer waves =================")
        e(f"s_sub_u32 s{S_CI}, s{S_WAVE}, 1")
        e(f"s_lshl_b32 s{S_T}, s{S_CI}, 2")
        e(f"s_add_u32 s{S_T}, s{S_T}, {LDS_CONS}")
        e(f"v_mov_b32 v{V_CONA}, s{S_T}")
        e(f"ds_write_b32 v{V_CONA}, v{V_ZERO}")
        e(f"s_lshl_b32 s{S_T+1}, s{S_PAIR}, 14")
        c("Q fragment offset: q*512 + h*16")
        e(f"v_lshlrev_b32 v{T+5}, 9, v{T+2}")
        e(f"v_lshl_or_b32 v{T+5}, v{T+1}, 4, v{T+5}")
        e("s_waitcnt lgkmcnt(0)")
        e("s_barrier")
        self.stamp(1)
        self.stamp(2)
        self.srd_off(SRD_Q, 4, 5, S_T + 1, 16384)
        self.srd(SRD_MSK, 14, 15, 4096)
        self.srd_off(SRD_OUT, 16, 17, S_T + 1, 16384)
        self.srd(SRD_WS, 20, 21, 64 << 20)
        self.srd(SRD_DBG, 18, 19, 256)
        for kk in range(0 if a.noq else 16):
            e(f"buffer_load_dwordx4 v[{V_Q+4*kk}:{V_Q+4*kk+3}], v{T+5}, s[{SRD_Q}:{SRD_Q+3}], 0 offen offset:{kk*32}")
        c("mask[b][t=q&15][4h..4h+3], [8+4h..]: byte off = b*512 + t*32 + h*8")
        e(f"v_and_b32 v{T+6}, 15, v{V_LANE}")
        e(f"v_lshlrev_b32 v{T+6}, 5, v{T+6}")
        e(f"v_lshl_or_b32 v{T+6}, v{T+1}, 3, v{T+6}")
        e(f"s_lshr_b32 s{S_T+4}, s{S_PAIR}, 3")
        e(f"s_lshl_b32 s{S_T+4}, s{S_T+4}, 9")
        e(f"buffer_load_dwordx2 v[{V_MSK}:{V_MSK+1}], v{T+6}, s[{SRD_MSK}:{SRD_MSK+3}], s{S_T+4} offen")
        e(f"buffer_load_dwordx2 v[{V_MSK+2}:{V_MSK+3}], v{T+6}, s[{SRD_MSK}:{SRD_MSK+3}], s{S_T+4} offen offset:16")
        c("LDS read bases")
        e(f"v_and_b32 v{T+3}, 15, v{T+2}")
        e(f"v_xor_b32 v{T+3}, v{T+3}, v{T+1}")
        e(f"v_lshlrev_b32 v{T+3}, 4, v{T+3}")
        e(f"v_lshl_or_b32 v{T+3}, v{T+2}, 9, v{T+3}")
        for ee in range(8):
            e(f"v_xor_b32 v{V_BK+ee}, {2*ee << 4}, v{T+3}")
        e(f"v_bfe_u32 v{T+3}, v{V_LANE}, 2, 2")
        e(f"v_lshl_add_u32 v{T+4}, v{T+1}, 2, v{T+3}")
        e(f"v_lshlrev_b32 v{T+4}, 9, v{T+4}")
        e(f"v_lshl_or_b32 v{T+4}, v{T+3}, 6, v{T+4}")
        e(f"v_bfe_u32 v{T+3}, v{V_LANE}, 4, 1")
        e(f"v_lshl_or_b32 v{T+4}, v{T+3}, 5, v{T+4}")
        e(f"v_and_b32 v{T+3}, 3, v{V_LANE}")
        e(f"v_lshl_or_b32 v{T+4}, v{T+3}, 3, v{T+4}")
        c("d-tiles 2c, 2c+1: xor (dt&3)<<6, add (dt>>2)*256 ; + 16384 (V half of slot)")
        e(f"s_and_b32 s{S_T}, s{S_CI}, 1")
        e(f"s_lshl_b32 s{S_T}, s{S_T}, 7")
        e(f"s_lshr_b32 s{S_T+1}, s{S_CI}, 1")
        e(f"s_lshl_b32 s{S_T+1}, s{S_T+1}, 8")
        e(f"s_add_u32 s{S_T+1}, s{S_T+1}, 16384")
        e(f"s_or_b32 s{S_T}, s{S_T}, s{S_T+1}")
        e(f"v_xor_b32 v{V_BV}, s{S_T}, v{T+4}")
        e(f"v_xor_b32 v{V_BV+1}, 64, v{V_BV}")
        e(f"s_mov_b32 s{S_C}, 0x{f32bits(CSCALE):08x}")
        e(f"s_mov_b32 s{S_CM}, 0x{f32bits(CMASK):08x}")
        e(f"s_mov_b32 s{S_IT}, 0")
        e(f"s_mov_b32 s{S_SLOT}, 0")
        e(f"s_mov_b32 s{S_LANDED}, 0")
        e(f"s_lshl_b32 s{S_CTR}, s{S_PAIR}, 2")
        e(f"s_add_u32 s{S_CTR}, s{S_CTR}, s{S_CI}")
        e(f"s_lshl_b32 s{S_CTR}, s{S_CTR}, 8")
        e(f"s_add_u32 s{S_CTR}, s{S_CTR}, {WS_CTR}")
        e(f"s_and_b32 s{S_CHK}, s2, 31")
        e(f"s_add_u32 s{S_CHK}, s{S_CHK}, 16")
        e(f"s_lshl_b32 s{S_T+5}, s{S_PAIR}, 2")

        if a.nocheck:
            e(f"s_mov_b32 s{S_CHK}, 1000")
        c("counter initialisation: consumer 0 of workgroup 0 claims d_debug[0] and zeroes all merge counters")
        e(f"s_or_b32 s{S_T}, s{S_CI}, s2")
        e(f"s_cmp_lg_u32 s{S_T}, 0")
        e("s_cbranch_scc1 L_noinit")
        self.claim_and_init("L_noinit", "L_noinit")
        lab("L_noinit")

        e(f"s_cmp_lg_u32 s{S_SPLIT}, {99 if a.notree else 3}")
        e("s_cbranch_scc1 L_notree")
        c("---- tree tile (16 keys, masked) ----")
        for ee in range(8):
            e(f"v_add_u32 v{V_AK+ee}, {LDS_TREE}, v{V_BK+ee}")
        for ee in range(2):
            e(f"v_add_u32 v{V_AV+ee}, {LDS_TREE + 8192 - 16384}, v{V_BV+ee}")
        e(f"s_mov_b32 s{S_NEED}, {a.ring+1}")
        self.poll(S_NEED)
        self.read_k(V_AK, 0)
        self.read_v(V_AV, [0], 0)
        e("s_waitcnt vmcnt(0)")
        for i in range(4):
            e(f"v_lshlrev_b32 v{V_MT+2*i}, 16, v{V_MSK+i}")
            e(f"v_and_b32 v{V_MT+2*i+1}, 0xffff0000, v{V_MSK+i}")
        for i in range(8):
            e(f"v_sub_f32 v{V_MT+i}, 1.0, v{V_MT+i}")
        for i in range(8):
            e(f"v_mul_f32 v{V_MT+i}, s{S_CM}, v{V_MT+i}")
        e("s_waitcnt lgkmcnt(0)")
        self.qk(False)
        e("s_nop 15")
        for i in range(8):
            e(f"v_fma_f32 v{S+i}, v{S+i}, s{S_C}, v{V_MT+i}")
        e(f"v_max3_f32 v{T}, v{S}, v{S+1}, v{S+2}")
        e(f"v_max3_f32 v{T+1}, v{S+3}, v{S+4}, v{S+5}")
        e(f"v_max3_f32 v{T}, v{T}, v{S+6}, v{S+7}")
        e(f"v_max_f32 v{T}, v{T}, v{T+1}")
        self.xhalf("v_max_f32", V_M, T, T + 1)
        for i in range(8):
            e(f"v_sub_f32 v{S+i}, v{S+i}, v{V_M}")
        for i in range(8):
            e(f"v_exp_f32 v{S+i}, v{S+i}")
        e("s_nop 0")
        e(f"v_add_f32 v{V_L}, v{S}, v{S+1}")
        for i in range(2, 8):
            e(f"v_add_f32 v{V_L}, v{V_L}, v{S+i}")
        for i in range(4):
            e(f"v_cvt_pk_bf16_f32 v{V_P+i}, v{S+2*i}, v{S+2*i+1}")
        e("s_nop 1")
        self.pv([0], first=True)
        e("s_branch L_loop")
        lab("L_notree")
        e(f"v_mov_b32 v{V_M}, 0xff800000")
        e(f"v_mov_b32 v{V_L}, 0")
        for i in range(32):
            e(f"v_mov_b32 v{V_O+i}, 0")
        e("s_waitcnt vmcnt(0)")

        self.L.append(".p2align 6")
        lab("L_loop")
        for ee in range(8):
            e(f"v_add_u32 v{V_AK+ee}, s{S_SLOT}, v{V_BK+ee}")
        for ee in range(2):
            e(f"v_add_u32 v{V_AV+ee}, s{S_SLOT}, v{V_BV+ee}")
        e(f"s_mul_i32 s{S_NEED}, s{S_IT}, {GPT}")
        e(f"s_add_u32 s{S_NEED}, s{S_NEED}, {GPT//2}")
        self.poll(S_NEED)
        if not a.noread:
            self.read_k(V_AK, 0)
        c("rare side jobs")
        e(f"s_cmp_eq_u32 s{S_IT}, {1000 if a.noend else NT-1}")
        e("s_cbranch_scc1 L_ticket")
        e(f"s_cmp_eq_u32 s{S_IT}, s{S_CHK}")
        e("s_cbranch_scc1 L_check")
        lab("L_side_done")
        if not a.nomfma:
            self.qk(True)
        e("s_nop 15")
        if not a.nosoft:
            self.softmax()
        e(f"s_add_u32 s{S_NEED}, s{S_NEED}, {GPT//2}")
        self.poll(S_NEED)
        if not a.noread:
            self.read_v(V_AV, [0, 1], 0)
        e(f"s_add_u32 s{S_IT}, s{S_IT}, 1")
        e(f"v_mov_b32 v{V_F}, s{S_IT}")
        e(f"s_add_u32 s{S_SLOT}, s{S_SLOT}, 32768")
        e(f"s_and_b32 s{S_SLOT}, s{S_SLOT}, 0x1ffff")
        e("s_waitcnt lgkmcnt(0)")
        e(f"ds_write_b32 v{V_CONA}, v{V_F}")
        if not a.nomfma:
            self.pv([0, 1])
        e(f"s_cmp_lt_u32 s{S_IT}, {NT}")
        e("s_cbranch_scc1 L_loop")
        self.stamp(3)

        if a.noend:
            e(f"s_mov_b32 s{S_T+9}, 0")
            self.stamp(4)
            e("s_branch L_fin")
        c("---- end of stream: merge the 4 splits ----")
        self.xhalf("v_add_f32", V_L, V_L, T)
        e(f"v_lshlrev_b32 v{T+2}, 4, v{V_LANE}")
        e(f"v_lshlrev_b32 v{T+4}, 3, v{V_LANE}")
        e(f"s_lshl_b32 s{S_T}, s{S_PAIR}, 4")
        e(f"s_add_u32 s{S_T}, s{S_T}, s{S_CI}")
        e("s_waitcnt vmcnt(0)")
        e(f"v_readfirstlane_b32 s{S_T+4}, v{V_TK}")
        e("s_nop 0")
        e(f"s_and_b32 s{S_T+6}, s{S_T+4}, 0xffff")
        e(f"s_cmp_eq_u32 s{S_T+6}, 3")
        e("s_cbranch_scc1 L_last")
        c("not last: publish partial (write-through), then bump the done count")
        e(f"s_lshl_b32 s{S_T+1}, s{S_SPLIT}, 2")
        e(f"s_add_u32 s{S_T}, s{S_T}, s{S_T+1}")
        e(f"s_lshl_b32 s{S_T+1}, s{S_T}, 13")
        e(f"s_add_u32 s{S_T+2}, s{S_T+1}, 4096")
        e(f"s_lshl_b32 s{S_T+3}, s{S_T}, 9")
        e(f"s_add_u32 s{S_T+3}, s{S_T+3}, {WS_STAT}")
        e("s_nop 7")
        for rq in range(0 if a.nopub else 8):
            so = S_T + 1 + (rq >> 2)
            e(f"buffer_store_dwordx4 v[{V_O+4*rq}:{V_O+4*rq+3}], v{T+2}, s[{SRD_WS}:{SRD_WS+3}], s{so} offen offset:{(rq & 3)*1024}{a.pubpol}")
        e(f"buffer_store_dwordx2 v[{V_M}:{V_M+1}], v{T+4}, s[{SRD_WS}:{SRD_WS+3}], s{S_T+3} offen sc1")
        e(f"v_mov_b32 v{V_TK}, 0x10000")
        e("s_waitcnt vmcnt(0)")
        e("s_mov_b64 exec, 1")
        e(f"buffer_atomic_add v{V_TK}, v{V_ZERO}, s[{SRD_WS}:{SRD_WS+3}], s{S_CTR} offen{a.asc}")
        e("s_mov_b64 exec, -1")
        if a.stamps:
            self.stamp(4)
            e(f"s_mov_b32 s{S_T+9}, 0")
            e("s_branch L_fin")
        else:
            e("s_endpgm")

        lab("L_last")
        c("last arriver: wait until the other three have published")
        lab("L_wait_done")
        e(f"s_lshr_b32 s{S_T+6}, s{S_T+4}, 16")
        e(f"s_cmp_eq_u32 s{S_T+6}, 3")
        e("s_cbranch_scc1 L_all_done")
        e("s_mov_b64 exec, 1")
        e(f"buffer_load_dword v{V_TK}, v{V_ZERO}, s[{SRD_WS}:{SRD_WS+3}], s{S_CTR} offen sc1")
        e("s_mov_b64 exec, -1")
        e("s_waitcnt vmcnt(0)")
        e(f"v_readfirstlane_b32 s{S_T+4}, v{V_TK}")
        self.spin_guard()
        e("s_branch L_wait_done")
        lab("L_all_done")
        self.stamp(4)
        c("load partials of splits s^1, s^2, s^3 -> O regs V_K+32*(i-1), stats V_S+2*i")
        for i in range(1, 4):
            e(f"s_xor_b32 s{S_T+1}, s{S_SPLIT}, {i}")
            e(f"s_lshl_b32 s{S_T+1}, s{S_T+1}, 2")
            e(f"s_add_u32 s{S_T+1}, s{S_T+1}, s{S_T}")
            e(f"s_lshl_b32 s{S_T+3}, s{S_T+1}, 9")
            e(f"s_add_u32 s{S_T+3}, s{S_T+3}, {WS_STAT}")
            e(f"s_lshl_b32 s{S_T+1}, s{S_T+1}, 13")
            e(f"s_add_u32 s{S_T+2}, s{S_T+1}, 4096")
            e(f"buffer_load_dwordx2 v[{S+2*i}:{S+2*i+1}], v{T+4}, s[{SRD_WS}:{SRD_WS+3}], s{S_T+3} offen sc1")
            for rq in range(8):
                so = S_T + 1 + (rq >> 2)
                r = V_K + 32 * (i - 1) + 4 * rq
                e(f"buffer_load_dwordx4 v[{r}:{r+3}], v{T+2}, s[{SRD_WS}:{SRD_WS+3}], s{so} offen offset:{(rq & 3)*1024} sc1")
        e(f"v_mov_b32 v{S}, v{V_M}")
        e(f"v_mov_b32 v{S+1}, v{V_L}")
        c("output address: q = l&31, d = 64*c + 8*g8 + 4*h")
        e(f"v_and_b32 v{T+5}, 31, v{V_LANE}")
        e(f"v_lshlrev_b32 v{T+5}, 9, v{T+5}")
        e(f"v_lshrrev_b32 v{T+6}, 5, v{V_LANE}")
        e(f"v_lshl_or_b32 v{T+5}, v{T+6}, 3, v{T+5}")
        e(f"s_lshl_b32 s{S_T+7}, s{S_CI}, 7")
        e("s_waitcnt vmcnt(0)")
        e(f"v_max_f32 v{T}, v{S}, v{S+2}")
        e(f"v_max3_f32 v{V_M}, v{T}, v{S+4}, v{S+6}")
        for i in range(4):
            e(f"v_sub_f32 v{S+8+i}, v{S+2*i}, v{V_M}")
        for i in range(4):
            e(f"v_exp_f32 v{S+8+i}, v{S+8+i}")
        e("s_nop 0")
        for i in range(4):
            e(f"v_mul_f32 v{S+12+i}, v{S+8+i}, v{S+2*i+1}")
        e(f"v_add_f32 v{S+12}, v{S+12}, v{S+13}")
        e(f"v_add_f32 v{S+14}, v{S+14}, v{S+15}")
        e(f"v_add_f32 v{V_L}, v{S+12}, v{S+14}")
        e(f"v_rcp_f32 v{V_ALPHA}, v{V_L}")
        src = [V_O, V_K, V_K + 32, V_K + 64]
        for i in range(4):
            for r in range(32):
                e(f"v_mul_f32 v{src[i]+r}, v{src[i]+r}, v{S+8+i}")
        for r in range(32):
            e(f"v_add_f32 v{V_O+r}, v{V_O+r}, v{src[1]+r}")
            e(f"v_add_f32 v{src[2]+r}, v{src[2]+r}, v{src[3]+r}")
        for r in range(32):
            e(f"v_add_f32 v{V_O+r}, v{V_O+r}, v{src[2]+r}")
        for r in range(32):
            e(f"v_mul_f32 v{V_O+r}, v{V_O+r}, v{V_ALPHA}")
        for i in range(16):
            e(f"v_cvt_pk_bf16_f32 v{V_K+i}, v{V_O+2*i}, v{V_O+2*i+1}")
        for g8 in range(8):
            r = V_K + 2 * g8
            e(f"buffer_store_dwordx2 v[{r}:{r+1}], v{T+5}, s[{SRD_OUT}:{SRD_OUT+3}], s{S_T+7} offen offset:{g8*16}")
        if a.stamps:
            e("s_waitcnt vmcnt(0)")
            e(f"s_mov_b32 s{S_T+9}, 1")
            lab("L_fin")
            self.stamp_store()
        lab("L_end")
        e("s_endpgm")

        c("---- side jobs (out of line) ----")
        lab("L_ticket")
        e(f"v_mov_b32 v{V_TK}, 1")
        e("s_mov_b64 exec, 1")
        e(f"buffer_atomic_add v{V_TK}, v{V_ZERO}, s[{SRD_WS}:{SRD_WS+3}], s{S_CTR} offen sc0{a.asc}")
        e("s_mov_b64 exec, -1")
        e("s_branch L_side_done")
        lab("L_check")
        c("consumer 0 makes sure the pair's counters have been zeroed (ring dependency covers the others)")
        e(f"s_cmp_lg_u32 s{S_CI}, 0")
        e("s_cbranch_scc1 L_side_done")
        e("s_mov_b64 exec, 1")
        e(f"buffer_load_dword v{V_TK}, v{V_ZERO}, s[{SRD_DBG}:{SRD_DBG+3}], 0 offen sc1")
        e("s_mov_b64 exec, -1")
        e("s_waitcnt vmcnt(0)")
        e(f"v_readfirstlane_b32 s{S_T}, v{V_TK}")
        e("s_nop 0")
        e(f"s_cmp_eq_u32 s{S_T}, 3")
        e("s_cbranch_scc1 L_side_done")
        c("rare: not ready yet. Claim the job if nobody has, else wait for whoever did.")
        lab("L_check_loop")
        self.claim_and_init("L_side_done", "L_check_wait")
        lab("L_check_wait")
        e("s_sleep 8")
        self.spin_guard()
        e("s_branch L_check_loop")

        out += "\n".join(self.L) + "\n"
        out += f""".section .rodata,"a"
.p2align 6
.amdhsa_kernel {K}
  .amdhsa_next_free_vgpr {NVGPR}
  .amdhsa_next_free_sgpr 102
  .amdhsa_accum_offset {NVGPR}
  .amdhsa_group_segment_fixed_size 0
  .amdhsa_kernarg_size 72
  .amdhsa_user_sgpr_count 2
  .amdhsa_user_sgpr_kernarg_segment_ptr 1
  .amdhsa_system_sgpr_workgroup_id_x 1
.end_amdhsa_kernel
"""
        return out


def main():
    ap = argparse.ArgumentParser()
    ap.add_argument("-o", default=f"cdna_kernels/{NAME}.s")
    ap.add_argument("--pol", default="nt")
    ap.add_argument("--stamps", type=int, default=0)
    ap.add_argument("--group", type=int, default=8)
    ap.add_argument("--ring", type=int, default=3)
    ap.add_argument("--sleep", type=int, default=1)
    ap.add_argument("--spin", type=int, default=2000000)
    ap.add_argument("--noswz", type=int, default=0)
    ap.add_argument("--noinit", type=int, default=0)
    ap.add_argument("--noq", type=int, default=0)
    ap.add_argument("--nopub", type=int, default=0)
    ap.add_argument("--noend", type=int, default=0)
    ap.add_argument("--pubpol", default=" sc1")
    ap.add_argument("--endn", type=int, default=0)
    ap.add_argument("--endr", type=int, default=0)
    ap.add_argument("--midop", default="")
    ap.add_argument("--nocheck", type=int, default=0)
    ap.add_argument("--noread", type=int, default=0)
    ap.add_argument("--notree", type=int, default=0)
    ap.add_argument("--asc", default="")
    ap.add_argument("--nomfma", type=int, default=0)
    ap.add_argument("--nosoft", type=int, default=0)
    args = ap.parse_args()
    args.pol = (" " + args.pol.replace(",", " ")) if args.pol else ""
    open(args.o, "w").write(G(args).gen())


if __name__ == "__main__":
    main()
```

```python
import argparse

from gen import HEADER, NAME, f32bits, CSCALE, CMASK

V_LANE = 1
V_T = 2
V_M = 10
V_L = 11
V_ALPHA = 12
V_ZERO = 13
V_FLAGA = 14
V_CONA = 15
V_BK = 16
V_BV = 24
V_AK = 28
V_AV = 36
V_TK = 38
V_F = 39
V_P = 40
V_S = 48
V_O = 64
V_V = 96
V_K = 112
V_Q = 176
V_MSK = 240
V_MT = 244
V_A8 = 252
V_A16 = 253
V_AOUT = 254
NVGPR = 256

S_SPLIT = 3
S_WAVE = 22
S_PAIR = 23
SRD_K = 24
SRD_V = 28
SRD_Q = 32
SRD_TK = 36
SRD_MSK = 44
SRD_OUT = 48
SRD_WS = 52
SRD_DBG = 56
S_OFF = 60
S_OFF2 = 61
S_IT = 62
S_C = 63
S_CM = 64
S_SLOT = 65
S_CI = 66
S_NEED = 67
S_LANDED = 68
S_CTR = 69
S_CHK = 70
S_SPIN = 71
S_T = 72
S_TKT = 82
S_EARLY = 83
S_ST = 84

NT = 64
LDS_Q = 3 * 32768
LDS_TREE = 3 * 32768 + 16384
LDS_FLAG = 131072
LDS_TOTAL = LDS_FLAG + 64

WS_STAT = 8 << 20
WS_CTR = 12 << 20
WS_STAMP = 32 << 20


class G:
    def __init__(self, args):
        self.a = args
        self.L = []
        self.uid = 0

    def e(self, s):
        self.L.append("    " + s)

    def lab(self, s):
        self.L.append(s + ":")

    def c(self, s):
        self.L.append("    ; " + s)

    def newlab(self, base):
        self.uid += 1
        return f"L_{base}_{self.uid}"

    def srd(self, d, lo, hi, nbytes):
        self.e(f"s_mov_b32 s{d}, s{lo}")
        self.e(f"s_and_b32 s{d+1}, s{hi}, 0xffff")
        self.e(f"s_mov_b32 s{d+2}, {nbytes}")
        self.e(f"s_mov_b32 s{d+3}, 0x00020000")

    def srd_off(self, d, lo, hi, soff, nbytes):
        self.e(f"s_add_u32 s{d}, s{lo}, s{soff}")
        self.e(f"s_addc_u32 s{d+1}, s{hi}, 0")
        self.e(f"s_and_b32 s{d+1}, s{d+1}, 0xffff")
        self.e(f"s_mov_b32 s{d+2}, {nbytes}")
        self.e(f"s_mov_b32 s{d+3}, 0x00020000")

    def stamp(self, i):
        if not self.a.stamps:
            return
        self.e(f"s_memrealtime s[{S_ST+2*i}:{S_ST+2*i+1}]")
        self.e("s_waitcnt lgkmcnt(0)")

    def stamp_store(self):
        if not self.a.stamps:
            return
        e = self.e
        e("s_memtime s[98:99]")
        self.stamp(5)
        e(f"s_getreg_b32 s{S_T}, hwreg(HW_REG_XCC_ID)")
        e(f"s_mul_i32 s{S_T+2}, s2, 5")
        e(f"s_add_u32 s{S_T+2}, s{S_T+2}, s{S_WAVE}")
        e(f"s_lshl_b32 s{S_T+2}, s{S_T+2}, 6")
        e(f"s_add_u32 s{S_T+2}, s{S_T+2}, {WS_STAMP}")
        for i in range(6):
            e(f"v_mov_b32 v{V_S+i}, s{S_ST+2*i}")
        e(f"v_mov_b32 v{V_S+6}, s{S_T}")
        e(f"v_mov_b32 v{V_S+7}, s{S_T+9}")
        e(f"v_mov_b32 v{V_S+8}, s96")
        e(f"v_mov_b32 v{V_S+9}, s98")
        e(f"v_mov_b32 v{V_S+10}, 0")
        e(f"v_mov_b32 v{V_S+11}, s{S_SPIN}")
        e(f"v_mov_b32 v{V_T}, 0")
        e("s_mov_b64 exec, 1")
        for q in range(3):
            e(f"buffer_store_dwordx4 v[{V_S+4*q}:{V_S+4*q+3}], v{V_T}, s[{SRD_WS}:{SRD_WS+3}], s{S_T+2} offen offset:{16*q}")
        e("s_mov_b64 exec, -1")

    def spin_guard(self):
        self.e(f"s_sub_u32 s{S_SPIN}, s{S_SPIN}, 1")
        self.e("s_cbranch_scc1 L_end")

    def dma_offsets(self, dk, dv):
        e = self.e
        T = V_T
        if dk is not None:
            e(f"v_xor_b32 v{T+3}, v{T+2}, v{T+1}")
            e(f"v_lshlrev_b32 v{T+3}, 4, v{T+3}")
            e(f"v_lshl_or_b32 v{T+3}, v{T+1}, 9, v{T+3}")
            for jj in range(8):
                e(f"v_xor_b32 v{dk+jj}, {(2*jj << 4) | ((jj >> 2) << 12)}, v{T+3}")
        if dv is not None:
            e(f"v_lshlrev_b32 v{T+4}, 2, v{T+1}")
            e(f"v_xor_b32 v{T+4}, v{T+2}, v{T+4}")
            e(f"v_lshlrev_b32 v{T+4}, 4, v{T+4}")
            e(f"v_lshl_or_b32 v{T+4}, v{T+1}, 9, v{T+4}")
            for x in range(4):
                e(f"v_xor_b32 v{dv+x}, {((x & 1) * 128) | ((x >> 1) << 12)}, v{T+4}")

    def piece(self, kind, j, srd, soffs, m0, vbase, pol):
        if j % 4 == 0:
            m0(j >> 2)
            self.e("s_nop 0")
        imm = (j & 3) * 1024
        if kind == "K":
            vo = vbase + (j & 7)
        else:
            vo = vbase + (j & 1) + 2 * ((j >> 2) & 1)
        self.e(f"buffer_load_dwordx4 v{vo}, s[{srd}:{srd+3}], {soffs[j >> 3]} offen offset:{imm}{pol} lds")

    def claim_and_init(self, l_ready, l_busy):
        e = self.e
        T = V_T
        e(f"v_mov_b32 v{T+6}, 1")
        e(f"v_mov_b32 v{T+7}, 0")
        e("s_mov_b64 exec, 1")
        e(f"buffer_atomic_cmpswap v[{T+6}:{T+7}], v{V_ZERO}, s[{SRD_DBG}:{SRD_DBG+3}], 0 offen sc0")
        e("s_mov_b64 exec, -1")
        e("s_waitcnt vmcnt(0)")
        e(f"v_readfirstlane_b32 s{S_T}, v{T+6}")
        e("s_nop 0")
        e(f"s_cmp_eq_u32 s{S_T}, 3")
        e(f"s_cbranch_scc1 {l_ready}")
        e(f"s_cmp_lg_u32 s{S_T}, 0")
        e(f"s_cbranch_scc1 {l_busy}")
        e(f"v_lshlrev_b32 v{T+6}, 8, v{V_LANE}")
        for i in range(4):
            e(f"s_mov_b32 s{S_T}, {WS_CTR + i*16384}")
            e(f"buffer_store_dword v{V_ZERO}, v{T+6}, s[{SRD_WS}:{SRD_WS+3}], s{S_T} offen sc1")
        e("s_waitcnt vmcnt(0)")
        e(f"v_mov_b32 v{T+6}, 3")
        e("s_mov_b64 exec, 1")
        e(f"buffer_atomic_swap v{T+6}, v{V_ZERO}, s[{SRD_DBG}:{SRD_DBG+3}], 0 offen")
        e("s_mov_b64 exec, -1")
        e(f"s_branch {l_ready}")

    def poll(self, need, sreg=S_LANDED, off=0, precheck=True):
        e = self.e
        lp, go = self.newlab("poll"), self.newlab("go")
        if precheck:
            e(f"s_cmp_ge_u32 s{sreg}, {need}")
            e(f"s_cbranch_scc1 {go}")
        self.lab(lp)
        e(f"ds_read_b32 v{V_F}, v{V_FLAGA} offset:{off}")
        e("s_waitcnt lgkmcnt(0)")
        e(f"v_readfirstlane_b32 s{sreg}, v{V_F}")
        e("s_nop 0")
        e(f"s_cmp_ge_u32 s{sreg}, {need}")
        e(f"s_cbranch_scc1 {go}")
        if self.a.sleep:
            e(f"s_sleep {self.a.sleep}")
        self.spin_guard()
        e(f"s_branch {lp}")
        self.lab(go)

    def read_k(self, base, dst=V_K):
        for kk in range(16):
            off = (kk >> 3) * 256
            self.e(f"ds_read_b128 v[{dst+4*kk}:{dst+4*kk+3}], v{base + (kk & 7)} offset:{off}")

    def read_v(self, base, kss):
        for ks in kss:
            for dtl in range(2):
                for jhi in range(2):
                    off = (16 * ks + 8 * jhi) * 512
                    r = V_V + 8 * ks + 4 * dtl + 2 * jhi
                    self.e(f"ds_read_b64_tr_b16 v[{r}:{r+1}], v{base + dtl} offset:{off}")

    def qk(self, counted):
        for kk in range(16):
            if counted:
                self.e(f"s_waitcnt lgkmcnt({15 - kk})")
            cin = "0" if kk == 0 else f"v[{V_S}:{V_S+15}]"
            self.e(f"v_mfma_f32_32x32x16_bf16 v[{V_S}:{V_S+15}], v[{V_K+4*kk}:{V_K+4*kk+3}], "
                   f"v[{V_Q+4*kk}:{V_Q+4*kk+3}], {cin}")

    def pv(self, kss, first=False):
        for ks in kss:
            for dtl in range(2):
                o = V_O + 16 * dtl
                r = V_V + 8 * ks + 4 * dtl
                cin = "0" if first else f"v[{o}:{o+15}]"
                self.e(f"v_mfma_f32_32x32x16_bf16 v[{o}:{o+15}], v[{r}:{r+3}], v[{V_P+4*ks}:{V_P+4*ks+3}], {cin}")

    def xhalf(self, op, dst, a, b):
        self.e(f"v_mov_b32 v{b}, v{a}")
        self.e("s_nop 1")
        self.e(f"v_permlane32_swap_b32 v{a}, v{b}")
        self.e("s_nop 1")
        self.e(f"{op} v{dst}, v{a}, v{b}")

    def pkmul(self, r, f):
        self.e(f"v_pk_mul_f32 v[{r}:{r+1}], v[{r}:{r+1}], v[{f}:{f+1}] op_sel_hi:[1,0]")

    def softmax(self):
        e = self.e
        S, T = V_S, V_T
        e(f"v_max3_f32 v{T}, v{S}, v{S+1}, v{S+2}")
        e(f"v_max3_f32 v{T+1}, v{S+3}, v{S+4}, v{S+5}")
        e(f"v_max3_f32 v{T+2}, v{S+6}, v{S+7}, v{S+8}")
        e(f"v_max3_f32 v{T+3}, v{S+9}, v{S+10}, v{S+11}")
        e(f"v_max3_f32 v{T}, v{T}, v{S+12}, v{S+13}")
        e(f"v_max3_f32 v{T+1}, v{T+1}, v{S+14}, v{S+15}")
        e(f"v_max3_f32 v{T}, v{T}, v{T+1}, v{T+2}")
        e(f"v_max_f32 v{T}, v{T}, v{T+3}")
        self.xhalf("v_max_f32", T, T, T + 1)
        e(f"v_mul_f32 v{T}, s{S_C}, v{T}")
        e(f"v_max_f32 v{T}, v{T}, v{V_M}")
        e(f"v_sub_f32 v{T+1}, v{V_M}, v{T}")
        e(f"v_mov_b32 v{V_M}, v{T}")
        e(f"v_exp_f32 v{V_ALPHA}, v{T+1}")
        for i in range(16):
            e(f"v_fma_f32 v{S+i}, v{S+i}, s{S_C}, -v{V_M}")
        for i in range(16):
            e(f"v_exp_f32 v{S+i}, v{S+i}")
        for i in range(0, 32, 2):
            self.pkmul(V_O + i, V_ALPHA)
        for i in range(8):
            e(f"v_cvt_pk_bf16_f32 v{V_P+i}, v{S+2*i}, v{S+2*i+1}")
        e(f"v_add_f32 v{T}, v{S}, v{S+1}")
        e(f"v_add_f32 v{T+1}, v{S+2}, v{S+3}")
        for i in range(4, 16, 2):
            e(f"v_add_f32 v{T}, v{T}, v{S+i}")
            e(f"v_add_f32 v{T+1}, v{T+1}, v{S+i+1}")
        e(f"v_add_f32 v{T}, v{T}, v{T+1}")
        e(f"v_fma_f32 v{V_L}, v{V_L}, v{V_ALPHA}, v{T}")

    def gen(self):
        a = self.a
        e, lab, c = self.e, self.lab, self.c
        T = V_T
        S = V_S
        Gp, R = a.group, a.ring
        GPT = 32 // Gp
        K = NAME + "_kernel"
        out = HEADER + f"; @launch grid=(256,1,1) block=(320,1,1) lds={LDS_TOTAL}\n"
        out += '.amdgcn_target "amdgcn-amd-amdhsa--gfx950"\n.text\n'
        out += f".globl {K}\n.p2align 8\n.type {K},@function\n{K}:\n"

        e("s_cmp_ge_u32 s2, 256")
        e("s_cbranch_scc1 L_end")
        if a.stamps:
            e("s_memtime s[96:97]")
        self.stamp(0)
        e("s_load_dwordx16 s[4:19], s[0:1], 0")
        e("s_load_dwordx2 s[20:21], s[0:1], 64")
        e(f"v_lshrrev_b32 v{T}, 6, v0")
        e(f"v_and_b32 v{V_LANE}, 63, v0")
        e(f"v_readfirstlane_b32 s{S_WAVE}, v{T}")
        e(f"v_lshrrev_b32 v{T+1}, 5, v{V_LANE}")
        e(f"v_and_b32 v{T+2}, 31, v{V_LANE}")
        e(f"s_and_b32 s{S_PAIR}, s2, 63")
        e(f"s_lshr_b32 s{S_SPLIT}, s2, 6")
        e(f"v_mov_b32 v{V_FLAGA}, {LDS_FLAG}")
        e(f"v_mov_b32 v{V_ZERO}, 0")
        e(f"s_mov_b32 s{S_SPIN}, {a.spin}")
        if a.stamps:
            e(f"s_mov_b32 s{S_T+9}, 0")
        e(f"s_cmp_lg_u32 s{S_WAVE}, 0")
        e("s_cbranch_scc1 L_consumer")

        c("================= loader wave =================")
        e("s_setprio 3")
        self.dma_offsets(V_BK, V_BV)
        e(f"s_lshl_b32 s{S_OFF}, s{S_SPLIT}, 20")
        e(f"s_add_u32 s{S_OFF2}, s{S_OFF}, 8192")
        e(f"s_lshl_b32 s{S_T}, s{S_PAIR}, 22")
        e(f"s_mov_b32 s{S_SLOT}, 0")
        e("s_waitcnt lgkmcnt(0)")
        self.srd_off(SRD_K, 6, 7, S_T, 4 << 20)
        self.srd_off(SRD_V, 8, 9, S_T, 4 << 20)
        soffs = [f"s{S_OFF}", f"s{S_OFF2}"]

        def m0_slot(base):
            def f(q):
                e(f"s_add_u32 m0, s{S_SLOT}, {base + q*4096}")
            return f

        def m0_abs(base):
            def f(q):
                e(f"s_mov_b32 m0, {base + q*4096}")
            return f

        def group(g):
            for p in range(g * Gp, (g + 1) * Gp):
                if p < 16:
                    self.piece("K", p, SRD_K, soffs, m0_slot(0), V_BK, a.pol)
                else:
                    self.piece("V", p - 16, SRD_V, soffs, m0_slot(16384), V_BV, a.pol)

        def publish():
            e(f"s_waitcnt vmcnt({(R-1)*Gp})")
            e(f"v_add_u32 v{V_F}, 1, v{V_F}")
            e(f"ds_write_b32 v{V_FLAGA}, v{V_F}")

        assert R <= GPT
        for g in range(R):
            group(g)
        if a.stamps:
            self.srd(SRD_WS, 20, 21, 64 << 20)
        e(f"ds_write_b32 v{V_FLAGA}, v{V_ZERO}")
        e(f"ds_write_b32 v{V_FLAGA}, v{V_ZERO} offset:4")
        e(f"v_mov_b32 v{V_F}, 0")
        e("s_waitcnt lgkmcnt(0)")
        e("s_barrier")
        for g in range(R, GPT):
            publish()
            group(g)
        e(f"s_mov_b32 s{S_IT}, 1")
        lab("L_ld_loop")
        e(f"s_add_u32 s{S_OFF}, s{S_OFF}, 16384")
        e(f"s_add_u32 s{S_OFF2}, s{S_OFF2}, 16384")
        e(f"s_add_u32 s{S_SLOT}, s{S_SLOT}, 32768")
        e(f"s_and_b32 s{S_SLOT}, s{S_SLOT}, 0x1ffff")
        c("slot free?  consumed = 1 after Q/tree were read, t+2 after tile t; need min + 2 >= tile index")
        e(f"ds_read_b128 v[{V_S}:{V_S+3}], v{V_FLAGA} offset:16")
        publish()
        lab("L_ld_chk")
        e("s_waitcnt lgkmcnt(0)")
        e(f"v_min_u32 v{V_S}, v{V_S}, v{V_S+1}")
        e(f"v_min3_u32 v{V_S}, v{V_S}, v{V_S+2}, v{V_S+3}")
        e("s_nop 0")
        e(f"v_readfirstlane_b32 s{S_T}, v{V_S}")
        e("s_nop 0")
        e(f"s_add_u32 s{S_T}, s{S_T}, 2")
        e(f"s_cmp_ge_u32 s{S_T}, s{S_IT}")
        e("s_cbranch_scc1 L_ld_free")
        if a.stamps:
            e(f"s_add_u32 s{S_T+9}, s{S_T+9}, 1")
        e("s_sleep 1")
        self.spin_guard()
        e(f"ds_read_b128 v[{V_S}:{V_S+3}], v{V_FLAGA} offset:16")
        e("s_branch L_ld_chk")
        lab("L_ld_free")
        if a.stamps:
            for ti, si in ((4, 1), (16, 2), (40, 4)):
                l2 = self.newlab("pst")
                e(f"s_cmp_lg_u32 s{S_IT}, {ti}")
                e(f"s_cbranch_scc1 {l2}")
                self.stamp(si)
                lab(l2)
        group(0)
        for g in range(1, GPT):
            publish()
            group(g)
        e(f"s_add_u32 s{S_IT}, s{S_IT}, 1")
        e(f"s_cmp_lt_u32 s{S_IT}, {NT}")
        e("s_cbranch_scc1 L_ld_loop")
        c("drain")
        for r in range(R - 1, -1, -1):
            e(f"s_waitcnt vmcnt({r*Gp})")
            e(f"v_add_u32 v{V_F}, 1, v{V_F}")
            e(f"ds_write_b32 v{V_FLAGA}, v{V_F}")
        self.stamp(3)
        self.stamp_store()
        e("s_endpgm")

        lab("L_consumer")
        c("================= consumer waves =================")
        e(f"s_sub_u32 s{S_CI}, s{S_WAVE}, 1")
        e(f"s_lshl_b32 s{S_T}, s{S_CI}, 2")
        e(f"s_add_u32 s{S_T}, s{S_T}, {LDS_FLAG + 16}")
        e(f"v_mov_b32 v{V_CONA}, s{S_T}")
        e(f"ds_write_b32 v{V_CONA}, v{V_ZERO}")
        c("DMA source offsets (temporarily in the K / V fragment registers)")
        self.dma_offsets(V_K, V_K + 8)
        e(f"s_lshl_b32 s{S_T+1}, s{S_PAIR}, 14")
        e(f"s_lshl_b32 s{S_T+2}, s{S_PAIR}, 13")
        c("Q pieces 4c..4c+3: source offsets of pieces (4c+i)&7, soffset (c>>1)*8192, LDS_Q + c*4096")
        e(f"s_and_b32 s{S_T+3}, s{S_CI}, 1")
        e(f"s_mul_i32 s{S_T+3}, s{S_T+3}, {128 | 4096}")
        for i in range(4):
            e(f"v_xor_b32 v{V_K+12+i}, s{S_T+3}, v{V_K+i}")
        e(f"s_lshr_b32 s{S_T+4}, s{S_CI}, 1")
        e(f"s_lshl_b32 s{S_T+4}, s{S_T+4}, 13")
        e(f"s_lshl_b32 s{S_T+5}, s{S_CI}, 12")
        e("s_waitcnt lgkmcnt(0)")
        self.srd_off(SRD_Q, 4, 5, S_T + 1, 16384)
        e(f"s_add_u32 m0, s{S_T+5}, {LDS_Q}")
        e("s_nop 0")
        for i in range(4):
            e(f"buffer_load_dwordx4 v{V_K+12+i}, s[{SRD_Q}:{SRD_Q+3}], s{S_T+4} offen offset:{i*1024} lds")
        e(f"s_cmp_lg_u32 s{S_SPLIT}, 3")
        e("s_cbranch_scc1 L_c_notree0")
        c("split 3: consumer 0 stages tree K, consumer 1 tree V; everyone loads its mask words")
        self.srd(SRD_MSK, 14, 15, 4096)
        e(f"v_and_b32 v{T+6}, 15, v{V_LANE}")
        e(f"v_lshlrev_b32 v{T+6}, 5, v{T+6}")
        e(f"v_lshl_or_b32 v{T+6}, v{T+1}, 3, v{T+6}")
        e(f"s_lshr_b32 s{S_T+4}, s{S_PAIR}, 3")
        e(f"s_lshl_b32 s{S_T+4}, s{S_T+4}, 9")
        e(f"buffer_load_dwordx2 v[{V_MSK}:{V_MSK+1}], v{T+6}, s[{SRD_MSK}:{SRD_MSK+3}], s{S_T+4} offen")
        e(f"buffer_load_dwordx2 v[{V_MSK+2}:{V_MSK+3}], v{T+6}, s[{SRD_MSK}:{SRD_MSK+3}], s{S_T+4} offen offset:16")
        e(f"s_cmp_lg_u32 s{S_CI}, 0")
        e("s_cbranch_scc1 L_c_tk_done")
        self.srd_off(SRD_TK, 10, 11, S_T + 2, 8192)
        for j in range(8):
            self.piece("K", j, SRD_TK, ["0"], m0_abs(LDS_TREE), V_K, "")
        lab("L_c_tk_done")
        e(f"s_cmp_lg_u32 s{S_CI}, 1")
        e("s_cbranch_scc1 L_c_notree0")
        self.srd_off(SRD_TK, 12, 13, S_T + 2, 8192)
        for j in range(8):
            self.piece("V", j, SRD_TK, ["0"], m0_abs(LDS_TREE + 8192), V_K + 8, "")
        lab("L_c_notree0")
        e("s_barrier")
        self.stamp(1)
        self.stamp(2)
        self.srd_off(SRD_OUT, 16, 17, S_T + 1, 16384)
        self.srd(SRD_WS, 20, 21, 64 << 20)
        self.srd(SRD_DBG, 18, 19, 256)
        c("LDS read bases")
        e(f"v_and_b32 v{T+3}, 15, v{T+2}")
        e(f"v_xor_b32 v{T+3}, v{T+3}, v{T+1}")
        e(f"v_lshlrev_b32 v{T+3}, 4, v{T+3}")
        e(f"v_lshl_or_b32 v{T+3}, v{T+2}, 9, v{T+3}")
        for ee in range(8):
            e(f"v_xor_b32 v{V_BK+ee}, {2*ee << 4}, v{T+3}")
        e(f"v_bfe_u32 v{T+3}, v{V_LANE}, 2, 2")
        e(f"v_lshl_add_u32 v{T+4}, v{T+1}, 2, v{T+3}")
        e(f"v_lshlrev_b32 v{T+4}, 9, v{T+4}")
        e(f"v_lshl_or_b32 v{T+4}, v{T+3}, 6, v{T+4}")
        e(f"v_bfe_u32 v{T+3}, v{V_LANE}, 4, 1")
        e(f"v_lshl_or_b32 v{T+4}, v{T+3}, 5, v{T+4}")
        e(f"v_and_b32 v{T+3}, 3, v{V_LANE}")
        e(f"v_lshl_or_b32 v{T+4}, v{T+3}, 3, v{T+4}")
        c("d-tiles 2c, 2c+1: xor (dt&3)<<6, + (dt>>2)*256, + 16384 (V half of slot)")
        e(f"s_and_b32 s{S_T}, s{S_CI}, 1")
        e(f"s_lshl_b32 s{S_T}, s{S_T}, 7")
        e(f"s_lshr_b32 s{S_T+1}, s{S_CI}, 1")
        e(f"s_lshl_b32 s{S_T+1}, s{S_T+1}, 8")
        e(f"s_add_u32 s{S_T+1}, s{S_T+1}, 16384")
        e(f"s_or_b32 s{S_T}, s{S_T}, s{S_T+1}")
        e(f"v_xor_b32 v{V_BV}, s{S_T}, v{T+4}")
        e(f"v_xor_b32 v{V_BV+1}, 64, v{V_BV}")
        e(f"s_mov_b32 s{S_C}, 0x{f32bits(CSCALE):08x}")
        e(f"s_mov_b32 s{S_CM}, 0x{f32bits(CMASK):08x}")
        e(f"s_mov_b32 s{S_IT}, 0")
        e(f"s_mov_b32 s{S_SLOT}, 0")
        e(f"s_mov_b32 s{S_LANDED}, 0")
        e(f"s_lshl_b32 s{S_CTR}, s{S_PAIR}, 2")
        e(f"s_add_u32 s{S_CTR}, s{S_CTR}, s{S_CI}")
        e(f"s_lshl_b32 s{S_CTR}, s{S_CTR}, 8")
        e(f"s_add_u32 s{S_CTR}, s{S_CTR}, {WS_CTR}")
        e(f"v_lshlrev_b32 v{V_A16}, 4, v{V_LANE}")
        e(f"v_lshlrev_b32 v{V_A8}, 3, v{V_LANE}")
        c("output address: q = l&31, d = 64*c + 8*g8 + 4*h")
        e(f"v_lshlrev_b32 v{V_AOUT}, 9, v{T+2}")
        e(f"v_lshl_or_b32 v{V_AOUT}, v{T+1}, 3, v{V_AOUT}")
        e(f"s_mov_b32 s{S_EARLY}, 0")
        e(f"s_mov_b32 s{S_TKT}, 0")
        e(f"s_and_b32 s{S_CHK}, s2, 31")
        e(f"s_add_u32 s{S_CHK}, s{S_CHK}, 16")
        for ee in range(8):
            e(f"v_add_u32 v{V_AK+ee}, {LDS_Q}, v{V_BK+ee}")
        e(f"v_mov_b32 v{V_F}, 1")
        c("own staged pieces landed -> count; wait for all four consumers")
        e("s_waitcnt vmcnt(0)")
        e("s_mov_b64 exec, 1")
        e(f"ds_add_u32 v{V_FLAGA}, v{V_F} offset:4")
        e("s_mov_b64 exec, -1")
        self.poll("4", sreg=S_NEED, off=4, precheck=False)
        self.read_k(V_AK, V_Q)

        e(f"s_cmp_lg_u32 s{S_SPLIT}, 3")
        e("s_cbranch_scc1 L_notree")
        c("---- tree tile (16 keys, masked) ----")
        for ee in range(8):
            e(f"v_add_u32 v{V_AK+ee}, {LDS_TREE}, v{V_BK+ee}")
        for ee in range(2):
            e(f"v_add_u32 v{V_AV+ee}, {LDS_TREE + 8192 - 16384}, v{V_BV+ee}")
        self.read_k(V_AK)
        self.read_v(V_AV, [0])
        for i in range(4):
            e(f"v_lshlrev_b32 v{V_MT+2*i}, 16, v{V_MSK+i}")
            e(f"v_and_b32 v{V_MT+2*i+1}, 0xffff0000, v{V_MSK+i}")
        for i in range(8):
            e(f"v_sub_f32 v{V_MT+i}, 1.0, v{V_MT+i}")
        for i in range(8):
            e(f"v_mul_f32 v{V_MT+i}, s{S_CM}, v{V_MT+i}")
        e(f"v_mov_b32 v{V_F}, 1")
        e("s_waitcnt lgkmcnt(0)")
        e(f"ds_write_b32 v{V_CONA}, v{V_F}")
        self.qk(False)
        e("s_nop 15")
        for i in range(8):
            e(f"v_fma_f32 v{S+i}, v{S+i}, s{S_C}, v{V_MT+i}")
        e(f"v_max3_f32 v{T}, v{S}, v{S+1}, v{S+2}")
        e(f"v_max3_f32 v{T+1}, v{S+3}, v{S+4}, v{S+5}")
        e(f"v_max3_f32 v{T}, v{T}, v{S+6}, v{S+7}")
        e(f"v_max_f32 v{T}, v{T}, v{T+1}")
        self.xhalf("v_max_f32", V_M, T, T + 1)
        for i in range(8):
            e(f"v_sub_f32 v{S+i}, v{S+i}, v{V_M}")
        for i in range(8):
            e(f"v_exp_f32 v{S+i}, v{S+i}")
        e("s_nop 0")
        e(f"v_add_f32 v{V_L}, v{S}, v{S+1}")
        for i in range(2, 8):
            e(f"v_add_f32 v{V_L}, v{V_L}, v{S+i}")
        for i in range(4):
            e(f"v_cvt_pk_bf16_f32 v{V_P+i}, v{S+2*i}, v{S+2*i+1}")
        e("s_nop 1")
        self.pv([0], first=True)
        e("s_branch L_init")
        lab("L_notree")
        e(f"v_mov_b32 v{V_M}, 0xff800000")
        e(f"v_mov_b32 v{V_L}, 0")
        for i in range(32):
            e(f"v_mov_b32 v{V_O+i}, 0")
        e(f"v_mov_b32 v{V_F}, 1")
        e("s_waitcnt lgkmcnt(0)")
        e(f"ds_write_b32 v{V_CONA}, v{V_F}")
        lab("L_init")
        c("counter initialisation: consumer 0 of workgroup 0 claims d_debug[0] and zeroes all merge counters")
        e(f"s_or_b32 s{S_T}, s{S_CI}, s2")
        e(f"s_cmp_lg_u32 s{S_T}, 0")
        e("s_cbranch_scc1 L_loop")
        self.claim_and_init("L_loop", "L_loop")

        self.L.append(".p2align 6")
        lab("L_loop")
        for ee in range(8):
            e(f"v_add_u32 v{V_AK+ee}, s{S_SLOT}, v{V_BK+ee}")
        for ee in range(2):
            e(f"v_add_u32 v{V_AV+ee}, s{S_SLOT}, v{V_BV+ee}")
        e(f"s_mul_i32 s{S_NEED}, s{S_IT}, {GPT}")
        e(f"s_add_u32 s{S_NEED}, s{S_NEED}, {GPT//2}")
        self.poll(f"s{S_NEED}")
        self.read_k(V_AK)
        c("rare side jobs")
        e(f"s_cmp_ge_u32 s{S_IT}, {NT-2}")
        e("s_cbranch_scc1 L_ticket")
        e(f"s_cmp_eq_u32 s{S_IT}, s{S_CHK}")
        e("s_cbranch_scc1 L_check")
        lab("L_side_done")
        self.qk(True)
        e("s_nop 15")
        self.softmax()
        e(f"s_cmp_eq_u32 s{S_IT}, {NT-1}")
        e("s_cbranch_scc1 L_early")
        lab("L_early_done")
        e(f"s_add_u32 s{S_NEED}, s{S_NEED}, {GPT//2}")
        self.poll(f"s{S_NEED}")
        self.read_v(V_AV, [0, 1])
        e(f"s_add_u32 s{S_IT}, s{S_IT}, 1")
        e(f"s_add_u32 s{S_T}, s{S_IT}, 1")
        e(f"v_mov_b32 v{V_F}, s{S_T}")
        e(f"s_add_u32 s{S_SLOT}, s{S_SLOT}, 32768")
        e(f"s_and_b32 s{S_SLOT}, s{S_SLOT}, 0x1ffff")
        e("s_waitcnt lgkmcnt(0)")
        e(f"ds_write_b32 v{V_CONA}, v{V_F}")
        self.pv([0, 1])
        e(f"s_cmp_lt_u32 s{S_IT}, {NT}")
        e("s_cbranch_scc1 L_loop")
        self.stamp(3)

        A8, A16, AOUT = V_A8, V_A16, V_AOUT

        def issue_loads():
            c("stats of splits s^1, s^2, s^3 -> v[S+2i:S+2i+1]; partial O -> V_K + 32*(i-1)")
            e(f"s_lshl_b32 s{S_T}, s{S_PAIR}, 4")
            e(f"s_add_u32 s{S_T}, s{S_T}, s{S_CI}")
            for i in range(1, 4):
                e(f"s_xor_b32 s{S_T+1}, s{S_SPLIT}, {i}")
                e(f"s_lshl_b32 s{S_T+1}, s{S_T+1}, 2")
                e(f"s_add_u32 s{S_T+4+i}, s{S_T+1}, s{S_T}")
                e(f"s_lshl_b32 s{S_T+3}, s{S_T+4+i}, 9")
                e(f"s_add_u32 s{S_T+3}, s{S_T+3}, {WS_STAT}")
                e(f"buffer_load_dwordx2 v[{S+2*i}:{S+2*i+1}], v{A8}, s[{SRD_WS}:{SRD_WS+3}], s{S_T+3} offen{a.ldpol}")
            for i in range(1, 4):
                e(f"s_lshl_b32 s{S_T+1}, s{S_T+4+i}, 13")
                e(f"s_add_u32 s{S_T+2}, s{S_T+1}, 4096")
                for rq in range(8):
                    so = S_T + 1 + (rq >> 2)
                    r = V_K + 32 * (i - 1) + 4 * rq
                    e(f"buffer_load_dwordx4 v[{r}:{r+3}], v{A16}, s[{SRD_WS}:{SRD_WS+3}], s{so} offen offset:{(rq & 3)*1024}{a.ldpol}")
        self.issue_loads = issue_loads

        c("---- end of stream: merge the 4 splits ----")
        self.xhalf("v_add_f32", V_L, V_L, T)
        e(f"s_cmp_eq_u32 s{S_EARLY}, 1")
        e("s_cbranch_scc1 L_combine")
        e(f"s_and_b32 s{S_T+6}, s{S_TKT}, 0xffff")
        e(f"s_cmp_ge_u32 s{S_T+6}, 3")
        e("s_cbranch_scc1 L_wait_done")
        c("not last: publish partial (write-through), then bump the done count")
        e(f"s_lshl_b32 s{S_T}, s{S_PAIR}, 4")
        e(f"s_add_u32 s{S_T}, s{S_T}, s{S_CI}")
        e(f"s_lshl_b32 s{S_T+1}, s{S_SPLIT}, 2")
        e(f"s_add_u32 s{S_T}, s{S_T}, s{S_T+1}")
        e(f"s_lshl_b32 s{S_T+1}, s{S_T}, 13")
        e(f"s_add_u32 s{S_T+2}, s{S_T+1}, 4096")
        e(f"s_lshl_b32 s{S_T+3}, s{S_T}, 9")
        e(f"s_add_u32 s{S_T+3}, s{S_T+3}, {WS_STAT}")
        e(f"buffer_store_dwordx2 v[{V_M}:{V_M+1}], v{A8}, s[{SRD_WS}:{SRD_WS+3}], s{S_T+3} offen{a.stpol}")
        for rq in range(8):
            so = S_T + 1 + (rq >> 2)
            e(f"buffer_store_dwordx4 v[{V_O+4*rq}:{V_O+4*rq+3}], v{A16}, s[{SRD_WS}:{SRD_WS+3}], s{so} offen offset:{(rq & 3)*1024}{a.stpol}")
        e(f"v_mov_b32 v{V_TK}, 0x10000")
        e("s_waitcnt vmcnt(0)")
        e("s_mov_b64 exec, 1")
        e(f"buffer_atomic_add v{V_TK}, v{V_ZERO}, s[{SRD_WS}:{SRD_WS+3}], s{S_CTR} offen")
        e("s_mov_b64 exec, -1")
        if a.stamps:
            self.stamp(4)
            e(f"s_mov_b32 s{S_T+9}, 0")
            e("s_branch L_fin")
        else:
            e("s_endpgm")

        c("last arriver: wait until the other three have published")
        lab("L_wait_done")
        e("s_mov_b64 exec, 1")
        e(f"buffer_load_dword v{V_TK}, v{V_ZERO}, s[{SRD_WS}:{SRD_WS+3}], s{S_CTR} offen sc1")
        e("s_mov_b64 exec, -1")
        e("s_waitcnt vmcnt(0)")
        e(f"v_readfirstlane_b32 s{S_TKT}, v{V_TK}")
        self.spin_guard()
        e(f"s_lshr_b32 s{S_T+6}, s{S_TKT}, 16")
        e(f"s_cmp_lg_u32 s{S_T+6}, 3")
        e("s_cbranch_scc1 L_wait_done")
        issue_loads()
        lab("L_combine")
        self.stamp(4)
        e(f"v_mov_b32 v{S}, v{V_M}")
        e(f"v_mov_b32 v{S+1}, v{V_L}")
        e(f"s_lshl_b32 s{S_T+8}, s{S_CI}, 7")
        e("s_waitcnt vmcnt(24)")
        e(f"v_max_f32 v{T}, v{S}, v{S+2}")
        e(f"v_max3_f32 v{V_M}, v{T}, v{S+4}, v{S+6}")
        F = [S + 8, S + 10, S + 12, S + 14]
        for i in range(4):
            e(f"v_sub_f32 v{F[i]}, v{S+2*i}, v{V_M}")
        for i in range(4):
            e(f"v_exp_f32 v{F[i]}, v{F[i]}")
        e("s_nop 0")
        for i in range(4):
            e(f"v_mul_f32 v{F[i]+1}, v{F[i]}, v{S+2*i+1}")
        e(f"v_add_f32 v{T}, v{F[0]+1}, v{F[1]+1}")
        e(f"v_add_f32 v{T+1}, v{F[2]+1}, v{F[3]+1}")
        e(f"v_add_f32 v{V_L}, v{T}, v{T+1}")
        e(f"v_rcp_f32 v{V_ALPHA}, v{V_L}")
        e("s_nop 0")
        for i in range(4):
            e(f"v_mul_f32 v{F[i]}, v{F[i]}, v{V_ALPHA}")
        src = [V_O, V_K, V_K + 32, V_K + 64]
        for i in range(4):
            if i:
                e(f"s_waitcnt vmcnt({24 - 8*i})")
            for r in range(0, 32, 2):
                self.pkmul(src[i] + r, F[i])
            if i == 1:
                for r in range(0, 32, 2):
                    e(f"v_pk_add_f32 v[{V_O+r}:{V_O+r+1}], v[{V_O+r}:{V_O+r+1}], v[{src[1]+r}:{src[1]+r+1}]")
        for g8 in range(8):
            for r in (4 * g8, 4 * g8 + 2):
                e(f"v_pk_add_f32 v[{src[2]+r}:{src[2]+r+1}], v[{src[2]+r}:{src[2]+r+1}], v[{src[3]+r}:{src[3]+r+1}]")
            for r in (4 * g8, 4 * g8 + 2):
                e(f"v_pk_add_f32 v[{V_O+r}:{V_O+r+1}], v[{V_O+r}:{V_O+r+1}], v[{src[2]+r}:{src[2]+r+1}]")
            rr = V_K + 2 * g8
            e(f"v_cvt_pk_bf16_f32 v{rr}, v{V_O+4*g8}, v{V_O+4*g8+1}")
            e(f"v_cvt_pk_bf16_f32 v{rr+1}, v{V_O+4*g8+2}, v{V_O+4*g8+3}")
            e(f"buffer_store_dwordx2 v[{rr}:{rr+1}], v{AOUT}, s[{SRD_OUT}:{SRD_OUT+3}], s{S_T+8} offen offset:{g8*16}")
        if a.stamps:
            e("s_waitcnt vmcnt(0)")
            e(f"s_mov_b32 s{S_T+9}, 1")
            lab("L_fin")
            self.stamp_store()
        lab("L_end")
        e("s_endpgm")

        c("---- side jobs (out of line) ----")
        lab("L_ticket")
        e(f"s_cmp_eq_u32 s{S_IT}, {NT-1}")
        e("s_cbranch_scc1 L_pre")
        c("second to last tile: take the arrival ticket; set up the epilogue addresses")
        e(f"v_mov_b32 v{V_TK}, 1")
        e("s_mov_b64 exec, 1")
        e(f"buffer_atomic_add v{V_TK}, v{V_ZERO}, s[{SRD_WS}:{SRD_WS+3}], s{S_CTR} offen sc0")
        e("s_mov_b64 exec, -1")
        e("s_branch L_side_done")
        lab("L_pre")
        c("last tile: read the ticket; the last arriver refreshes the done count")
        e("s_waitcnt vmcnt(0)")
        e(f"v_readfirstlane_b32 s{S_TKT}, v{V_TK}")
        e("s_nop 0")
        e(f"s_and_b32 s{S_T}, s{S_TKT}, 0xffff")
        e(f"s_cmp_lg_u32 s{S_T}, 3")
        e("s_cbranch_scc1 L_side_done")
        e("s_mov_b64 exec, 1")
        e(f"buffer_load_dword v{V_TK}, v{V_ZERO}, s[{SRD_WS}:{SRD_WS+3}], s{S_CTR} offen sc1")
        e("s_mov_b64 exec, -1")
        e("s_branch L_side_done")
        lab("L_early")
        c("last tile, softmax done: if every other split has published, start loading their partials now")
        e(f"s_and_b32 s{S_T}, s{S_TKT}, 0xffff")
        e(f"s_cmp_lg_u32 s{S_T}, 3")
        e("s_cbranch_scc1 L_early_done")
        e("s_waitcnt vmcnt(0)")
        e(f"v_readfirstlane_b32 s{S_T}, v{V_TK}")
        e("s_nop 0")
        e(f"s_lshr_b32 s{S_T}, s{S_T}, 16")
        e(f"s_cmp_lg_u32 s{S_T}, 3")
        e("s_cbranch_scc1 L_early_done")
        issue_loads()
        e(f"s_mov_b32 s{S_EARLY}, 1")
        e("s_branch L_early_done")
        lab("L_check")
        c("consumer 0 makes sure the merge counters have been zeroed (the ring dependency covers the others)")
        e(f"s_cmp_lg_u32 s{S_CI}, 0")
        e("s_cbranch_scc1 L_side_done")
        e("s_mov_b64 exec, 1")
        e(f"buffer_load_dword v{V_TK}, v{V_ZERO}, s[{SRD_DBG}:{SRD_DBG+3}], 0 offen sc1")
        e("s_mov_b64 exec, -1")
        e("s_waitcnt vmcnt(0)")
        e(f"v_readfirstlane_b32 s{S_T}, v{V_TK}")
        e("s_nop 0")
        e(f"s_cmp_eq_u32 s{S_T}, 3")
        e("s_cbranch_scc1 L_side_done")
        c("rare: not ready yet. Claim the job if nobody has, else wait for whoever did.")
        lab("L_check_loop")
        self.claim_and_init("L_side_done", "L_check_wait")
        lab("L_check_wait")
        e("s_sleep 8")
        self.spin_guard()
        e("s_branch L_check_loop")

        out += "\n".join(self.L) + "\n"
        out += f""".section .rodata,"a"
.p2align 6
.amdhsa_kernel {K}
  .amdhsa_next_free_vgpr {NVGPR}
  .amdhsa_next_free_sgpr 102
  .amdhsa_accum_offset {NVGPR}
  .amdhsa_group_segment_fixed_size 0
  .amdhsa_kernarg_size 72
  .amdhsa_user_sgpr_count 2
  .amdhsa_user_sgpr_kernarg_segment_ptr 1
  .amdhsa_system_sgpr_workgroup_id_x 1
.end_amdhsa_kernel
"""
        return out


def main():
    ap = argparse.ArgumentParser()
    ap.add_argument("-o", default=f"cdna_kernels/{NAME}.s")
    ap.add_argument("--pol", default="nt")
    ap.add_argument("--stamps", type=int, default=0)
    ap.add_argument("--group", type=int, default=8)
    ap.add_argument("--ring", type=int, default=3)
    ap.add_argument("--sleep", type=int, default=1)
    ap.add_argument("--spin", type=int, default=2000000)
    ap.add_argument("--stpol", default="sc1")
    ap.add_argument("--ldpol", default="sc1")
    args = ap.parse_args()
    args.pol = (" " + args.pol.replace(",", " ")) if args.pol else ""
    args.stpol = (" " + args.stpol.replace(",", " ")) if args.stpol else ""
    args.ldpol = (" " + args.ldpol.replace(",", " ")) if args.ldpol else ""
    open(args.o, "w").write(G(args).gen())


if __name__ == "__main__":
    main()
```

```python
import argparse

from gen import HEADER, NAME, f32bits, CSCALE, CMASK

V_LANE = 1
V_T = 2
V_M = 10
V_L = 11
V_ALPHA = 12
V_ZERO = 13
V_FLAGA = 14
V_CONA = 15
V_BK = 16
V_BV = 24
V_AK = 28
V_AV = 36
V_TK = 38
V_F = 39
V_P = 40
V_S = 48
V_O = 64
V_V = 96
V_K = 112
V_Q = 176
V_MSK = 240
V_MT = 244
V_A8 = 252
V_A16 = 253
V_AOUT = 254
NVGPR = 256

S_SPLIT = 3
S_WAVE = 22
S_PAIR = 23
SRD_K = 24
SRD_V = 28
SRD_Q = 32
SRD_TK = 36
SRD_MSK = 44
SRD_OUT = 48
SRD_WS = 52
SRD_DBG = 56
S_OFF = 60
S_OFF2 = 61
S_IT = 62
S_C = 63
S_CM = 64
S_SLOT = 65
S_CI = 66
S_NEED = 67
S_LANDED = 68
S_CTR = 69
S_CHK = 70
S_SPIN = 71
S_T = 72
S_TKT = 82
S_EARLY = 83
S_ST = 84

NT = 64
LDS_Q = 3 * 32768
LDS_TREE = 3 * 32768 + 16384
LDS_FLAG = 131072
LDS_TOTAL = LDS_FLAG + 64

WS_STAT = 8 << 20
WS_CTR = 12 << 20
WS_STAMP = 32 << 20


class G:
    def __init__(self, args):
        self.a = args
        self.L = []
        self.uid = 0

    def e(self, s):
        self.L.append("    " + s)

    def lab(self, s):
        self.L.append(s + ":")

    def c(self, s):
        self.L.append("    ; " + s)

    def newlab(self, base):
        self.uid += 1
        return f"L_{base}_{self.uid}"

    def srd(self, d, lo, hi, nbytes):
        self.e(f"s_mov_b32 s{d}, s{lo}")
        self.e(f"s_and_b32 s{d+1}, s{hi}, 0xffff")
        self.e(f"s_mov_b32 s{d+2}, {nbytes}")
        self.e(f"s_mov_b32 s{d+3}, 0x00020000")

    def srd_off(self, d, lo, hi, soff, nbytes):
        self.e(f"s_add_u32 s{d}, s{lo}, s{soff}")
        self.e(f"s_addc_u32 s{d+1}, s{hi}, 0")
        self.e(f"s_and_b32 s{d+1}, s{d+1}, 0xffff")
        self.e(f"s_mov_b32 s{d+2}, {nbytes}")
        self.e(f"s_mov_b32 s{d+3}, 0x00020000")

    def stamp(self, i):
        if not self.a.stamps:
            return
        self.e(f"s_memrealtime s[{S_ST+2*i}:{S_ST+2*i+1}]")
        self.e("s_waitcnt lgkmcnt(0)")

    def stamp_store(self):
        if not self.a.stamps:
            return
        e = self.e
        e("s_memtime s[98:99]")
        self.stamp(5)
        e(f"s_getreg_b32 s{S_T}, hwreg(HW_REG_XCC_ID)")
        e(f"s_mul_i32 s{S_T+2}, s2, 5")
        e(f"s_add_u32 s{S_T+2}, s{S_T+2}, s{S_WAVE}")
        e(f"s_lshl_b32 s{S_T+2}, s{S_T+2}, 6")
        e(f"s_add_u32 s{S_T+2}, s{S_T+2}, {WS_STAMP}")
        for i in range(6):
            e(f"v_mov_b32 v{V_S+i}, s{S_ST+2*i}")
        e(f"v_mov_b32 v{V_S+6}, s{S_T}")
        e(f"v_mov_b32 v{V_S+7}, s{S_T+9}")
        e(f"v_mov_b32 v{V_S+8}, s96")
        e(f"v_mov_b32 v{V_S+9}, s98")
        e(f"v_mov_b32 v{V_S+10}, 0")
        e(f"v_mov_b32 v{V_S+11}, s{S_SPIN}")
        e(f"v_mov_b32 v{V_T}, 0")
        e("s_mov_b64 exec, 1")
        for q in range(3):
            e(f"buffer_store_dwordx4 v[{V_S+4*q}:{V_S+4*q+3}], v{V_T}, s[{SRD_WS}:{SRD_WS+3}], s{S_T+2} offen offset:{16*q}")
        e("s_mov_b64 exec, -1")

    def spin_guard(self):
        self.e(f"s_sub_u32 s{S_SPIN}, s{S_SPIN}, 1")
        self.e("s_cbranch_scc1 L_end")

    def dma_offsets(self, dk, dv):
        e = self.e
        T = V_T
        if dk is not None:
            e(f"v_xor_b32 v{T+3}, v{T+2}, v{T+1}")
            e(f"v_lshlrev_b32 v{T+3}, 4, v{T+3}")
            e(f"v_lshl_or_b32 v{T+3}, v{T+1}, 9, v{T+3}")
            for jj in range(8):
                e(f"v_xor_b32 v{dk+jj}, {(2*jj << 4) | ((jj >> 2) << 12)}, v{T+3}")
        if dv is not None:
            e(f"v_lshlrev_b32 v{T+4}, 2, v{T+1}")
            e(f"v_xor_b32 v{T+4}, v{T+2}, v{T+4}")
            e(f"v_lshlrev_b32 v{T+4}, 4, v{T+4}")
            e(f"v_lshl_or_b32 v{T+4}, v{T+1}, 9, v{T+4}")
            for x in range(4):
                e(f"v_xor_b32 v{dv+x}, {((x & 1) * 128) | ((x >> 1) << 12)}, v{T+4}")

    def piece(self, kind, j, srd, soffs, m0, vbase, pol):
        if j % 4 == 0:
            m0(j >> 2)
            self.e("s_nop 0")
        imm = (j & 3) * 1024
        if kind == "K":
            vo = vbase + (j & 7)
        else:
            vo = vbase + (j & 1) + 2 * ((j >> 2) & 1)
        self.e(f"buffer_load_dwordx4 v{vo}, s[{srd}:{srd+3}], {soffs[j >> 3]} offen offset:{imm}{pol} lds")

    def claim_and_init(self, l_ready, l_busy):
        e = self.e
        T = V_T
        e(f"v_mov_b32 v{T+6}, 1")
        e(f"v_mov_b32 v{T+7}, 0")
        e("s_mov_b64 exec, 1")
        e(f"buffer_atomic_cmpswap v[{T+6}:{T+7}], v{V_ZERO}, s[{SRD_DBG}:{SRD_DBG+3}], 0 offen sc0")
        e("s_mov_b64 exec, -1")
        e("s_waitcnt vmcnt(0)")
        e(f"v_readfirstlane_b32 s{S_T}, v{T+6}")
        e("s_nop 0")
        e(f"s_cmp_eq_u32 s{S_T}, 3")
        e(f"s_cbranch_scc1 {l_ready}")
        e(f"s_cmp_lg_u32 s{S_T}, 0")
        e(f"s_cbranch_scc1 {l_busy}")
        e(f"v_lshlrev_b32 v{T+6}, 8, v{V_LANE}")
        for i in range(4):
            e(f"s_mov_b32 s{S_T}, {WS_CTR + i*16384}")
            e(f"buffer_store_dword v{V_ZERO}, v{T+6}, s[{SRD_WS}:{SRD_WS+3}], s{S_T} offen sc1")
        e("s_waitcnt vmcnt(0)")
        e(f"v_mov_b32 v{T+6}, 3")
        e("s_mov_b64 exec, 1")
        e(f"buffer_atomic_swap v{T+6}, v{V_ZERO}, s[{SRD_DBG}:{SRD_DBG+3}], 0 offen")
        e("s_mov_b64 exec, -1")
        e(f"s_branch {l_ready}")

    def poll(self, need, sreg=S_LANDED, off=0, precheck=True):
        e = self.e
        lp, go = self.newlab("poll"), self.newlab("go")
        if precheck:
            e(f"s_cmp_ge_u32 s{sreg}, {need}")
            e(f"s_cbranch_scc1 {go}")
        self.lab(lp)
        e(f"ds_read_b32 v{V_F}, v{V_FLAGA} offset:{off}")
        e("s_waitcnt lgkmcnt(0)")
        e(f"v_readfirstlane_b32 s{sreg}, v{V_F}")
        e("s_nop 0")
        e(f"s_cmp_ge_u32 s{sreg}, {need}")
        e(f"s_cbranch_scc1 {go}")
        if self.a.sleep:
            e(f"s_sleep {self.a.sleep}")
        self.spin_guard()
        e(f"s_branch {lp}")
        self.lab(go)

    def read_k(self, base, dst=V_K):
        for kk in range(16):
            off = (kk >> 3) * 256
            self.e(f"ds_read_b128 v[{dst+4*kk}:{dst+4*kk+3}], v{base + (kk & 7)} offset:{off}")

    def read_v(self, base, kss):
        for ks in kss:
            for dtl in range(2):
                for jhi in range(2):
                    off = (16 * ks + 8 * jhi) * 512
                    r = V_V + 8 * ks + 4 * dtl + 2 * jhi
                    self.e(f"ds_read_b64_tr_b16 v[{r}:{r+1}], v{base + dtl} offset:{off}")

    def qk(self, counted):
        for kk in range(16):
            if counted:
                self.e(f"s_waitcnt lgkmcnt({15 - kk})")
            cin = "0" if kk == 0 else f"v[{V_S}:{V_S+15}]"
            self.e(f"v_mfma_f32_32x32x16_bf16 v[{V_S}:{V_S+15}], v[{V_K+4*kk}:{V_K+4*kk+3}], "
                   f"v[{V_Q+4*kk}:{V_Q+4*kk+3}], {cin}")

    def pv(self, kss, first=False):
        for ks in kss:
            for dtl in range(2):
                o = V_O + 16 * dtl
                r = V_V + 8 * ks + 4 * dtl
                cin = "0" if first else f"v[{o}:{o+15}]"
                self.e(f"v_mfma_f32_32x32x16_bf16 v[{o}:{o+15}], v[{r}:{r+3}], v[{V_P+4*ks}:{V_P+4*ks+3}], {cin}")

    def xhalf(self, op, dst, a, b):
        self.e(f"v_mov_b32 v{b}, v{a}")
        self.e("s_nop 1")
        self.e(f"v_permlane32_swap_b32 v{a}, v{b}")
        self.e("s_nop 1")
        self.e(f"{op} v{dst}, v{a}, v{b}")

    def pkmul(self, r, f):
        self.e(f"v_pk_mul_f32 v[{r}:{r+1}], v[{r}:{r+1}], v[{f}:{f+1}] op_sel_hi:[1,0]")

    def softmax(self):
        e = self.e
        S, T = V_S, V_T
        e(f"v_max3_f32 v{T}, v{S}, v{S+1}, v{S+2}")
        e(f"v_max3_f32 v{T+1}, v{S+3}, v{S+4}, v{S+5}")
        e(f"v_max3_f32 v{T+2}, v{S+6}, v{S+7}, v{S+8}")
        e(f"v_max3_f32 v{T+3}, v{S+9}, v{S+10}, v{S+11}")
        e(f"v_max3_f32 v{T}, v{T}, v{S+12}, v{S+13}")
        e(f"v_max3_f32 v{T+1}, v{T+1}, v{S+14}, v{S+15}")
        e(f"v_max3_f32 v{T}, v{T}, v{T+1}, v{T+2}")
        e(f"v_max_f32 v{T}, v{T}, v{T+3}")
        self.xhalf("v_max_f32", T, T, T + 1)
        e(f"v_mul_f32 v{T}, s{S_C}, v{T}")
        e(f"v_max_f32 v{T}, v{T}, v{V_M}")
        e(f"v_sub_f32 v{T+1}, v{V_M}, v{T}")
        e(f"v_mov_b32 v{V_M}, v{T}")
        e(f"v_exp_f32 v{V_ALPHA}, v{T+1}")
        for i in range(16):
            e(f"v_fma_f32 v{S+i}, v{S+i}, s{S_C}, -v{V_M}")
        for i in range(16):
            e(f"v_exp_f32 v{S+i}, v{S+i}")
        for i in range(0, 32, 2):
            self.pkmul(V_O + i, V_ALPHA)
        for i in range(8):
            e(f"v_cvt_pk_bf16_f32 v{V_P+i}, v{S+2*i}, v{S+2*i+1}")
        e(f"v_add_f32 v{T}, v{S}, v{S+1}")
        e(f"v_add_f32 v{T+1}, v{S+2}, v{S+3}")
        for i in range(4, 16, 2):
            e(f"v_add_f32 v{T}, v{T}, v{S+i}")
            e(f"v_add_f32 v{T+1}, v{T+1}, v{S+i+1}")
        e(f"v_add_f32 v{T}, v{T}, v{T+1}")
        e(f"v_fma_f32 v{V_L}, v{V_L}, v{V_ALPHA}, v{T}")

    def gen(self):
        a = self.a
        e, lab, c = self.e, self.lab, self.c
        T = V_T
        S = V_S
        Gp, R = a.group, a.ring
        GPT = 32 // Gp
        K = NAME + "_kernel"
        out = HEADER + f"; @launch grid=(256,1,1) block=(320,1,1) lds={LDS_TOTAL}\n"
        out += '.amdgcn_target "amdgcn-amd-amdhsa--gfx950"\n.text\n'
        out += f".globl {K}\n.p2align 8\n.type {K},@function\n{K}:\n"

        e("s_cmp_ge_u32 s2, 256")
        e("s_cbranch_scc1 L_end")
        if a.stamps:
            e("s_memtime s[96:97]")
        self.stamp(0)
        e("s_load_dwordx16 s[4:19], s[0:1], 0")
        e("s_load_dwordx2 s[20:21], s[0:1], 64")
        e(f"v_lshrrev_b32 v{T}, 6, v0")
        e(f"v_and_b32 v{V_LANE}, 63, v0")
        e(f"v_readfirstlane_b32 s{S_WAVE}, v{T}")
        e(f"v_lshrrev_b32 v{T+1}, 5, v{V_LANE}")
        e(f"v_and_b32 v{T+2}, 31, v{V_LANE}")
        e(f"s_and_b32 s{S_PAIR}, s2, 63")
        e(f"s_lshr_b32 s{S_SPLIT}, s2, 6")
        e(f"v_mov_b32 v{V_FLAGA}, {LDS_FLAG}")
        e(f"v_mov_b32 v{V_ZERO}, 0")
        e(f"s_mov_b32 s{S_SPIN}, {a.spin}")
        if a.stamps:
            e(f"s_mov_b32 s{S_T+9}, 0")
        e(f"s_cmp_lg_u32 s{S_WAVE}, 0")
        e("s_cbranch_scc1 L_consumer")

        c("================= loader wave =================")
        e("s_setprio 3")
        self.dma_offsets(V_BK, V_BV)
        c("tile order is rotated per pair (de-phases the streams): byte offset in split = ((t + 13*pair) & 63) << 14")
        e(f"s_mul_i32 s{S_OFF}, s{S_PAIR}, {a.rmul << 14}")
        e(f"s_and_b32 s{S_OFF}, s{S_OFF}, 0xfffff")
        e(f"s_add_u32 s{S_OFF2}, s{S_OFF}, 8192")
        e(f"s_lshl_b32 s{S_T}, s{S_PAIR}, 22")
        e(f"s_lshl_b32 s{S_T+1}, s{S_SPLIT}, 20")
        e(f"s_add_u32 s{S_T}, s{S_T}, s{S_T+1}")
        e(f"s_mov_b32 s{S_SLOT}, 0")
        e("s_waitcnt lgkmcnt(0)")
        self.srd_off(SRD_K, 6, 7, S_T, 1 << 20)
        self.srd_off(SRD_V, 8, 9, S_T, 1 << 20)
        soffs = [f"s{S_OFF}", f"s{S_OFF2}"]

        def m0_slot(base):
            def f(q):
                e(f"s_add_u32 m0, s{S_SLOT}, {base + q*4096}")
            return f

        def m0_abs(base):
            def f(q):
                e(f"s_mov_b32 m0, {base + q*4096}")
            return f

        def group(g):
            for p in range(g * Gp, (g + 1) * Gp):
                if p < 16:
                    self.piece("K", p, SRD_K, soffs, m0_slot(0), V_BK, a.pol)
                else:
                    self.piece("V", p - 16, SRD_V, soffs, m0_slot(16384), V_BV, a.pol)

        def publish():
            e(f"s_waitcnt vmcnt({(R-1)*Gp})")
            e(f"v_add_u32 v{V_F}, 1, v{V_F}")
            e(f"ds_write_b32 v{V_FLAGA}, v{V_F}")

        assert R <= GPT
        for g in range(R):
            group(g)
        if a.stamps:
            self.srd(SRD_WS, 20, 21, 64 << 20)
        e(f"ds_write_b32 v{V_FLAGA}, v{V_ZERO}")
        e(f"ds_write_b32 v{V_FLAGA}, v{V_ZERO} offset:4")
        e(f"v_mov_b32 v{V_F}, 0")
        e("s_waitcnt lgkmcnt(0)")
        e("s_barrier")
        for g in range(R, GPT):
            publish()
            group(g)
        e(f"s_mov_b32 s{S_IT}, 1")
        lab("L_ld_loop")
        e(f"s_add_u32 s{S_OFF}, s{S_OFF}, 16384")
        e(f"s_and_b32 s{S_OFF}, s{S_OFF}, 0xfffff")
        e(f"s_add_u32 s{S_OFF2}, s{S_OFF}, 8192")
        e(f"s_add_u32 s{S_SLOT}, s{S_SLOT}, 32768")
        e(f"s_and_b32 s{S_SLOT}, s{S_SLOT}, 0x1ffff")
        c("slot free?  consumed = 1 after Q/tree were read, t+2 after tile t; need min + 2 >= tile index")
        e(f"ds_read_b128 v[{V_S}:{V_S+3}], v{V_FLAGA} offset:16")
        publish()
        lab("L_ld_chk")
        e("s_waitcnt lgkmcnt(0)")
        e(f"v_min_u32 v{V_S}, v{V_S}, v{V_S+1}")
        e(f"v_min3_u32 v{V_S}, v{V_S}, v{V_S+2}, v{V_S+3}")
        e("s_nop 0")
        e(f"v_readfirstlane_b32 s{S_T}, v{V_S}")
        e("s_nop 0")
        e(f"s_add_u32 s{S_T}, s{S_T}, 2")
        e(f"s_cmp_ge_u32 s{S_T}, s{S_IT}")
        e("s_cbranch_scc1 L_ld_free")
        if a.stamps:
            e(f"s_add_u32 s{S_T+9}, s{S_T+9}, 1")
        e("s_sleep 1")
        self.spin_guard()
        e(f"ds_read_b128 v[{V_S}:{V_S+3}], v{V_FLAGA} offset:16")
        e("s_branch L_ld_chk")
        lab("L_ld_free")
        if a.stamps:
            for ti, si in ((4, 1), (16, 2), (40, 4)):
                l2 = self.newlab("pst")
                e(f"s_cmp_lg_u32 s{S_IT}, {ti}")
                e(f"s_cbranch_scc1 {l2}")
                self.stamp(si)
                lab(l2)
        group(0)
        for g in range(1, GPT):
            publish()
            group(g)
        e(f"s_add_u32 s{S_IT}, s{S_IT}, 1")
        e(f"s_cmp_lt_u32 s{S_IT}, {NT}")
        e("s_cbranch_scc1 L_ld_loop")
        c("drain")
        for r in range(R - 1, -1, -1):
            e(f"s_waitcnt vmcnt({r*Gp})")
            e(f"v_add_u32 v{V_F}, 1, v{V_F}")
            e(f"ds_write_b32 v{V_FLAGA}, v{V_F}")
        self.stamp(3)
        self.stamp_store()
        e("s_endpgm")

        lab("L_consumer")
        c("================= consumer waves =================")
        e(f"s_sub_u32 s{S_CI}, s{S_WAVE}, 1")
        e(f"s_lshl_b32 s{S_T}, s{S_CI}, 2")
        e(f"s_add_u32 s{S_T}, s{S_T}, {LDS_FLAG + 16}")
        e(f"v_mov_b32 v{V_CONA}, s{S_T}")
        e(f"ds_write_b32 v{V_CONA}, v{V_ZERO}")
        c("DMA source offsets (temporarily in the K / V fragment registers)")
        self.dma_offsets(V_K, V_K + 8)
        e(f"s_lshl_b32 s{S_T+1}, s{S_PAIR}, 14")
        e(f"s_lshl_b32 s{S_T+2}, s{S_PAIR}, 13")
        c("Q pieces 4c..4c+3: source offsets of pieces (4c+i)&7, soffset (c>>1)*8192, LDS_Q + c*4096")
        e(f"s_and_b32 s{S_T+3}, s{S_CI}, 1")
        e(f"s_mul_i32 s{S_T+3}, s{S_T+3}, {128 | 4096}")
        for i in range(4):
            e(f"v_xor_b32 v{V_K+12+i}, s{S_T+3}, v{V_K+i}")
        e(f"s_lshr_b32 s{S_T+4}, s{S_CI}, 1")
        e(f"s_lshl_b32 s{S_T+4}, s{S_T+4}, 13")
        e(f"s_lshl_b32 s{S_T+5}, s{S_CI}, 12")
        e("s_waitcnt lgkmcnt(0)")
        self.srd_off(SRD_Q, 4, 5, S_T + 1, 16384)
        e(f"s_add_u32 m0, s{S_T+5}, {LDS_Q}")
        e("s_nop 0")
        for i in range(4):
            e(f"buffer_load_dwordx4 v{V_K+12+i}, s[{SRD_Q}:{SRD_Q+3}], s{S_T+4} offen offset:{i*1024} lds")
        e(f"s_cmp_lg_u32 s{S_SPLIT}, 3")
        e("s_cbranch_scc1 L_c_notree0")
        c("split 3: consumer 0 stages tree K, consumer 1 tree V; everyone loads its mask words")
        self.srd(SRD_MSK, 14, 15, 4096)
        e(f"v_and_b32 v{T+6}, 15, v{V_LANE}")
        e(f"v_lshlrev_b32 v{T+6}, 5, v{T+6}")
        e(f"v_lshl_or_b32 v{T+6}, v{T+1}, 3, v{T+6}")
        e(f"s_lshr_b32 s{S_T+4}, s{S_PAIR}, 3")
        e(f"s_lshl_b32 s{S_T+4}, s{S_T+4}, 9")
        e(f"buffer_load_dwordx2 v[{V_MSK}:{V_MSK+1}], v{T+6}, s[{SRD_MSK}:{SRD_MSK+3}], s{S_T+4} offen")
        e(f"buffer_load_dwordx2 v[{V_MSK+2}:{V_MSK+3}], v{T+6}, s[{SRD_MSK}:{SRD_MSK+3}], s{S_T+4} offen offset:16")
        e(f"s_cmp_lg_u32 s{S_CI}, 0")
        e("s_cbranch_scc1 L_c_tk_done")
        self.srd_off(SRD_TK, 10, 11, S_T + 2, 8192)
        for j in range(8):
            self.piece("K", j, SRD_TK, ["0"], m0_abs(LDS_TREE), V_K, "")
        lab("L_c_tk_done")
        e(f"s_cmp_lg_u32 s{S_CI}, 1")
        e("s_cbranch_scc1 L_c_notree0")
        self.srd_off(SRD_TK, 12, 13, S_T + 2, 8192)
        for j in range(8):
            self.piece("V", j, SRD_TK, ["0"], m0_abs(LDS_TREE + 8192), V_K + 8, "")
        lab("L_c_notree0")
        e("s_barrier")
        self.stamp(1)
        self.stamp(2)
        self.srd_off(SRD_OUT, 16, 17, S_T + 1, 16384)
        self.srd(SRD_WS, 20, 21, 64 << 20)
        self.srd(SRD_DBG, 18, 19, 256)
        c("LDS read bases")
        e(f"v_and_b32 v{T+3}, 15, v{T+2}")
        e(f"v_xor_b32 v{T+3}, v{T+3}, v{T+1}")
        e(f"v_lshlrev_b32 v{T+3}, 4, v{T+3}")
        e(f"v_lshl_or_b32 v{T+3}, v{T+2}, 9, v{T+3}")
        for ee in range(8):
            e(f"v_xor_b32 v{V_BK+ee}, {2*ee << 4}, v{T+3}")
        e(f"v_bfe_u32 v{T+3}, v{V_LANE}, 2, 2")
        e(f"v_lshl_add_u32 v{T+4}, v{T+1}, 2, v{T+3}")
        e(f"v_lshlrev_b32 v{T+4}, 9, v{T+4}")
        e(f"v_lshl_or_b32 v{T+4}, v{T+3}, 6, v{T+4}")
        e(f"v_bfe_u32 v{T+3}, v{V_LANE}, 4, 1")
        e(f"v_lshl_or_b32 v{T+4}, v{T+3}, 5, v{T+4}")
        e(f"v_and_b32 v{T+3}, 3, v{V_LANE}")
        e(f"v_lshl_or_b32 v{T+4}, v{T+3}, 3, v{T+4}")
        c("d-tiles 2c, 2c+1: xor (dt&3)<<6, + (dt>>2)*256, + 16384 (V half of slot)")
        e(f"s_and_b32 s{S_T}, s{S_CI}, 1")
        e(f"s_lshl_b32 s{S_T}, s{S_T}, 7")
        e(f"s_lshr_b32 s{S_T+1}, s{S_CI}, 1")
        e(f"s_lshl_b32 s{S_T+1}, s{S_T+1}, 8")
        e(f"s_add_u32 s{S_T+1}, s{S_T+1}, 16384")
        e(f"s_or_b32 s{S_T}, s{S_T}, s{S_T+1}")
        e(f"v_xor_b32 v{V_BV}, s{S_T}, v{T+4}")
        e(f"v_xor_b32 v{V_BV+1}, 64, v{V_BV}")
        e(f"s_mov_b32 s{S_C}, 0x{f32bits(CSCALE):08x}")
        e(f"s_mov_b32 s{S_CM}, 0x{f32bits(CMASK):08x}")
        e(f"s_mov_b32 s{S_IT}, 0")
        e(f"s_mov_b32 s{S_SLOT}, 0")
        e(f"s_mov_b32 s{S_LANDED}, 0")
        e(f"s_lshl_b32 s{S_CTR}, s{S_PAIR}, 2")
        e(f"s_add_u32 s{S_CTR}, s{S_CTR}, s{S_CI}")
        e(f"s_lshl_b32 s{S_CTR}, s{S_CTR}, 8")
        e(f"s_add_u32 s{S_CTR}, s{S_CTR}, {WS_CTR}")
        e(f"v_lshlrev_b32 v{V_A16}, 4, v{V_LANE}")
        e(f"v_lshlrev_b32 v{V_A8}, 3, v{V_LANE}")
        c("output address: q = l&31, d = 64*c + 8*g8 + 4*h")
        e(f"v_lshlrev_b32 v{V_AOUT}, 9, v{T+2}")
        e(f"v_lshl_or_b32 v{V_AOUT}, v{T+1}, 3, v{V_AOUT}")
        e(f"s_mov_b32 s{S_EARLY}, 0")
        e(f"s_mov_b32 s{S_TKT}, 0")
        e(f"s_and_b32 s{S_CHK}, s2, 31")
        e(f"s_add_u32 s{S_CHK}, s{S_CHK}, 16")
        for ee in range(8):
            e(f"v_add_u32 v{V_AK+ee}, {LDS_Q}, v{V_BK+ee}")
        e(f"v_mov_b32 v{V_F}, 1")
        c("own staged pieces landed -> count; wait for all four consumers")
        e("s_waitcnt vmcnt(0)")
        e("s_mov_b64 exec, 1")
        e(f"ds_add_u32 v{V_FLAGA}, v{V_F} offset:4")
        e("s_mov_b64 exec, -1")
        self.poll("4", sreg=S_NEED, off=4, precheck=False)
        self.read_k(V_AK, V_Q)

        e(f"s_cmp_lg_u32 s{S_SPLIT}, 3")
        e("s_cbranch_scc1 L_notree")
        c("---- tree tile (16 keys, masked) ----")
        for ee in range(8):
            e(f"v_add_u32 v{V_AK+ee}, {LDS_TREE}, v{V_BK+ee}")
        for ee in range(2):
            e(f"v_add_u32 v{V_AV+ee}, {LDS_TREE + 8192 - 16384}, v{V_BV+ee}")
        self.read_k(V_AK)
        self.read_v(V_AV, [0])
        for i in range(4):
            e(f"v_lshlrev_b32 v{V_MT+2*i}, 16, v{V_MSK+i}")
            e(f"v_and_b32 v{V_MT+2*i+1}, 0xffff0000, v{V_MSK+i}")
        for i in range(8):
            e(f"v_sub_f32 v{V_MT+i}, 1.0, v{V_MT+i}")
        for i in range(8):
            e(f"v_mul_f32 v{V_MT+i}, s{S_CM}, v{V_MT+i}")
        e(f"v_mov_b32 v{V_F}, 1")
        e("s_waitcnt lgkmcnt(0)")
        e(f"ds_write_b32 v{V_CONA}, v{V_F}")
        self.qk(False)
        e("s_nop 15")
        for i in range(8):
            e(f"v_fma_f32 v{S+i}, v{S+i}, s{S_C}, v{V_MT+i}")
        e(f"v_max3_f32 v{T}, v{S}, v{S+1}, v{S+2}")
        e(f"v_max3_f32 v{T+1}, v{S+3}, v{S+4}, v{S+5}")
        e(f"v_max3_f32 v{T}, v{T}, v{S+6}, v{S+7}")
        e(f"v_max_f32 v{T}, v{T}, v{T+1}")
        self.xhalf("v_max_f32", V_M, T, T + 1)
        for i in range(8):
            e(f"v_sub_f32 v{S+i}, v{S+i}, v{V_M}")
        for i in range(8):
            e(f"v_exp_f32 v{S+i}, v{S+i}")
        e("s_nop 0")
        e(f"v_add_f32 v{V_L}, v{S}, v{S+1}")
        for i in range(2, 8):
            e(f"v_add_f32 v{V_L}, v{V_L}, v{S+i}")
        for i in range(4):
            e(f"v_cvt_pk_bf16_f32 v{V_P+i}, v{S+2*i}, v{S+2*i+1}")
        e("s_nop 1")
        self.pv([0], first=True)
        e("s_branch L_init")
        lab("L_notree")
        e(f"v_mov_b32 v{V_M}, 0xff800000")
        e(f"v_mov_b32 v{V_L}, 0")
        for i in range(32):
            e(f"v_mov_b32 v{V_O+i}, 0")
        e(f"v_mov_b32 v{V_F}, 1")
        e("s_waitcnt lgkmcnt(0)")
        e(f"ds_write_b32 v{V_CONA}, v{V_F}")
        lab("L_init")
        c("counter initialisation: consumer 0 of workgroup 0 claims d_debug[0] and zeroes all merge counters")
        e(f"s_or_b32 s{S_T}, s{S_CI}, s2")
        e(f"s_cmp_lg_u32 s{S_T}, 0")
        e("s_cbranch_scc1 L_loop")
        self.claim_and_init("L_loop", "L_loop")

        self.L.append(".p2align 6")
        lab("L_loop")
        for ee in range(8):
            e(f"v_add_u32 v{V_AK+ee}, s{S_SLOT}, v{V_BK+ee}")
        for ee in range(2):
            e(f"v_add_u32 v{V_AV+ee}, s{S_SLOT}, v{V_BV+ee}")
        e(f"s_mul_i32 s{S_NEED}, s{S_IT}, {GPT}")
        e(f"s_add_u32 s{S_NEED}, s{S_NEED}, {GPT//2}")
        self.poll(f"s{S_NEED}")
        self.read_k(V_AK)
        c("rare side jobs")
        e(f"s_cmp_ge_u32 s{S_IT}, {NT-2}")
        e("s_cbranch_scc1 L_ticket")
        e(f"s_cmp_eq_u32 s{S_IT}, s{S_CHK}")
        e("s_cbranch_scc1 L_check")
        lab("L_side_done")
        self.qk(True)
        e("s_nop 15")
        self.softmax()
        e(f"s_cmp_eq_u32 s{S_IT}, {NT-1}")
        e("s_cbranch_scc1 L_early")
        lab("L_early_done")
        e(f"s_add_u32 s{S_NEED}, s{S_NEED}, {GPT//2}")
        self.poll(f"s{S_NEED}")
        self.read_v(V_AV, [0, 1])
        e(f"s_add_u32 s{S_IT}, s{S_IT}, 1")
        e(f"s_add_u32 s{S_T}, s{S_IT}, 1")
        e(f"v_mov_b32 v{V_F}, s{S_T}")
        e(f"s_add_u32 s{S_SLOT}, s{S_SLOT}, 32768")
        e(f"s_and_b32 s{S_SLOT}, s{S_SLOT}, 0x1ffff")
        e("s_waitcnt lgkmcnt(0)")
        e(f"ds_write_b32 v{V_CONA}, v{V_F}")
        self.pv([0, 1])
        e(f"s_cmp_lt_u32 s{S_IT}, {NT}")
        e("s_cbranch_scc1 L_loop")
        self.stamp(3)

        A8, A16, AOUT = V_A8, V_A16, V_AOUT

        def issue_loads():
            c("stats of splits s^1, s^2, s^3 -> v[S+2i:S+2i+1]; partial O -> V_K + 32*(i-1)")
            e(f"s_lshl_b32 s{S_T}, s{S_PAIR}, 4")
            e(f"s_add_u32 s{S_T}, s{S_T}, s{S_CI}")
            for i in range(1, 4):
                e(f"s_xor_b32 s{S_T+1}, s{S_SPLIT}, {i}")
                e(f"s_lshl_b32 s{S_T+1}, s{S_T+1}, 2")
                e(f"s_add_u32 s{S_T+4+i}, s{S_T+1}, s{S_T}")
                e(f"s_lshl_b32 s{S_T+3}, s{S_T+4+i}, 9")
                e(f"s_add_u32 s{S_T+3}, s{S_T+3}, {WS_STAT}")
                e(f"buffer_load_dwordx2 v[{S+2*i}:{S+2*i+1}], v{A8}, s[{SRD_WS}:{SRD_WS+3}], s{S_T+3} offen{a.ldpol}")
            for i in range(1, 4):
                e(f"s_lshl_b32 s{S_T+1}, s{S_T+4+i}, 13")
                e(f"s_add_u32 s{S_T+2}, s{S_T+1}, 4096")
                for rq in range(8):
                    so = S_T + 1 + (rq >> 2)
                    r = V_K + 32 * (i - 1) + 4 * rq
                    e(f"buffer_load_dwordx4 v[{r}:{r+3}], v{A16}, s[{SRD_WS}:{SRD_WS+3}], s{so} offen offset:{(rq & 3)*1024}{a.ldpol}")
        self.issue_loads = issue_loads

        c("---- end of stream: merge the 4 splits ----")
        self.xhalf("v_add_f32", V_L, V_L, T)
        e(f"s_cmp_eq_u32 s{S_EARLY}, 1")
        e("s_cbranch_scc1 L_combine")
        e(f"s_and_b32 s{S_T+6}, s{S_TKT}, 0xffff")
        e(f"s_cmp_ge_u32 s{S_T+6}, 3")
        e("s_cbranch_scc1 L_wait_done")
        c("not last: publish partial (write-through), then bump the done count")
        e(f"s_lshl_b32 s{S_T}, s{S_PAIR}, 4")
        e(f"s_add_u32 s{S_T}, s{S_T}, s{S_CI}")
        e(f"s_lshl_b32 s{S_T+1}, s{S_SPLIT}, 2")
        e(f"s_add_u32 s{S_T}, s{S_T}, s{S_T+1}")
        e(f"s_lshl_b32 s{S_T+1}, s{S_T}, 13")
        e(f"s_add_u32 s{S_T+2}, s{S_T+1}, 4096")
        e(f"s_lshl_b32 s{S_T+3}, s{S_T}, 9")
        e(f"s_add_u32 s{S_T+3}, s{S_T+3}, {WS_STAT}")
        e(f"buffer_store_dwordx2 v[{V_M}:{V_M+1}], v{A8}, s[{SRD_WS}:{SRD_WS+3}], s{S_T+3} offen{a.stpol}")
        for rq in range(8):
            so = S_T + 1 + (rq >> 2)
            e(f"buffer_store_dwordx4 v[{V_O+4*rq}:{V_O+4*rq+3}], v{A16}, s[{SRD_WS}:{SRD_WS+3}], s{so} offen offset:{(rq & 3)*1024}{a.stpol}")
        e(f"v_mov_b32 v{V_TK}, 0x10000")
        e("s_waitcnt vmcnt(0)")
        e("s_mov_b64 exec, 1")
        e(f"buffer_atomic_add v{V_TK}, v{V_ZERO}, s[{SRD_WS}:{SRD_WS+3}], s{S_CTR} offen")
        e("s_mov_b64 exec, -1")
        if a.stamps:
            self.stamp(4)
            e(f"s_mov_b32 s{S_T+9}, 0")
            e("s_branch L_fin")
        else:
            e("s_endpgm")

        c("last arriver: wait until the other three have published")
        lab("L_wait_done")
        e("s_mov_b64 exec, 1")
        e(f"buffer_load_dword v{V_TK}, v{V_ZERO}, s[{SRD_WS}:{SRD_WS+3}], s{S_CTR} offen sc1")
        e("s_mov_b64 exec, -1")
        e("s_waitcnt vmcnt(0)")
        e(f"v_readfirstlane_b32 s{S_TKT}, v{V_TK}")
        self.spin_guard()
        e(f"s_lshr_b32 s{S_T+6}, s{S_TKT}, 16")
        e(f"s_cmp_lg_u32 s{S_T+6}, 3")
        e("s_cbranch_scc1 L_wait_done")
        issue_loads()
        lab("L_combine")
        self.stamp(4)
        e(f"v_mov_b32 v{S}, v{V_M}")
        e(f"v_mov_b32 v{S+1}, v{V_L}")
        e(f"s_lshl_b32 s{S_T+8}, s{S_CI}, 7")
        e("s_waitcnt vmcnt(24)")
        e(f"v_max_f32 v{T}, v{S}, v{S+2}")
        e(f"v_max3_f32 v{V_M}, v{T}, v{S+4}, v{S+6}")
        F = [S + 8, S + 10, S + 12, S + 14]
        for i in range(4):
            e(f"v_sub_f32 v{F[i]}, v{S+2*i}, v{V_M}")
        for i in range(4):
            e(f"v_exp_f32 v{F[i]}, v{F[i]}")
        e("s_nop 0")
        for i in range(4):
            e(f"v_mul_f32 v{F[i]+1}, v{F[i]}, v{S+2*i+1}")
        e(f"v_add_f32 v{T}, v{F[0]+1}, v{F[1]+1}")
        e(f"v_add_f32 v{T+1}, v{F[2]+1}, v{F[3]+1}")
        e(f"v_add_f32 v{V_L}, v{T}, v{T+1}")
        e(f"v_rcp_f32 v{V_ALPHA}, v{V_L}")
        e("s_nop 0")
        for i in range(4):
            e(f"v_mul_f32 v{F[i]}, v{F[i]}, v{V_ALPHA}")
        src = [V_O, V_K, V_K + 32, V_K + 64]
        for i in range(4):
            if i:
                e(f"s_waitcnt vmcnt({24 - 8*i})")
            for r in range(0, 32, 2):
                self.pkmul(src[i] + r, F[i])
            if i == 1:
                for r in range(0, 32, 2):
                    e(f"v_pk_add_f32 v[{V_O+r}:{V_O+r+1}], v[{V_O+r}:{V_O+r+1}], v[{src[1]+r}:{src[1]+r+1}]")
        for g8 in range(8):
            for r in (4 * g8, 4 * g8 + 2):
                e(f"v_pk_add_f32 v[{src[2]+r}:{src[2]+r+1}], v[{src[2]+r}:{src[2]+r+1}], v[{src[3]+r}:{src[3]+r+1}]")
            for r in (4 * g8, 4 * g8 + 2):
                e(f"v_pk_add_f32 v[{V_O+r}:{V_O+r+1}], v[{V_O+r}:{V_O+r+1}], v[{src[2]+r}:{src[2]+r+1}]")
            rr = V_K + 2 * g8
            e(f"v_cvt_pk_bf16_f32 v{rr}, v{V_O+4*g8}, v{V_O+4*g8+1}")
            e(f"v_cvt_pk_bf16_f32 v{rr+1}, v{V_O+4*g8+2}, v{V_O+4*g8+3}")
            e(f"buffer_store_dwordx2 v[{rr}:{rr+1}], v{AOUT}, s[{SRD_OUT}:{SRD_OUT+3}], s{S_T+8} offen offset:{g8*16}")
        if a.stamps:
            e("s_waitcnt vmcnt(0)")
            e(f"s_mov_b32 s{S_T+9}, 1")
            lab("L_fin")
            self.stamp_store()
        lab("L_end")
        e("s_endpgm")

        c("---- side jobs (out of line) ----")
        lab("L_ticket")
        e(f"s_cmp_eq_u32 s{S_IT}, {NT-1}")
        e("s_cbranch_scc1 L_pre")
        c("second to last tile: take the arrival ticket; set up the epilogue addresses")
        e(f"v_mov_b32 v{V_TK}, 1")
        e("s_mov_b64 exec, 1")
        e(f"buffer_atomic_add v{V_TK}, v{V_ZERO}, s[{SRD_WS}:{SRD_WS+3}], s{S_CTR} offen sc0")
        e("s_mov_b64 exec, -1")
        e("s_branch L_side_done")
        lab("L_pre")
        c("last tile: read the ticket; the last arriver refreshes the done count")
        e("s_waitcnt vmcnt(0)")
        e(f"v_readfirstlane_b32 s{S_TKT}, v{V_TK}")
        e("s_nop 0")
        e(f"s_and_b32 s{S_T}, s{S_TKT}, 0xffff")
        e(f"s_cmp_lg_u32 s{S_T}, 3")
        e("s_cbranch_scc1 L_side_done")
        e("s_mov_b64 exec, 1")
        e(f"buffer_load_dword v{V_TK}, v{V_ZERO}, s[{SRD_WS}:{SRD_WS+3}], s{S_CTR} offen sc1")
        e("s_mov_b64 exec, -1")
        e("s_branch L_side_done")
        lab("L_early")
        c("last tile, softmax done: if every other split has published, start loading their partials now")
        e(f"s_and_b32 s{S_T}, s{S_TKT}, 0xffff")
        e(f"s_cmp_lg_u32 s{S_T}, 3")
        e("s_cbranch_scc1 L_early_done")
        e("s_waitcnt vmcnt(0)")
        e(f"v_readfirstlane_b32 s{S_T}, v{V_TK}")
        e("s_nop 0")
        e(f"s_lshr_b32 s{S_T}, s{S_T}, 16")
        e(f"s_cmp_lg_u32 s{S_T}, 3")
        e("s_cbranch_scc1 L_early_done")
        issue_loads()
        e(f"s_mov_b32 s{S_EARLY}, 1")
        e("s_branch L_early_done")
        lab("L_check")
        c("consumer 0 makes sure the merge counters have been zeroed (the ring dependency covers the others)")
        e(f"s_cmp_lg_u32 s{S_CI}, 0")
        e("s_cbranch_scc1 L_side_done")
        e("s_mov_b64 exec, 1")
        e(f"buffer_load_dword v{V_TK}, v{V_ZERO}, s[{SRD_DBG}:{SRD_DBG+3}], 0 offen sc1")
        e("s_mov_b64 exec, -1")
        e("s_waitcnt vmcnt(0)")
        e(f"v_readfirstlane_b32 s{S_T}, v{V_TK}")
        e("s_nop 0")
        e(f"s_cmp_eq_u32 s{S_T}, 3")
        e("s_cbranch_scc1 L_side_done")
        c("rare: not ready yet. Claim the job if nobody has, else wait for whoever did.")
        lab("L_check_loop")
        self.claim_and_init("L_side_done", "L_check_wait")
        lab("L_check_wait")
        e("s_sleep 8")
        self.spin_guard()
        e("s_branch L_check_loop")

        out += "\n".join(self.L) + "\n"
        out += f""".section .rodata,"a"
.p2align 6
.amdhsa_kernel {K}
  .amdhsa_next_free_vgpr {NVGPR}
  .amdhsa_next_free_sgpr 102
  .amdhsa_accum_offset {NVGPR}
  .amdhsa_group_segment_fixed_size 0
  .amdhsa_kernarg_size 72
  .amdhsa_user_sgpr_count 2
  .amdhsa_user_sgpr_kernarg_segment_ptr 1
  .amdhsa_system_sgpr_workgroup_id_x 1
.end_amdhsa_kernel
"""
        return out


def main():
    ap = argparse.ArgumentParser()
    ap.add_argument("-o", default=f"cdna_kernels/{NAME}.s")
    ap.add_argument("--pol", default="nt")
    ap.add_argument("--stamps", type=int, default=0)
    ap.add_argument("--group", type=int, default=8)
    ap.add_argument("--ring", type=int, default=3)
    ap.add_argument("--sleep", type=int, default=1)
    ap.add_argument("--spin", type=int, default=2000000)
    ap.add_argument("--rmul", type=int, default=13)
    ap.add_argument("--stpol", default="sc1")
    ap.add_argument("--ldpol", default="sc1")
    args = ap.parse_args()
    args.pol = (" " + args.pol.replace(",", " ")) if args.pol else ""
    args.stpol = (" " + args.stpol.replace(",", " ")) if args.stpol else ""
    args.ldpol = (" " + args.ldpol.replace(",", " ")) if args.ldpol else ""
    open(args.o, "w").write(G(args).gen())


if __name__ == "__main__":
    main()
```

```python
import argparse

from gen import HEADER, NAME, f32bits, CSCALE, CMASK

V_LANE = 1
V_T = 2
V_M = 10
V_L = 11
V_ALPHA = 12
V_ZERO = 13
V_FLAGA = 14
V_CONA = 15
V_BK = 16
V_BV = 24
V_AK = 28
V_AV = 36
V_TK = 38
V_F = 39
V_P = 40
V_S = 48
V_O = 64
V_V = 96
V_K = 112
V_Q = 176
V_MSK = 240
V_MT = 244
V_A8 = 252
V_A16 = 253
V_AOUT = 254
NVGPR = 256

S_SPLIT = 3
S_WAVE = 22
S_PAIR = 23
SRD_K = 24
SRD_V = 28
SRD_Q = 32
SRD_TK = 36
SRD_MSK = 44
SRD_OUT = 48
SRD_WS = 52
SRD_DBG = 56
S_OFF = 60
S_OFF2 = 61
S_IT = 62
S_C = 63
S_CM = 64
S_SLOT = 65
S_CI = 66
S_NEED = 67
S_LANDED = 68
S_CTR = 69
S_CHK = 70
S_SPIN = 71
S_T = 72
S_TKT = 82
S_EARLY = 83
S_ST = 84

NT = 64
LDS_Q = 3 * 32768
LDS_TREE = 3 * 32768 + 16384
LDS_FLAG = 131072
LDS_TOTAL = LDS_FLAG + 64

WS_STAT = 8 << 20
WS_CTR = 12 << 20
WS_STAMP = 32 << 20


class G:
    def __init__(self, args):
        self.a = args
        self.L = []
        self.uid = 0

    def e(self, s):
        self.L.append("    " + s)

    def lab(self, s):
        self.L.append(s + ":")

    def c(self, s):
        self.L.append("    ; " + s)

    def newlab(self, base):
        self.uid += 1
        return f"L_{base}_{self.uid}"

    def srd(self, d, lo, hi, nbytes):
        self.e(f"s_mov_b32 s{d}, s{lo}")
        self.e(f"s_and_b32 s{d+1}, s{hi}, 0xffff")
        self.e(f"s_mov_b32 s{d+2}, {nbytes}")
        self.e(f"s_mov_b32 s{d+3}, 0x00020000")

    def srd_off(self, d, lo, hi, soff, nbytes):
        self.e(f"s_add_u32 s{d}, s{lo}, s{soff}")
        self.e(f"s_addc_u32 s{d+1}, s{hi}, 0")
        self.e(f"s_and_b32 s{d+1}, s{d+1}, 0xffff")
        self.e(f"s_mov_b32 s{d+2}, {nbytes}")
        self.e(f"s_mov_b32 s{d+3}, 0x00020000")

    def stamp(self, i):
        if not self.a.stamps:
            return
        self.e(f"s_memrealtime s[{S_ST+2*i}:{S_ST+2*i+1}]")
        self.e("s_waitcnt lgkmcnt(0)")

    def stamp_store(self):
        if not self.a.stamps:
            return
        e = self.e
        e("s_memtime s[98:99]")
        self.stamp(5)
        e(f"s_getreg_b32 s{S_T}, hwreg(HW_REG_XCC_ID)")
        e(f"s_mul_i32 s{S_T+2}, s2, 5")
        e(f"s_add_u32 s{S_T+2}, s{S_T+2}, s{S_WAVE}")
        e(f"s_lshl_b32 s{S_T+2}, s{S_T+2}, 6")
        e(f"s_add_u32 s{S_T+2}, s{S_T+2}, {WS_STAMP}")
        for i in range(6):
            e(f"v_mov_b32 v{V_S+i}, s{S_ST+2*i}")
        e(f"v_mov_b32 v{V_S+6}, s{S_T}")
        e(f"v_mov_b32 v{V_S+7}, s{S_T+9}")
        e(f"v_mov_b32 v{V_S+8}, s96")
        e(f"v_mov_b32 v{V_S+9}, s98")
        e(f"v_mov_b32 v{V_S+10}, 0")
        e(f"v_mov_b32 v{V_S+11}, s{S_SPIN}")
        e(f"v_mov_b32 v{V_T}, 0")
        e("s_mov_b64 exec, 1")
        for q in range(3):
            e(f"buffer_store_dwordx4 v[{V_S+4*q}:{V_S+4*q+3}], v{V_T}, s[{SRD_WS}:{SRD_WS+3}], s{S_T+2} offen offset:{16*q}")
        e("s_mov_b64 exec, -1")

    def spin_guard(self):
        self.e(f"s_sub_u32 s{S_SPIN}, s{S_SPIN}, 1")
        self.e("s_cbranch_scc1 L_end")

    def dma_offsets(self, dk, dv):
        e = self.e
        T = V_T
        if dk is not None:
            e(f"v_xor_b32 v{T+3}, v{T+2}, v{T+1}")
            e(f"v_lshlrev_b32 v{T+3}, 4, v{T+3}")
            e(f"v_lshl_or_b32 v{T+3}, v{T+1}, 9, v{T+3}")
            for jj in range(8):
                e(f"v_xor_b32 v{dk+jj}, {(2*jj << 4) | ((jj >> 2) << 12)}, v{T+3}")
        if dv is not None:
            e(f"v_lshlrev_b32 v{T+4}, 2, v{T+1}")
            e(f"v_xor_b32 v{T+4}, v{T+2}, v{T+4}")
            e(f"v_lshlrev_b32 v{T+4}, 4, v{T+4}")
            e(f"v_lshl_or_b32 v{T+4}, v{T+1}, 9, v{T+4}")
            for x in range(4):
                e(f"v_xor_b32 v{dv+x}, {((x & 1) * 128) | ((x >> 1) << 12)}, v{T+4}")

    def piece(self, kind, j, srd, soffs, m0, vbase, pol):
        if j % 4 == 0:
            m0(j >> 2)
            self.e("s_nop 0")
        imm = (j & 3) * 1024
        if kind == "K":
            vo = vbase + (j & 7)
        else:
            vo = vbase + (j & 1) + 2 * ((j >> 2) & 1)
        self.e(f"buffer_load_dwordx4 v{vo}, s[{srd}:{srd+3}], {soffs[j >> 3]} offen offset:{imm}{pol} lds")

    def claim_and_init(self, l_ready, l_busy):
        e = self.e
        T = V_T
        e(f"v_mov_b32 v{T+6}, 1")
        e(f"v_mov_b32 v{T+7}, 0")
        e("s_mov_b64 exec, 1")
        e(f"buffer_atomic_cmpswap v[{T+6}:{T+7}], v{V_ZERO}, s[{SRD_DBG}:{SRD_DBG+3}], 0 offen sc0")
        e("s_mov_b64 exec, -1")
        e("s_waitcnt vmcnt(0)")
        e(f"v_readfirstlane_b32 s{S_T}, v{T+6}")
        e("s_nop 0")
        e(f"s_cmp_eq_u32 s{S_T}, 3")
        e(f"s_cbranch_scc1 {l_ready}")
        e(f"s_cmp_lg_u32 s{S_T}, 0")
        e(f"s_cbranch_scc1 {l_busy}")
        e(f"v_lshlrev_b32 v{T+6}, 8, v{V_LANE}")
        for i in range(4):
            e(f"s_mov_b32 s{S_T}, {WS_CTR + i*16384}")
            e(f"buffer_store_dword v{V_ZERO}, v{T+6}, s[{SRD_WS}:{SRD_WS+3}], s{S_T} offen sc1")
        e("s_waitcnt vmcnt(0)")
        e(f"v_mov_b32 v{T+6}, 3")
        e("s_mov_b64 exec, 1")
        e(f"buffer_atomic_swap v{T+6}, v{V_ZERO}, s[{SRD_DBG}:{SRD_DBG+3}], 0 offen")
        e("s_mov_b64 exec, -1")
        e(f"s_branch {l_ready}")

    def poll(self, need, sreg=S_LANDED, off=0, precheck=True):
        e = self.e
        lp, go = self.newlab("poll"), self.newlab("go")
        if precheck:
            e(f"s_cmp_ge_u32 s{sreg}, {need}")
            e(f"s_cbranch_scc1 {go}")
        self.lab(lp)
        e(f"ds_read_b32 v{V_F}, v{V_FLAGA} offset:{off}")
        e("s_waitcnt lgkmcnt(0)")
        e(f"v_readfirstlane_b32 s{sreg}, v{V_F}")
        e("s_nop 0")
        e(f"s_cmp_ge_u32 s{sreg}, {need}")
        e(f"s_cbranch_scc1 {go}")
        if self.a.sleep:
            e(f"s_sleep {self.a.sleep}")
        self.spin_guard()
        e(f"s_branch {lp}")
        self.lab(go)

    def read_k(self, base, dst=V_K):
        for kk in range(16):
            off = (kk >> 3) * 256
            self.e(f"ds_read_b128 v[{dst+4*kk}:{dst+4*kk+3}], v{base + (kk & 7)} offset:{off}")

    def read_v(self, base, kss):
        for ks in kss:
            for dtl in range(2):
                for jhi in range(2):
                    off = (16 * ks + 8 * jhi) * 512
                    r = V_V + 8 * ks + 4 * dtl + 2 * jhi
                    self.e(f"ds_read_b64_tr_b16 v[{r}:{r+1}], v{base + dtl} offset:{off}")

    def qk(self, counted):
        for kk in range(16):
            if counted:
                self.e(f"s_waitcnt lgkmcnt({15 - kk})")
            cin = "0" if kk == 0 else f"v[{V_S}:{V_S+15}]"
            self.e(f"v_mfma_f32_32x32x16_bf16 v[{V_S}:{V_S+15}], v[{V_K+4*kk}:{V_K+4*kk+3}], "
                   f"v[{V_Q+4*kk}:{V_Q+4*kk+3}], {cin}")

    def pv(self, kss, first=False):
        for ks in kss:
            for dtl in range(2):
                o = V_O + 16 * dtl
                r = V_V + 8 * ks + 4 * dtl
                cin = "0" if first else f"v[{o}:{o+15}]"
                self.e(f"v_mfma_f32_32x32x16_bf16 v[{o}:{o+15}], v[{r}:{r+3}], v[{V_P+4*ks}:{V_P+4*ks+3}], {cin}")

    def xhalf(self, op, dst, a, b):
        self.e(f"v_mov_b32 v{b}, v{a}")
        self.e("s_nop 1")
        self.e(f"v_permlane32_swap_b32 v{a}, v{b}")
        self.e("s_nop 1")
        self.e(f"{op} v{dst}, v{a}, v{b}")

    def pkmul(self, r, f):
        self.e(f"v_pk_mul_f32 v[{r}:{r+1}], v[{r}:{r+1}], v[{f}:{f+1}] op_sel_hi:[1,0]")

    def softmax(self):
        e = self.e
        S, T = V_S, V_T
        e(f"v_max3_f32 v{T}, v{S}, v{S+1}, v{S+2}")
        e(f"v_max3_f32 v{T+1}, v{S+3}, v{S+4}, v{S+5}")
        e(f"v_max3_f32 v{T+2}, v{S+6}, v{S+7}, v{S+8}")
        e(f"v_max3_f32 v{T+3}, v{S+9}, v{S+10}, v{S+11}")
        e(f"v_max3_f32 v{T}, v{T}, v{S+12}, v{S+13}")
        e(f"v_max3_f32 v{T+1}, v{T+1}, v{S+14}, v{S+15}")
        e(f"v_max3_f32 v{T}, v{T}, v{T+1}, v{T+2}")
        e(f"v_max_f32 v{T}, v{T}, v{T+3}")
        self.xhalf("v_max_f32", T, T, T + 1)
        e(f"v_mul_f32 v{T}, s{S_C}, v{T}")
        e(f"v_max_f32 v{T}, v{T}, v{V_M}")
        e(f"v_sub_f32 v{T+1}, v{V_M}, v{T}")
        e(f"v_mov_b32 v{V_M}, v{T}")
        e(f"v_exp_f32 v{V_ALPHA}, v{T+1}")
        for i in range(16):
            e(f"v_fma_f32 v{S+i}, v{S+i}, s{S_C}, -v{V_M}")
        for i in range(16):
            e(f"v_exp_f32 v{S+i}, v{S+i}")
        for i in range(0, 32, 2):
            self.pkmul(V_O + i, V_ALPHA)
        for i in range(8):
            e(f"v_cvt_pk_bf16_f32 v{V_P+i}, v{S+2*i}, v{S+2*i+1}")
        e(f"v_add_f32 v{T}, v{S}, v{S+1}")
        e(f"v_add_f32 v{T+1}, v{S+2}, v{S+3}")
        for i in range(4, 16, 2):
            e(f"v_add_f32 v{T}, v{T}, v{S+i}")
            e(f"v_add_f32 v{T+1}, v{T+1}, v{S+i+1}")
        e(f"v_add_f32 v{T}, v{T}, v{T+1}")
        e(f"v_fma_f32 v{V_L}, v{V_L}, v{V_ALPHA}, v{T}")

    def gen(self):
        a = self.a
        e, lab, c = self.e, self.lab, self.c
        T = V_T
        S = V_S
        Gp, R = a.group, a.ring
        GPT = 32 // Gp
        K = NAME + "_kernel"
        out = HEADER + f"; @launch grid=(256,1,1) block=(320,1,1) lds={LDS_TOTAL}\n"
        out += '.amdgcn_target "amdgcn-amd-amdhsa--gfx950"\n.text\n'
        out += f".globl {K}\n.p2align 8\n.type {K},@function\n{K}:\n"

        e("s_cmp_ge_u32 s2, 256")
        e("s_cbranch_scc1 L_end")
        if a.stamps:
            e("s_memtime s[96:97]")
        self.stamp(0)
        e("s_load_dwordx16 s[4:19], s[0:1], 0")
        e("s_load_dwordx2 s[20:21], s[0:1], 64")
        e(f"v_lshrrev_b32 v{T}, 6, v0")
        e(f"v_and_b32 v{V_LANE}, 63, v0")
        e(f"v_readfirstlane_b32 s{S_WAVE}, v{T}")
        e(f"v_lshrrev_b32 v{T+1}, 5, v{V_LANE}")
        e(f"v_and_b32 v{T+2}, 31, v{V_LANE}")
        e(f"s_and_b32 s{S_PAIR}, s2, 63")
        e(f"s_lshr_b32 s{S_SPLIT}, s2, 6")
        e(f"v_mov_b32 v{V_FLAGA}, {LDS_FLAG}")
        e(f"v_mov_b32 v{V_ZERO}, 0")
        e(f"s_mov_b32 s{S_SPIN}, {a.spin}")
        if a.stamps:
            e(f"s_mov_b32 s{S_T+9}, 0")
        e(f"s_cmp_lg_u32 s{S_WAVE}, 0")
        e("s_cbranch_scc1 L_consumer")

        c("================= loader wave =================")
        e("s_setprio 3")
        self.dma_offsets(V_BK, V_BV)
        c("tile order is rotated per pair (de-phases the streams): byte offset in split = ((t + 13*pair) & 63) << 14")
        e(f"s_mul_i32 s{S_OFF}, s{S_PAIR}, {a.rmul << 14}")
        e(f"s_and_b32 s{S_OFF}, s{S_OFF}, 0xfffff")
        e(f"s_add_u32 s{S_OFF2}, s{S_OFF}, 8192")
        e(f"s_lshl_b32 s{S_T}, s{S_PAIR}, 22")
        e(f"s_lshl_b32 s{S_T+1}, s{S_SPLIT}, 20")
        e(f"s_add_u32 s{S_T}, s{S_T}, s{S_T+1}")
        e(f"s_mov_b32 s{S_SLOT}, 0")
        e("s_waitcnt lgkmcnt(0)")
        self.srd_off(SRD_K, 6, 7, S_T, 1 << 20)
        self.srd_off(SRD_V, 8, 9, S_T, 1 << 20)
        soffs = [f"s{S_OFF}", f"s{S_OFF2}"]

        def m0_slot(base):
            def f(q):
                e(f"s_add_u32 m0, s{S_SLOT}, {base + q*4096}")
            return f

        def m0_abs(base):
            def f(q):
                e(f"s_mov_b32 m0, {base + q*4096}")
            return f

        def group(g):
            for p in range(g * Gp, (g + 1) * Gp):
                if p < 16:
                    self.piece("K", p, SRD_K, soffs, m0_slot(0), V_BK, a.polk)
                else:
                    self.piece("V", p - 16, SRD_V, soffs, m0_slot(16384), V_BV, a.polv)

        def publish():
            e(f"s_waitcnt vmcnt({(R-1)*Gp})")
            e(f"v_add_u32 v{V_F}, 1, v{V_F}")
            e(f"ds_write_b32 v{V_FLAGA}, v{V_F}")

        assert R <= GPT
        for g in range(R):
            group(g)
        if a.stamps:
            self.srd(SRD_WS, 20, 21, 64 << 20)
        e(f"ds_write_b32 v{V_FLAGA}, v{V_ZERO}")
        e(f"ds_write_b32 v{V_FLAGA}, v{V_ZERO} offset:4")
        e(f"v_mov_b32 v{V_F}, 0")
        e("s_waitcnt lgkmcnt(0)")
        e("s_barrier")
        for g in range(R, GPT):
            publish()
            group(g)
        e(f"s_mov_b32 s{S_IT}, 1")
        lab("L_ld_loop")
        e(f"s_add_u32 s{S_OFF}, s{S_OFF}, 16384")
        e(f"s_and_b32 s{S_OFF}, s{S_OFF}, 0xfffff")
        e(f"s_add_u32 s{S_OFF2}, s{S_OFF}, 8192")
        e(f"s_add_u32 s{S_SLOT}, s{S_SLOT}, 32768")
        e(f"s_and_b32 s{S_SLOT}, s{S_SLOT}, 0x1ffff")
        c("slot free?  consumed = 1 after Q/tree were read, t+2 after tile t; need min + 2 >= tile index")
        e(f"ds_read_b128 v[{V_S}:{V_S+3}], v{V_FLAGA} offset:16")
        publish()
        lab("L_ld_chk")
        e("s_waitcnt lgkmcnt(0)")
        e(f"v_min_u32 v{V_S}, v{V_S}, v{V_S+1}")
        e(f"v_min3_u32 v{V_S}, v{V_S}, v{V_S+2}, v{V_S+3}")
        e("s_nop 0")
        e(f"v_readfirstlane_b32 s{S_T}, v{V_S}")
        e("s_nop 0")
        e(f"s_add_u32 s{S_T}, s{S_T}, 2")
        e(f"s_cmp_ge_u32 s{S_T}, s{S_IT}")
        e("s_cbranch_scc1 L_ld_free")
        if a.stamps:
            e(f"s_add_u32 s{S_T+9}, s{S_T+9}, 1")
        e("s_sleep 1")
        self.spin_guard()
        e(f"ds_read_b128 v[{V_S}:{V_S+3}], v{V_FLAGA} offset:16")
        e("s_branch L_ld_chk")
        lab("L_ld_free")
        if a.stamps:
            for ti, si in ((4, 1), (16, 2), (40, 4)):
                l2 = self.newlab("pst")
                e(f"s_cmp_lg_u32 s{S_IT}, {ti}")
                e(f"s_cbranch_scc1 {l2}")
                self.stamp(si)
                lab(l2)
        group(0)
        for g in range(1, GPT):
            publish()
            group(g)
        e(f"s_add_u32 s{S_IT}, s{S_IT}, 1")
        e(f"s_cmp_lt_u32 s{S_IT}, {NT}")
        e("s_cbranch_scc1 L_ld_loop")
        c("drain")
        for r in range(R - 1, -1, -1):
            e(f"s_waitcnt vmcnt({r*Gp})")
            e(f"v_add_u32 v{V_F}, 1, v{V_F}")
            e(f"ds_write_b32 v{V_FLAGA}, v{V_F}")
        self.stamp(3)
        self.stamp_store()
        e("s_endpgm")

        lab("L_consumer")
        c("================= consumer waves =================")
        e(f"s_sub_u32 s{S_CI}, s{S_WAVE}, 1")
        e(f"s_lshl_b32 s{S_T}, s{S_CI}, 2")
        e(f"s_add_u32 s{S_T}, s{S_T}, {LDS_FLAG + 16}")
        e(f"v_mov_b32 v{V_CONA}, s{S_T}")
        e(f"ds_write_b32 v{V_CONA}, v{V_ZERO}")
        c("DMA source offsets (temporarily in the K / V fragment registers)")
        self.dma_offsets(V_K, V_K + 8)
        e(f"s_lshl_b32 s{S_T+1}, s{S_PAIR}, 14")
        e(f"s_lshl_b32 s{S_T+2}, s{S_PAIR}, 13")
        c("Q pieces 4c..4c+3: source offsets of pieces (4c+i)&7, soffset (c>>1)*8192, LDS_Q + c*4096")
        e(f"s_and_b32 s{S_T+3}, s{S_CI}, 1")
        e(f"s_mul_i32 s{S_T+3}, s{S_T+3}, {128 | 4096}")
        for i in range(4):
            e(f"v_xor_b32 v{V_K+12+i}, s{S_T+3}, v{V_K+i}")
        e(f"s_lshr_b32 s{S_T+4}, s{S_CI}, 1")
        e(f"s_lshl_b32 s{S_T+4}, s{S_T+4}, 13")
        e(f"s_lshl_b32 s{S_T+5}, s{S_CI}, 12")
        e("s_waitcnt lgkmcnt(0)")
        self.srd_off(SRD_Q, 4, 5, S_T + 1, 16384)
        e(f"s_add_u32 m0, s{S_T+5}, {LDS_Q}")
        e("s_nop 0")
        for i in range(4):
            e(f"buffer_load_dwordx4 v{V_K+12+i}, s[{SRD_Q}:{SRD_Q+3}], s{S_T+4} offen offset:{i*1024} lds")
        e(f"s_cmp_lg_u32 s{S_SPLIT}, 3")
        e("s_cbranch_scc1 L_c_notree0")
        c("split 3: consumer 0 stages tree K, consumer 1 tree V; everyone loads its mask words")
        self.srd(SRD_MSK, 14, 15, 4096)
        e(f"v_and_b32 v{T+6}, 15, v{V_LANE}")
        e(f"v_lshlrev_b32 v{T+6}, 5, v{T+6}")
        e(f"v_lshl_or_b32 v{T+6}, v{T+1}, 3, v{T+6}")
        e(f"s_lshr_b32 s{S_T+4}, s{S_PAIR}, 3")
        e(f"s_lshl_b32 s{S_T+4}, s{S_T+4}, 9")
        e(f"buffer_load_dwordx2 v[{V_MSK}:{V_MSK+1}], v{T+6}, s[{SRD_MSK}:{SRD_MSK+3}], s{S_T+4} offen")
        e(f"buffer_load_dwordx2 v[{V_MSK+2}:{V_MSK+3}], v{T+6}, s[{SRD_MSK}:{SRD_MSK+3}], s{S_T+4} offen offset:16")
        e(f"s_cmp_lg_u32 s{S_CI}, 0")
        e("s_cbranch_scc1 L_c_tk_done")
        self.srd_off(SRD_TK, 10, 11, S_T + 2, 8192)
        for j in range(8):
            self.piece("K", j, SRD_TK, ["0"], m0_abs(LDS_TREE), V_K, "")
        lab("L_c_tk_done")
        e(f"s_cmp_lg_u32 s{S_CI}, 1")
        e("s_cbranch_scc1 L_c_notree0")
        self.srd_off(SRD_TK, 12, 13, S_T + 2, 8192)
        for j in range(8):
            self.piece("V", j, SRD_TK, ["0"], m0_abs(LDS_TREE + 8192), V_K + 8, "")
        lab("L_c_notree0")
        e("s_barrier")
        self.stamp(1)
        self.stamp(2)
        self.srd_off(SRD_OUT, 16, 17, S_T + 1, 16384)
        self.srd(SRD_WS, 20, 21, 64 << 20)
        self.srd(SRD_DBG, 18, 19, 256)
        c("LDS read bases")
        e(f"v_and_b32 v{T+3}, 15, v{T+2}")
        e(f"v_xor_b32 v{T+3}, v{T+3}, v{T+1}")
        e(f"v_lshlrev_b32 v{T+3}, 4, v{T+3}")
        e(f"v_lshl_or_b32 v{T+3}, v{T+2}, 9, v{T+3}")
        for ee in range(8):
            e(f"v_xor_b32 v{V_BK+ee}, {2*ee << 4}, v{T+3}")
        e(f"v_bfe_u32 v{T+3}, v{V_LANE}, 2, 2")
        e(f"v_lshl_add_u32 v{T+4}, v{T+1}, 2, v{T+3}")
        e(f"v_lshlrev_b32 v{T+4}, 9, v{T+4}")
        e(f"v_lshl_or_b32 v{T+4}, v{T+3}, 6, v{T+4}")
        e(f"v_bfe_u32 v{T+3}, v{V_LANE}, 4, 1")
        e(f"v_lshl_or_b32 v{T+4}, v{T+3}, 5, v{T+4}")
        e(f"v_and_b32 v{T+3}, 3, v{V_LANE}")
        e(f"v_lshl_or_b32 v{T+4}, v{T+3}, 3, v{T+4}")
        c("d-tiles 2c, 2c+1: xor (dt&3)<<6, + (dt>>2)*256, + 16384 (V half of slot)")
        e(f"s_and_b32 s{S_T}, s{S_CI}, 1")
        e(f"s_lshl_b32 s{S_T}, s{S_T}, 7")
        e(f"s_lshr_b32 s{S_T+1}, s{S_CI}, 1")
        e(f"s_lshl_b32 s{S_T+1}, s{S_T+1}, 8")
        e(f"s_add_u32 s{S_T+1}, s{S_T+1}, 16384")
        e(f"s_or_b32 s{S_T}, s{S_T}, s{S_T+1}")
        e(f"v_xor_b32 v{V_BV}, s{S_T}, v{T+4}")
        e(f"v_xor_b32 v{V_BV+1}, 64, v{V_BV}")
        e(f"s_mov_b32 s{S_C}, 0x{f32bits(CSCALE):08x}")
        e(f"s_mov_b32 s{S_CM}, 0x{f32bits(CMASK):08x}")
        e(f"s_mov_b32 s{S_IT}, 0")
        e(f"s_mov_b32 s{S_SLOT}, 0")
        e(f"s_mov_b32 s{S_LANDED}, 0")
        e(f"s_lshl_b32 s{S_CTR}, s{S_PAIR}, 2")
        e(f"s_add_u32 s{S_CTR}, s{S_CTR}, s{S_CI}")
        e(f"s_lshl_b32 s{S_CTR}, s{S_CTR}, 8")
        e(f"s_add_u32 s{S_CTR}, s{S_CTR}, {WS_CTR}")
        e(f"v_lshlrev_b32 v{V_A16}, 4, v{V_LANE}")
        e(f"v_lshlrev_b32 v{V_A8}, 3, v{V_LANE}")
        c("output address: q = l&31, d = 64*c + 8*g8 + 4*h")
        e(f"v_lshlrev_b32 v{V_AOUT}, 9, v{T+2}")
        e(f"v_lshl_or_b32 v{V_AOUT}, v{T+1}, 3, v{V_AOUT}")
        e(f"s_mov_b32 s{S_EARLY}, 0")
        e(f"s_mov_b32 s{S_TKT}, 0")
        e(f"s_and_b32 s{S_CHK}, s2, 31")
        e(f"s_add_u32 s{S_CHK}, s{S_CHK}, 16")
        for ee in range(8):
            e(f"v_add_u32 v{V_AK+ee}, {LDS_Q}, v{V_BK+ee}")
        e(f"v_mov_b32 v{V_F}, 1")
        c("own staged pieces landed -> count; wait for all four consumers")
        e("s_waitcnt vmcnt(0)")
        e("s_mov_b64 exec, 1")
        e(f"ds_add_u32 v{V_FLAGA}, v{V_F} offset:4")
        e("s_mov_b64 exec, -1")
        self.poll("4", sreg=S_NEED, off=4, precheck=False)
        self.read_k(V_AK, V_Q)

        e(f"s_cmp_lg_u32 s{S_SPLIT}, 3")
        e("s_cbranch_scc1 L_notree")
        c("---- tree tile (16 keys, masked) ----")
        for ee in range(8):
            e(f"v_add_u32 v{V_AK+ee}, {LDS_TREE}, v{V_BK+ee}")
        for ee in range(2):
            e(f"v_add_u32 v{V_AV+ee}, {LDS_TREE + 8192 - 16384}, v{V_BV+ee}")
        self.read_k(V_AK)
        self.read_v(V_AV, [0])
        for i in range(4):
            e(f"v_lshlrev_b32 v{V_MT+2*i}, 16, v{V_MSK+i}")
            e(f"v_and_b32 v{V_MT+2*i+1}, 0xffff0000, v{V_MSK+i}")
        for i in range(8):
            e(f"v_sub_f32 v{V_MT+i}, 1.0, v{V_MT+i}")
        for i in range(8):
            e(f"v_mul_f32 v{V_MT+i}, s{S_CM}, v{V_MT+i}")
        e(f"v_mov_b32 v{V_F}, 1")
        e("s_waitcnt lgkmcnt(0)")
        e(f"ds_write_b32 v{V_CONA}, v{V_F}")
        self.qk(False)
        e("s_nop 15")
        for i in range(8):
            e(f"v_fma_f32 v{S+i}, v{S+i}, s{S_C}, v{V_MT+i}")
        e(f"v_max3_f32 v{T}, v{S}, v{S+1}, v{S+2}")
        e(f"v_max3_f32 v{T+1}, v{S+3}, v{S+4}, v{S+5}")
        e(f"v_max3_f32 v{T}, v{T}, v{S+6}, v{S+7}")
        e(f"v_max_f32 v{T}, v{T}, v{T+1}")
        self.xhalf("v_max_f32", V_M, T, T + 1)
        for i in range(8):
            e(f"v_sub_f32 v{S+i}, v{S+i}, v{V_M}")
        for i in range(8):
            e(f"v_exp_f32 v{S+i}, v{S+i}")
        e("s_nop 0")
        e(f"v_add_f32 v{V_L}, v{S}, v{S+1}")
        for i in range(2, 8):
            e(f"v_add_f32 v{V_L}, v{V_L}, v{S+i}")
        for i in range(4):
            e(f"v_cvt_pk_bf16_f32 v{V_P+i}, v{S+2*i}, v{S+2*i+1}")
        e("s_nop 1")
        self.pv([0], first=True)
        e("s_branch L_init")
        lab("L_notree")
        e(f"v_mov_b32 v{V_M}, 0xff800000")
        e(f"v_mov_b32 v{V_L}, 0")
        for i in range(32):
            e(f"v_mov_b32 v{V_O+i}, 0")
        e(f"v_mov_b32 v{V_F}, 1")
        e("s_waitcnt lgkmcnt(0)")
        e(f"ds_write_b32 v{V_CONA}, v{V_F}")
        lab("L_init")
        c("counter initialisation: consumer 0 of workgroup 0 claims d_debug[0] and zeroes all merge counters")
        e(f"s_or_b32 s{S_T}, s{S_CI}, s2")
        e(f"s_cmp_lg_u32 s{S_T}, 0")
        e("s_cbranch_scc1 L_loop")
        self.claim_and_init("L_loop", "L_loop")

        self.L.append(".p2align 6")
        lab("L_loop")
        for ee in range(8):
            e(f"v_add_u32 v{V_AK+ee}, s{S_SLOT}, v{V_BK+ee}")
        for ee in range(2):
            e(f"v_add_u32 v{V_AV+ee}, s{S_SLOT}, v{V_BV+ee}")
        e(f"s_mul_i32 s{S_NEED}, s{S_IT}, {GPT}")
        e(f"s_add_u32 s{S_NEED}, s{S_NEED}, {GPT//2}")
        self.poll(f"s{S_NEED}")
        self.read_k(V_AK)
        c("rare side jobs")
        e(f"s_cmp_ge_u32 s{S_IT}, {NT-2}")
        e("s_cbranch_scc1 L_ticket")
        e(f"s_cmp_eq_u32 s{S_IT}, s{S_CHK}")
        e("s_cbranch_scc1 L_check")
        lab("L_side_done")
        self.qk(True)
        e("s_nop 15")
        self.softmax()
        e(f"s_cmp_eq_u32 s{S_IT}, {NT-1}")
        e("s_cbranch_scc1 L_early")
        lab("L_early_done")
        e(f"s_add_u32 s{S_NEED}, s{S_NEED}, {GPT//2}")
        self.poll(f"s{S_NEED}")
        self.read_v(V_AV, [0, 1])
        e(f"s_add_u32 s{S_IT}, s{S_IT}, 1")
        e(f"s_add_u32 s{S_T}, s{S_IT}, 1")
        e(f"v_mov_b32 v{V_F}, s{S_T}")
        e(f"s_add_u32 s{S_SLOT}, s{S_SLOT}, 32768")
        e(f"s_and_b32 s{S_SLOT}, s{S_SLOT}, 0x1ffff")
        e("s_waitcnt lgkmcnt(0)")
        e(f"ds_write_b32 v{V_CONA}, v{V_F}")
        self.pv([0, 1])
        e(f"s_cmp_lt_u32 s{S_IT}, {NT}")
        e("s_cbranch_scc1 L_loop")
        self.stamp(3)

        A8, A16, AOUT = V_A8, V_A16, V_AOUT

        def issue_loads():
            c("stats of splits s^1, s^2, s^3 -> v[S+2i:S+2i+1]; partial O -> V_K + 32*(i-1)")
            e(f"s_lshl_b32 s{S_T}, s{S_PAIR}, 4")
            e(f"s_add_u32 s{S_T}, s{S_T}, s{S_CI}")
            for i in range(1, 4):
                e(f"s_xor_b32 s{S_T+1}, s{S_SPLIT}, {i}")
                e(f"s_lshl_b32 s{S_T+1}, s{S_T+1}, 2")
                e(f"s_add_u32 s{S_T+4+i}, s{S_T+1}, s{S_T}")
                e(f"s_lshl_b32 s{S_T+3}, s{S_T+4+i}, 9")
                e(f"s_add_u32 s{S_T+3}, s{S_T+3}, {WS_STAT}")
                e(f"buffer_load_dwordx2 v[{S+2*i}:{S+2*i+1}], v{A8}, s[{SRD_WS}:{SRD_WS+3}], s{S_T+3} offen{a.ldpol}")
            for i in range(1, 4):
                e(f"s_lshl_b32 s{S_T+1}, s{S_T+4+i}, 13")
                e(f"s_add_u32 s{S_T+2}, s{S_T+1}, 4096")
                for rq in range(8):
                    so = S_T + 1 + (rq >> 2)
                    r = V_K + 32 * (i - 1) + 4 * rq
                    e(f"buffer_load_dwordx4 v[{r}:{r+3}], v{A16}, s[{SRD_WS}:{SRD_WS+3}], s{so} offen offset:{(rq & 3)*1024}{a.ldpol}")
        self.issue_loads = issue_loads

        c("---- end of stream: merge the 4 splits ----")
        self.xhalf("v_add_f32", V_L, V_L, T)
        e(f"s_cmp_eq_u32 s{S_EARLY}, 1")
        e("s_cbranch_scc1 L_combine")
        e(f"s_and_b32 s{S_T+6}, s{S_TKT}, 0xffff")
        e(f"s_cmp_ge_u32 s{S_T+6}, 3")
        e("s_cbranch_scc1 L_wait_done")
        c("not last: publish partial (write-through), then bump the done count")
        e(f"s_lshl_b32 s{S_T}, s{S_PAIR}, 4")
        e(f"s_add_u32 s{S_T}, s{S_T}, s{S_CI}")
        e(f"s_lshl_b32 s{S_T+1}, s{S_SPLIT}, 2")
        e(f"s_add_u32 s{S_T}, s{S_T}, s{S_T+1}")
        e(f"s_lshl_b32 s{S_T+1}, s{S_T}, 13")
        e(f"s_add_u32 s{S_T+2}, s{S_T+1}, 4096")
        e(f"s_lshl_b32 s{S_T+3}, s{S_T}, 9")
        e(f"s_add_u32 s{S_T+3}, s{S_T+3}, {WS_STAT}")
        e(f"buffer_store_dwordx2 v[{V_M}:{V_M+1}], v{A8}, s[{SRD_WS}:{SRD_WS+3}], s{S_T+3} offen{a.stpol}")
        for rq in range(8):
            so = S_T + 1 + (rq >> 2)
            e(f"buffer_store_dwordx4 v[{V_O+4*rq}:{V_O+4*rq+3}], v{A16}, s[{SRD_WS}:{SRD_WS+3}], s{so} offen offset:{(rq & 3)*1024}{a.stpol}")
        e(f"v_mov_b32 v{V_TK}, 0x10000")
        e("s_waitcnt vmcnt(0)")
        e("s_mov_b64 exec, 1")
        e(f"buffer_atomic_add v{V_TK}, v{V_ZERO}, s[{SRD_WS}:{SRD_WS+3}], s{S_CTR} offen")
        e("s_mov_b64 exec, -1")
        if a.stamps:
            self.stamp(4)
            e(f"s_mov_b32 s{S_T+9}, 0")
            e("s_branch L_fin")
        else:
            e("s_endpgm")

        c("last arriver: wait until the other three have published")
        lab("L_wait_done")
        e("s_mov_b64 exec, 1")
        e(f"buffer_load_dword v{V_TK}, v{V_ZERO}, s[{SRD_WS}:{SRD_WS+3}], s{S_CTR} offen sc1")
        e("s_mov_b64 exec, -1")
        e("s_waitcnt vmcnt(0)")
        e(f"v_readfirstlane_b32 s{S_TKT}, v{V_TK}")
        self.spin_guard()
        e(f"s_lshr_b32 s{S_T+6}, s{S_TKT}, 16")
        e(f"s_cmp_lg_u32 s{S_T+6}, 3")
        e("s_cbranch_scc1 L_wait_done")
        issue_loads()
        lab("L_combine")
        self.stamp(4)
        e(f"v_mov_b32 v{S}, v{V_M}")
        e(f"v_mov_b32 v{S+1}, v{V_L}")
        e(f"s_lshl_b32 s{S_T+8}, s{S_CI}, 7")
        e("s_waitcnt vmcnt(24)")
        e(f"v_max_f32 v{T}, v{S}, v{S+2}")
        e(f"v_max3_f32 v{V_M}, v{T}, v{S+4}, v{S+6}")
        F = [S + 8, S + 10, S + 12, S + 14]
        for i in range(4):
            e(f"v_sub_f32 v{F[i]}, v{S+2*i}, v{V_M}")
        for i in range(4):
            e(f"v_exp_f32 v{F[i]}, v{F[i]}")
        e("s_nop 0")
        for i in range(4):
            e(f"v_mul_f32 v{F[i]+1}, v{F[i]}, v{S+2*i+1}")
        e(f"v_add_f32 v{T}, v{F[0]+1}, v{F[1]+1}")
        e(f"v_add_f32 v{T+1}, v{F[2]+1}, v{F[3]+1}")
        e(f"v_add_f32 v{V_L}, v{T}, v{T+1}")
        e(f"v_rcp_f32 v{V_ALPHA}, v{V_L}")
        e("s_nop 0")
        for i in range(4):
            e(f"v_mul_f32 v{F[i]}, v{F[i]}, v{V_ALPHA}")
        src = [V_O, V_K, V_K + 32, V_K + 64]
        for i in range(4):
            if i:
                e(f"s_waitcnt vmcnt({24 - 8*i})")
            for r in range(0, 32, 2):
                self.pkmul(src[i] + r, F[i])
            if i == 1:
                for r in range(0, 32, 2):
                    e(f"v_pk_add_f32 v[{V_O+r}:{V_O+r+1}], v[{V_O+r}:{V_O+r+1}], v[{src[1]+r}:{src[1]+r+1}]")
        for g8 in range(8):
            for r in (4 * g8, 4 * g8 + 2):
                e(f"v_pk_add_f32 v[{src[2]+r}:{src[2]+r+1}], v[{src[2]+r}:{src[2]+r+1}], v[{src[3]+r}:{src[3]+r+1}]")
            for r in (4 * g8, 4 * g8 + 2):
                e(f"v_pk_add_f32 v[{V_O+r}:{V_O+r+1}], v[{V_O+r}:{V_O+r+1}], v[{src[2]+r}:{src[2]+r+1}]")
            rr = V_K + 2 * g8
            e(f"v_cvt_pk_bf16_f32 v{rr}, v{V_O+4*g8}, v{V_O+4*g8+1}")
            e(f"v_cvt_pk_bf16_f32 v{rr+1}, v{V_O+4*g8+2}, v{V_O+4*g8+3}")
            e(f"buffer_store_dwordx2 v[{rr}:{rr+1}], v{AOUT}, s[{SRD_OUT}:{SRD_OUT+3}], s{S_T+8} offen offset:{g8*16}")
        if a.stamps:
            e("s_waitcnt vmcnt(0)")
            e(f"s_mov_b32 s{S_T+9}, 1")
            lab("L_fin")
            self.stamp_store()
        lab("L_end")
        e("s_endpgm")

        c("---- side jobs (out of line) ----")
        lab("L_ticket")
        e(f"s_cmp_eq_u32 s{S_IT}, {NT-1}")
        e("s_cbranch_scc1 L_pre")
        c("second to last tile: take the arrival ticket; set up the epilogue addresses")
        e(f"v_mov_b32 v{V_TK}, 1")
        e("s_mov_b64 exec, 1")
        e(f"buffer_atomic_add v{V_TK}, v{V_ZERO}, s[{SRD_WS}:{SRD_WS+3}], s{S_CTR} offen sc0")
        e("s_mov_b64 exec, -1")
        e("s_branch L_side_done")
        lab("L_pre")
        c("last tile: read the ticket; the last arriver refreshes the done count")
        e("s_waitcnt vmcnt(0)")
        e(f"v_readfirstlane_b32 s{S_TKT}, v{V_TK}")
        e("s_nop 0")
        e(f"s_and_b32 s{S_T}, s{S_TKT}, 0xffff")
        e(f"s_cmp_lg_u32 s{S_T}, 3")
        e("s_cbranch_scc1 L_side_done")
        e("s_mov_b64 exec, 1")
        e(f"buffer_load_dword v{V_TK}, v{V_ZERO}, s[{SRD_WS}:{SRD_WS+3}], s{S_CTR} offen sc1")
        e("s_mov_b64 exec, -1")
        e("s_branch L_side_done")
        lab("L_early")
        c("last tile, softmax done: if every other split has published, start loading their partials now")
        e(f"s_and_b32 s{S_T}, s{S_TKT}, 0xffff")
        e(f"s_cmp_lg_u32 s{S_T}, 3")
        e("s_cbranch_scc1 L_early_done")
        e("s_waitcnt vmcnt(0)")
        e(f"v_readfirstlane_b32 s{S_T}, v{V_TK}")
        e("s_nop 0")
        e(f"s_lshr_b32 s{S_T}, s{S_T}, 16")
        e(f"s_cmp_lg_u32 s{S_T}, 3")
        e("s_cbranch_scc1 L_early_done")
        issue_loads()
        e(f"s_mov_b32 s{S_EARLY}, 1")
        e("s_branch L_early_done")
        lab("L_check")
        c("consumer 0 makes sure the merge counters have been zeroed (the ring dependency covers the others)")
        e(f"s_cmp_lg_u32 s{S_CI}, 0")
        e("s_cbranch_scc1 L_side_done")
        e("s_mov_b64 exec, 1")
        e(f"buffer_load_dword v{V_TK}, v{V_ZERO}, s[{SRD_DBG}:{SRD_DBG+3}], 0 offen sc1")
        e("s_mov_b64 exec, -1")
        e("s_waitcnt vmcnt(0)")
        e(f"v_readfirstlane_b32 s{S_T}, v{V_TK}")
        e("s_nop 0")
        e(f"s_cmp_eq_u32 s{S_T}, 3")
        e("s_cbranch_scc1 L_side_done")
        c("rare: not ready yet. Claim the job if nobody has, else wait for whoever did.")
        lab("L_check_loop")
        self.claim_and_init("L_side_done", "L_check_wait")
        lab("L_check_wait")
        e("s_sleep 8")
        self.spin_guard()
        e("s_branch L_check_loop")

        out += "\n".join(self.L) + "\n"
        out += f""".section .rodata,"a"
.p2align 6
.amdhsa_kernel {K}
  .amdhsa_next_free_vgpr {NVGPR}
  .amdhsa_next_free_sgpr 102
  .amdhsa_accum_offset {NVGPR}
  .amdhsa_group_segment_fixed_size 0
  .amdhsa_kernarg_size 72
  .amdhsa_user_sgpr_count 2
  .amdhsa_user_sgpr_kernarg_segment_ptr 1
  .amdhsa_system_sgpr_workgroup_id_x 1
.end_amdhsa_kernel
"""
        return out


def main():
    ap = argparse.ArgumentParser()
    ap.add_argument("-o", default=f"cdna_kernels/{NAME}.s")
    ap.add_argument("--polk", default="nt")
    ap.add_argument("--polv", default="nt")
    ap.add_argument("--stamps", type=int, default=0)
    ap.add_argument("--group", type=int, default=8)
    ap.add_argument("--ring", type=int, default=3)
    ap.add_argument("--sleep", type=int, default=4)
    ap.add_argument("--spin", type=int, default=2000000)
    ap.add_argument("--rmul", type=int, default=13)
    ap.add_argument("--stpol", default="sc1")
    ap.add_argument("--ldpol", default="sc1")
    args = ap.parse_args()
    args.polk = (" " + args.polk.replace(",", " ")) if args.polk else ""
    args.polv = (" " + args.polv.replace(",", " ")) if args.polv else ""
    args.stpol = (" " + args.stpol.replace(",", " ")) if args.stpol else ""
    args.ldpol = (" " + args.ldpol.replace(",", " ")) if args.ldpol else ""
    open(args.o, "w").write(G(args).gen())


if __name__ == "__main__":
    main()
```

```python
import argparse

from gen import HEADER, NAME, f32bits, CSCALE, CMASK

V_LANE = 1
V_T = 2
V_M = 10
V_L = 11
V_ALPHA = 12
V_ZERO = 13
V_FLAGA = 14
V_RELA = 15
V_BK = 16
V_BV = 17
V_PB = 18
V_AB = 19
V_A8 = 20
V_A16 = 21
V_AOUT = 22
V_PA = 23
V_AA = 24
V_PDA = 25
V_F0 = 26
V_AK = 28
V_AV = 28
V_F1 = 36
V_TK = 38
V_F = 39
V_P = 40
V_S = 48
V_O = 64
V_K = 128
V_V = 128
V_X = 144
V_Q = 192
V_MSK = 96
V_MT = 100
V_LD = 64
NVGPR = 256

S_SPLIT = 3
S_WAVE = 22
S_PAIR = 23
SRD_K = 24
SRD_V = 28
SRD_Q = 32
SRD_TK = 36
S_U0 = 40
S_N = 41
S_J = 42
S_PS0 = 43
SRD_MSK = 44
SRD_OUT = 48
SRD_WS = 52
SRD_DBG = 56
S_OFF = 60
S_OFF2 = 61
S_U = 62
S_C = 63
S_CM = 64
S_SLOT = 65
S_CI = 66
S_NEED = 67
S_LANDED = 68
S_CTR = 69
S_PCNT = 70
S_SPIN = 71
S_T = 72
S_TKT = 82
S_EARLY = 83
S_ST = 84
S_PD0 = 100
S_PD1 = 101
S_ISS = 43
S_TB = 70

N1, N2 = 12, 52
NU = 128
LDS_RING = 0
LDS_P = 49152
LDS_AL = LDS_P + N2 * 2048
LDS_FLAG = LDS_AL + N2 * 128
LDS_STAT = LDS_FLAG + 64
LDS_TOTAL = LDS_STAT + 512
LDS_Q = LDS_P
LDS_TREE = LDS_P + 16384
LDS_X = LDS_P + 32768
PS_R1 = N2 - N1
assert LDS_TOTAL <= 163840 and PS_R1 * 2048 >= 32768 + 49152 and N1 % 6 == 0

WS_STAT = 8 << 20
WS_CTR = 12 << 20
WS_STAMP = 32 << 20


class G:
    def __init__(self, args):
        self.a = args
        self.L = []
        self.uid = 0

    def e(self, s):
        self.L.append("    " + s)

    def lab(self, s):
        self.L.append(s + ":")

    def c(self, s):
        self.L.append("    ; " + s)

    def newlab(self, base):
        self.uid += 1
        return f"L_{base}_{self.uid}"

    def srd(self, d, lo, hi, nbytes):
        self.e(f"s_mov_b32 s{d}, s{lo}")
        self.e(f"s_and_b32 s{d+1}, s{hi}, 0xffff")
        self.e(f"s_mov_b32 s{d+2}, {nbytes}")
        self.e(f"s_mov_b32 s{d+3}, 0x00020000")

    def srd_off(self, d, lo, hi, soff, nbytes):
        self.e(f"s_add_u32 s{d}, s{lo}, s{soff}")
        self.e(f"s_addc_u32 s{d+1}, s{hi}, 0")
        self.e(f"s_and_b32 s{d+1}, s{d+1}, 0xffff")
        self.e(f"s_mov_b32 s{d+2}, {nbytes}")
        self.e(f"s_mov_b32 s{d+3}, 0x00020000")

    def stamp(self, i):
        if not self.a.stamps:
            return
        self.e(f"s_memrealtime s[{S_ST+2*i}:{S_ST+2*i+1}]")
        self.e("s_waitcnt lgkmcnt(0)")

    def stamp_store(self):
        if not self.a.stamps:
            return
        e = self.e
        e("s_memtime s[98:99]")
        self.stamp(5)
        e(f"s_getreg_b32 s{S_T}, hwreg(HW_REG_XCC_ID)")
        e(f"s_mul_i32 s{S_T+2}, s2, 5")
        e(f"s_add_u32 s{S_T+2}, s{S_T+2}, s{S_WAVE}")
        e(f"s_lshl_b32 s{S_T+2}, s{S_T+2}, 6")
        e(f"s_add_u32 s{S_T+2}, s{S_T+2}, {WS_STAMP}")
        for i in range(6):
            e(f"v_mov_b32 v{V_S+i}, s{S_ST+2*i}")
        e(f"v_mov_b32 v{V_S+6}, s{S_T}")
        e(f"v_mov_b32 v{V_S+7}, s{S_T+9}")
        e(f"v_mov_b32 v{V_S+8}, s96")
        e(f"v_mov_b32 v{V_S+9}, s98")
        e(f"v_mov_b32 v{V_S+10}, 0")
        e(f"v_mov_b32 v{V_S+11}, s{S_SPIN}")
        e(f"v_mov_b32 v{V_T}, 0")
        e("s_mov_b64 exec, 1")
        for q in range(3):
            e(f"buffer_store_dwordx4 v[{V_S+4*q}:{V_S+4*q+3}], v{V_T}, s[{SRD_WS}:{SRD_WS+3}], s{S_T+2} offen offset:{16*q}")
        e("s_mov_b64 exec, -1")

    def spin_guard(self):
        self.e(f"s_sub_u32 s{S_SPIN}, s{S_SPIN}, 1")
        self.e("s_cbranch_scc1 L_end")

    def slot_of_u(self, early=True):
        e = self.e
        e(f"s_mul_i32 s{S_T}, s{S_U}, 43691")
        e(f"s_lshr_b32 s{S_T}, s{S_T}, 17")
        e(f"s_mul_i32 s{S_T+1}, s{S_T}, 3")
        e(f"s_sub_u32 s{S_T+1}, s{S_U}, s{S_T+1}")
        e(f"s_lshl_b32 s{S_SLOT}, s{S_T+1}, 14")
        if early:
            e(f"s_and_b32 s{S_T}, s{S_T}, 1")
            e(f"s_cmp_lt_u32 s{S_U}, {N1}")
            e(f"s_cselect_b32 s{S_T}, s{S_T}, 0")
            e(f"s_mul_i32 s{S_T}, s{S_T}, {LDS_X}")
            e(f"s_add_u32 s{S_SLOT}, s{S_SLOT}, s{S_T}")

    def dma_offsets(self, dk, dv):
        e = self.e
        T = V_T
        e(f"v_xor_b32 v{T+3}, v{T+2}, v{T+1}")
        e(f"v_lshlrev_b32 v{T+3}, 4, v{T+3}")
        e(f"v_lshl_or_b32 v{T+3}, v{T+1}, 9, v{T+3}")
        for jj in range(8):
            e(f"v_xor_b32 v{dk+jj}, {(2*jj << 4) | ((jj >> 2) << 12)}, v{T+3}")
        e(f"v_lshlrev_b32 v{T+4}, 2, v{T+1}")
        e(f"v_xor_b32 v{T+4}, v{T+2}, v{T+4}")
        e(f"v_lshlrev_b32 v{T+4}, 4, v{T+4}")
        e(f"v_lshl_or_b32 v{T+4}, v{T+1}, 9, v{T+4}")
        for x in range(4):
            e(f"v_xor_b32 v{dv+x}, {((x & 1) * 128) | ((x >> 1) << 12)}, v{T+4}")

    def piece(self, kind, j, srd, soffs, m0, vbase, pol):
        if j % 4 == 0:
            m0(j >> 2)
            self.e("s_nop 0")
        imm = (j & 3) * 1024
        if kind == "K":
            vo = vbase + (j & 7)
        else:
            vo = vbase + (j & 1) + 2 * ((j >> 2) & 1)
        self.e(f"buffer_load_dwordx4 v{vo}, s[{srd}:{srd+3}], {soffs[j >> 3]} offen offset:{imm}{pol} lds")

    def claim_and_init(self, l_ready, l_busy):
        e = self.e
        T = V_T
        e(f"v_mov_b32 v{T+6}, 1")
        e(f"v_mov_b32 v{T+7}, 0")
        e("s_mov_b64 exec, 1")
        e(f"buffer_atomic_cmpswap v[{T+6}:{T+7}], v{V_ZERO}, s[{SRD_DBG}:{SRD_DBG+3}], 0 offen sc0")
        e("s_mov_b64 exec, -1")
        e("s_waitcnt vmcnt(0)")
        e(f"v_readfirstlane_b32 s{S_T}, v{T+6}")
        e("s_nop 0")
        e(f"s_cmp_eq_u32 s{S_T}, 3")
        e(f"s_cbranch_scc1 {l_ready}")
        e(f"s_cmp_lg_u32 s{S_T}, 0")
        e(f"s_cbranch_scc1 {l_busy}")
        e(f"v_lshlrev_b32 v{T+6}, 8, v{V_LANE}")
        for i in range(4):
            e(f"s_mov_b32 s{S_T}, {WS_CTR + i*16384}")
            e(f"buffer_store_dword v{V_ZERO}, v{T+6}, s[{SRD_WS}:{SRD_WS+3}], s{S_T} offen sc1")
        e("s_waitcnt vmcnt(0)")
        e(f"v_mov_b32 v{T+6}, 3")
        e("s_mov_b64 exec, 1")
        e(f"buffer_atomic_swap v{T+6}, v{V_ZERO}, s[{SRD_DBG}:{SRD_DBG+3}], 0 offen")
        e("s_mov_b64 exec, -1")
        e(f"s_branch {l_ready}")

    def poll(self, need, sreg=S_LANDED, off=0, precheck=True, sleep=None):
        e = self.e
        lp, go = self.newlab("poll"), self.newlab("go")
        if precheck:
            e(f"s_cmp_ge_u32 s{sreg}, {need}")
            e(f"s_cbranch_scc1 {go}")
        self.lab(lp)
        e(f"ds_read_b32 v{V_F}, v{V_FLAGA} offset:{off}")
        e("s_waitcnt lgkmcnt(0)")
        e(f"v_readfirstlane_b32 s{sreg}, v{V_F}")
        e("s_nop 0")
        e(f"s_cmp_ge_u32 s{sreg}, {need}")
        e(f"s_cbranch_scc1 {go}")
        sl = self.a.sleep if sleep is None else sleep
        if sl:
            e(f"s_sleep {sl}")
        self.spin_guard()
        e(f"s_branch {lp}")
        self.lab(go)

    def k_addrs(self, base_expr):
        self.e(f"v_add_u32 v{V_AK}, {base_expr}, v{V_BK}")
        for ee in range(1, 8):
            self.e(f"v_xor_b32 v{V_AK+ee}, {ee << 5}, v{V_AK}")

    def v_addrs(self, base_expr):
        self.e(f"v_add_u32 v{V_AV}, {base_expr}, v{V_BV}")
        self.e(f"v_xor_b32 v{V_AV+1}, 64, v{V_AV}")

    def read_k(self, dst=V_K):
        for kk in range(16):
            off = (kk >> 3) * 256
            self.e(f"ds_read_b128 v[{dst+4*kk}:{dst+4*kk+3}], v{V_AK + (kk & 7)} offset:{off}")

    def read_v(self, kss, dst=V_V):
        for ks in kss:
            for dtl in range(2):
                for jhi in range(2):
                    off = (16 * ks + 8 * jhi) * 512
                    r = dst + 8 * ks + 4 * dtl + 2 * jhi
                    self.e(f"ds_read_b64_tr_b16 v[{r}:{r+1}], v{V_AV + dtl} offset:{off}")

    def qk_mfma(self, kk):
        cin = "0" if kk == 0 else f"v[{V_S}:{V_S+15}]"
        self.e(f"v_mfma_f32_32x32x16_bf16 v[{V_S}:{V_S+15}], v[{V_K+4*kk}:{V_K+4*kk+3}], "
               f"v[{V_Q+4*kk}:{V_Q+4*kk+3}], {cin}")

    def pv(self, kss, oset, first=False, vsrc=V_V):
        for ks in kss:
            for dtl in range(2):
                o = V_O + 32 * oset + 16 * dtl
                r = vsrc + 8 * ks + 4 * dtl
                cin = "0" if first else f"v[{o}:{o+15}]"
                self.e(f"v_mfma_f32_32x32x16_bf16 v[{o}:{o+15}], v[{r}:{r+3}], v[{V_P+4*ks}:{V_P+4*ks+3}], {cin}")

    def xhalf(self, op, dst, a, b):
        self.e(f"v_mov_b32 v{b}, v{a}")
        self.e("s_nop 1")
        self.e(f"v_permlane32_swap_b32 v{a}, v{b}")
        self.e("s_nop 1")
        self.e(f"{op} v{dst}, v{a}, v{b}")

    def pkmul(self, r, f):
        self.e(f"v_pk_mul_f32 v[{r}:{r+1}], v[{r}:{r+1}], v[{f}:{f+1}] op_sel_hi:[1,0]")

    def pkadd(self, d, a, b):
        self.e(f"v_pk_add_f32 v[{d}:{d+1}], v[{a}:{a+1}], v[{b}:{b+1}]")

    def softmax(self):
        e = self.e
        S, T = V_S, V_T
        e(f"v_max3_f32 v{T}, v{S}, v{S+1}, v{S+2}")
        e(f"v_max3_f32 v{T+1}, v{S+3}, v{S+4}, v{S+5}")
        e(f"v_max3_f32 v{T+2}, v{S+6}, v{S+7}, v{S+8}")
        e(f"v_max3_f32 v{T+3}, v{S+9}, v{S+10}, v{S+11}")
        e(f"v_max3_f32 v{T}, v{T}, v{S+12}, v{S+13}")
        e(f"v_max3_f32 v{T+1}, v{T+1}, v{S+14}, v{S+15}")
        e(f"v_max3_f32 v{T}, v{T}, v{T+1}, v{T+2}")
        e(f"v_max_f32 v{T}, v{T}, v{T+3}")
        self.xhalf("v_max_f32", T, T, T + 1)
        e(f"v_mul_f32 v{T}, s{S_C}, v{T}")
        e(f"v_max_f32 v{T}, v{T}, v{V_M}")
        e(f"v_sub_f32 v{T+1}, v{V_M}, v{T}")
        e(f"v_mov_b32 v{V_M}, v{T}")
        e(f"v_exp_f32 v{V_ALPHA}, v{T+1}")
        for i in range(16):
            e(f"v_fma_f32 v{S+i}, v{S+i}, s{S_C}, -v{V_M}")
        for i in range(16):
            e(f"v_exp_f32 v{S+i}, v{S+i}")
        e("s_nop 0")
        for i in range(8):
            e(f"v_cvt_pk_bf16_f32 v{V_P+i}, v{S+2*i}, v{S+2*i+1}")
        e(f"ds_write_b32 v{V_AA}, v{V_ALPHA}")
        e(f"ds_write_b128 v{V_PA}, v[{V_P}:{V_P+3}]")
        e(f"ds_write_b128 v{V_PA}, v[{V_P+4}:{V_P+7}] offset:1024")
        e(f"v_add_f32 v{T}, v{S}, v{S+1}")
        e(f"v_add_f32 v{T+1}, v{S+2}, v{S+3}")
        for i in range(4, 16, 2):
            e(f"v_add_f32 v{T}, v{T}, v{S+i}")
            e(f"v_add_f32 v{T+1}, v{T+1}, v{S+i+1}")
        e(f"v_add_f32 v{T}, v{T}, v{T+1}")
        e(f"v_fma_f32 v{V_L}, v{V_L}, v{V_ALPHA}, v{T}")

    def p_addrs(self):
        e = self.e
        e(f"s_add_u32 s{S_T}, s{S_PS0}, s{S_J}")
        e(f"s_lshl_b32 s{S_T+1}, s{S_T}, 11")
        e(f"s_lshl_b32 s{S_T}, s{S_T}, 7")
        e(f"v_add_u32 v{V_PA}, s{S_T+1}, v{V_PB}")
        e(f"v_add_u32 v{V_AA}, s{S_T}, v{V_AB}")

    def release(self, sreg):
        self.e(f"v_mov_b32 v{V_F}, s{sreg}")
        self.e(f"ds_write_b32 v{V_RELA}, v{V_F}")

    def gen(self):
        a = self.a
        e, lab, c = self.e, self.lab, self.c
        T = V_T
        S = V_S
        Gp, R = a.group, a.ring
        GPU = 16 // Gp
        K = NAME + "_kernel"
        out = HEADER + f"; @launch grid=(256,1,1) block=(320,1,1) lds={LDS_TOTAL}\n"
        out += '.amdgcn_target "amdgcn-amd-amdhsa--gfx950"\n.text\n'
        out += f".globl {K}\n.p2align 8\n.type {K},@function\n{K}:\n"

        e("s_cmp_ge_u32 s2, 256")
        e("s_cbranch_scc1 L_end")
        if a.stamps:
            e("s_memtime s[96:97]")
        self.stamp(0)
        e("s_load_dwordx16 s[4:19], s[0:1], 0")
        e("s_load_dwordx2 s[20:21], s[0:1], 64")
        e(f"v_lshrrev_b32 v{T}, 6, v0")
        e(f"v_and_b32 v{V_LANE}, 63, v0")
        e(f"v_readfirstlane_b32 s{S_WAVE}, v{T}")
        e(f"v_lshrrev_b32 v{T+1}, 5, v{V_LANE}")
        e(f"v_and_b32 v{T+2}, 31, v{V_LANE}")
        e(f"s_and_b32 s{S_PAIR}, s2, 63")
        e(f"s_lshr_b32 s{S_SPLIT}, s2, 6")
        e(f"v_mov_b32 v{V_FLAGA}, {LDS_FLAG}")
        e(f"v_mov_b32 v{V_ZERO}, 0")
        e(f"s_mov_b32 s{S_SPIN}, {a.spin}")
        if a.stamps:
            e(f"s_mov_b32 s{S_T+9}, 0")
        e(f"s_cmp_lg_u32 s{S_WAVE}, 0")
        e("s_cbranch_scc1 L_consumer")

        c("================= loader wave =================")
        e("s_setprio 3")
        self.dma_offsets(V_LD, V_LD + 8)
        c("tile order is rotated per pair (de-phases the streams of different pairs)")
        e(f"s_mul_i32 s{S_TB}, s{S_PAIR}, {a.rmul}")
        e(f"s_and_b32 s{S_OFF}, s{S_TB}, 63")
        e(f"s_lshl_b32 s{S_OFF}, s{S_OFF}, 14")
        e(f"s_add_u32 s{S_OFF2}, s{S_OFF}, 8192")
        e(f"s_lshl_b32 s{S_T}, s{S_PAIR}, 22")
        e(f"s_lshl_b32 s{S_T+1}, s{S_SPLIT}, 20")
        e(f"s_add_u32 s{S_T}, s{S_T}, s{S_T+1}")
        e(f"s_mov_b32 s{S_SLOT}, 0")
        e("s_waitcnt lgkmcnt(0)")
        self.srd_off(SRD_K, 6, 7, S_T, 1 << 20)
        soffs = [f"s{S_OFF}", f"s{S_OFF2}"]

        def m0_slot(q):
            e(f"s_add_u32 m0, s{S_SLOT}, {LDS_RING + q*4096}")

        def m0_abs(base):
            def f(q):
                e(f"s_mov_b32 m0, {base + q*4096}")
            return f

        def group(kind, g):
            for p in range(g * Gp, (g + 1) * Gp):
                if kind == "K":
                    self.piece("K", p, SRD_K, soffs, m0_slot, V_LD, a.pol)
                else:
                    self.piece("V", p, SRD_V, soffs, m0_slot, V_LD + 8, a.pol)

        def publish():
            e(f"s_waitcnt vmcnt({(R-1)*Gp})")
            e(f"s_sub_i32 s{S_T+2}, s{S_ISS}, {R-1}")
            e(f"s_max_i32 s{S_T+2}, s{S_T+2}, 0")
            e(f"v_mov_b32 v{V_F}, s{S_T+2}")
            e(f"ds_write_b32 v{V_FLAGA}, v{V_F}")
            e(f"s_add_u32 s{S_ISS}, s{S_ISS}, 1")

        c("unit 0 goes out immediately")
        for g in range(GPU):
            group("K", g)
        self.srd_off(SRD_V, 8, 9, S_T, 1 << 20)
        if a.stamps:
            self.srd(SRD_WS, 20, 21, 64 << 20)
        e(f"v_mov_b32 v{V_ALPHA}, 0")
        e(f"ds_write_b64 v{V_FLAGA}, v[{V_ALPHA}:{V_ALPHA+1}]")
        e(f"ds_write_b64 v{V_FLAGA}, v[{V_ALPHA}:{V_ALPHA+1}] offset:8")
        e(f"s_mov_b32 s{S_ISS}, {GPU}")
        e(f"s_mov_b32 s{S_U}, 1")
        e(f"s_mov_b32 s{S_J}, 1")
        e(f"s_mov_b32 s{S_N}, {N1}")
        e("s_waitcnt lgkmcnt(0)")
        e("s_barrier")

        def ld_phase(kind):
            lab(f"L_ld_{kind}")
            e(f"s_add_u32 s{S_OFF}, s{S_TB}, s{S_J}")
            e(f"s_and_b32 s{S_OFF}, s{S_OFF}, 63")
            e(f"s_lshl_b32 s{S_OFF}, s{S_OFF}, 14")
            e(f"s_add_u32 s{S_OFF2}, s{S_OFF}, 8192")
            self.slot_of_u(early=(kind == "K"))
            c("slot free?  every wave has released all units below u-2 (u-5 in the 6-slot start-up ring)")
            e(f"s_cmp_lt_u32 s{S_U}, {N1}")
            e(f"s_cselect_b32 s{S_T+4}, 5, 2")
            def free_estimate():
                e(f"ds_read_b128 v[{V_S}:{V_S+3}], v{V_FLAGA} offset:16")
                e("s_waitcnt lgkmcnt(0)")
                e(f"v_min_u32 v{V_S}, v{V_S}, v{V_S+1}")
                e(f"v_min3_u32 v{V_S}, v{V_S}, v{V_S+2}, v{V_S+3}")
                e("s_nop 0")
                e(f"v_readfirstlane_b32 s{S_T}, v{V_S}")
                e("s_nop 0")
                e(f"s_add_u32 s{S_T}, s{S_T}, s{S_T+4}")
            free_estimate()
            publish()
            lab(f"L_ld_chk{kind}")
            e(f"s_cmp_ge_u32 s{S_T}, s{S_U}")
            e(f"s_cbranch_scc1 L_ld_free{kind}")
            if a.stamps:
                e(f"s_mov_b32 s{S_T+3}, 1")
                e(f"s_cmp_ge_u32 s{S_U}, 8")
                e(f"s_cselect_b32 s{S_T+3}, 0x100, s{S_T+3}")
                e(f"s_cmp_ge_u32 s{S_U}, 28")
                e(f"s_cselect_b32 s{S_T+3}, 0x10000, s{S_T+3}")
                e(f"s_cmp_ge_u32 s{S_U}, 74")
                e(f"s_cselect_b32 s{S_T+3}, 0x1000000, s{S_T+3}")
                e(f"s_add_u32 s{S_T+9}, s{S_T+9}, s{S_T+3}")
            self.spin_guard()
            free_estimate()
            e(f"s_branch L_ld_chk{kind}")
            lab(f"L_ld_free{kind}")
            if a.stamps:
                su = [int(v) for v in a.su.split(",")]
                for ti, si in ((su[0], 1), (su[1], 2), (su[2], 4)):
                    l2 = self.newlab("pst")
                    e(f"s_cmp_lg_u32 s{S_U}, {ti}")
                    e(f"s_cbranch_scc1 {l2}")
                    self.stamp(si)
                    lab(l2)
            group(kind, 0)
            for g in range(1, GPU):
                publish()
                group(kind, g)
            e(f"s_add_u32 s{S_U}, s{S_U}, 1")
            e(f"s_add_u32 s{S_J}, s{S_J}, 1")
            e(f"s_cmp_lt_u32 s{S_J}, s{S_N}")
            e(f"s_cbranch_scc1 L_ld_{kind}")
            e(f"s_mov_b32 s{S_J}, 0")

        assert R - 1 <= 2 * GPU
        ld_phase("K")
        ld_phase("V")
        e(f"s_add_u32 s{S_TB}, s{S_TB}, s{S_N}")
        e(f"s_mov_b32 s{S_N}, {N2}")
        e(f"s_cmp_lt_u32 s{S_U}, {NU}")
        e("s_cbranch_scc1 L_ld_K")
        c("drain")
        for r in range(R - 1, -1, -1):
            e(f"s_waitcnt vmcnt({r*Gp})")
            e(f"v_mov_b32 v{V_F}, {NU*GPU - r}")
            e(f"ds_write_b32 v{V_FLAGA}, v{V_F}")
        self.stamp(3)
        self.stamp_store()
        e("s_endpgm")

        lab("L_consumer")
        c("================= compute waves =================")
        e(f"s_sub_u32 s{S_CI}, s{S_WAVE}, 1")
        e(f"s_lshl_b32 s{S_T}, s{S_CI}, 2")
        e(f"s_add_u32 s{S_T+1}, s{S_T}, {LDS_FLAG + 16}")
        e(f"v_mov_b32 v{V_RELA}, s{S_T+1}")
        e(f"s_add_u32 s{S_T+1}, s{S_T}, {LDS_FLAG + 8}")
        e(f"v_mov_b32 v{V_PDA}, s{S_T+1}")
        e(f"ds_write_b32 v{V_RELA}, v{V_ZERO}")
        c("DMA source offsets (temporarily in the K fragment registers)")
        self.dma_offsets(V_K, V_K + 8)
        e(f"s_lshl_b32 s{S_T+1}, s{S_PAIR}, 14")
        e(f"s_lshl_b32 s{S_T+2}, s{S_PAIR}, 13")
        c("Q pieces 4c..4c+3: source offsets of pieces (4c+i)&7, soffset (c>>1)*8192, LDS_Q + c*4096")
        e(f"s_and_b32 s{S_T+3}, s{S_CI}, 1")
        e(f"s_mul_i32 s{S_T+3}, s{S_T+3}, {128 | 4096}")
        for i in range(4):
            e(f"v_xor_b32 v{V_K+12+i}, s{S_T+3}, v{V_K+i}")
        e(f"s_lshr_b32 s{S_T+4}, s{S_CI}, 1")
        e(f"s_lshl_b32 s{S_T+4}, s{S_T+4}, 13")
        e(f"s_lshl_b32 s{S_T+5}, s{S_CI}, 12")
        e("s_waitcnt lgkmcnt(0)")
        self.srd_off(SRD_Q, 4, 5, S_T + 1, 16384)
        e(f"s_add_u32 m0, s{S_T+5}, {LDS_Q}")
        e("s_nop 0")
        for i in range(4):
            e(f"buffer_load_dwordx4 v{V_K+12+i}, s[{SRD_Q}:{SRD_Q+3}], s{S_T+4} offen offset:{i*1024} lds")
        e(f"s_cmp_lg_u32 s{S_SPLIT}, 3")
        e("s_cbranch_scc1 L_c_notree0")
        c("split 3: wave c=2 stages tree K, c=3 tree V; everyone loads its mask words")
        self.srd(SRD_MSK, 14, 15, 4096)
        e(f"v_and_b32 v{T+6}, 15, v{V_LANE}")
        e(f"v_lshlrev_b32 v{T+6}, 5, v{T+6}")
        e(f"v_lshl_or_b32 v{T+6}, v{T+1}, 3, v{T+6}")
        e(f"s_lshr_b32 s{S_T+4}, s{S_PAIR}, 3")
        e(f"s_lshl_b32 s{S_T+4}, s{S_T+4}, 9")
        e(f"buffer_load_dwordx2 v[{V_MSK}:{V_MSK+1}], v{T+6}, s[{SRD_MSK}:{SRD_MSK+3}], s{S_T+4} offen")
        e(f"buffer_load_dwordx2 v[{V_MSK+2}:{V_MSK+3}], v{T+6}, s[{SRD_MSK}:{SRD_MSK+3}], s{S_T+4} offen offset:16")
        e(f"s_cmp_lg_u32 s{S_CI}, 2")
        e("s_cbranch_scc1 L_c_tk_done")
        self.srd_off(SRD_TK, 10, 11, S_T + 2, 8192)
        for j in range(8):
            self.piece("K", j, SRD_TK, ["0"], m0_abs(LDS_TREE), V_K, "")
        lab("L_c_tk_done")
        e(f"s_cmp_lg_u32 s{S_CI}, 3")
        e("s_cbranch_scc1 L_c_notree0")
        self.srd_off(SRD_TK, 12, 13, S_T + 2, 8192)
        for j in range(8):
            self.piece("V", j, SRD_TK, ["0"], m0_abs(LDS_TREE + 8192), V_K + 8, "")
        lab("L_c_notree0")
        e("s_barrier")
        self.stamp(1)
        self.stamp(2)
        self.srd_off(SRD_OUT, 16, 17, S_T + 1, 16384)
        self.srd(SRD_WS, 20, 21, 64 << 20)
        self.srd(SRD_DBG, 18, 19, 256)
        c("LDS read bases")
        e(f"v_and_b32 v{T+3}, 15, v{T+2}")
        e(f"v_xor_b32 v{T+3}, v{T+3}, v{T+1}")
        e(f"v_lshlrev_b32 v{T+3}, 4, v{T+3}")
        e(f"v_lshl_or_b32 v{V_BK}, v{T+2}, 9, v{T+3}")
        e(f"v_bfe_u32 v{T+3}, v{V_LANE}, 2, 2")
        e(f"v_lshl_add_u32 v{T+4}, v{T+1}, 2, v{T+3}")
        e(f"v_lshlrev_b32 v{T+4}, 9, v{T+4}")
        e(f"v_lshl_or_b32 v{T+4}, v{T+3}, 6, v{T+4}")
        e(f"v_bfe_u32 v{T+3}, v{V_LANE}, 4, 1")
        e(f"v_lshl_or_b32 v{T+4}, v{T+3}, 5, v{T+4}")
        e(f"v_and_b32 v{T+3}, 3, v{V_LANE}")
        e(f"v_lshl_or_b32 v{T+4}, v{T+3}, 3, v{T+4}")
        c("d-tiles 2c, 2c+1: xor (dt&3)<<6, + (dt>>2)*256")
        e(f"s_and_b32 s{S_T}, s{S_CI}, 1")
        e(f"s_lshl_b32 s{S_T}, s{S_T}, 7")
        e(f"s_lshr_b32 s{S_T+1}, s{S_CI}, 1")
        e(f"s_lshl_b32 s{S_T+1}, s{S_T+1}, 8")
        e(f"s_or_b32 s{S_T}, s{S_T}, s{S_T+1}")
        e(f"v_xor_b32 v{V_BV}, s{S_T}, v{T+4}")
        e(f"v_lshlrev_b32 v{V_A16}, 4, v{V_LANE}")
        e(f"v_lshlrev_b32 v{V_A8}, 3, v{V_LANE}")
        e(f"v_add_u32 v{V_PB}, {LDS_P}, v{V_A16}")
        e(f"v_lshlrev_b32 v{V_AB}, 2, v{T+2}")
        e(f"v_add_u32 v{V_AB}, {LDS_AL}, v{V_AB}")
        c("output address: q = l&31, d = 64*c + 8*g8 + 4*h")
        e(f"v_lshlrev_b32 v{V_AOUT}, 9, v{T+2}")
        e(f"v_lshl_or_b32 v{V_AOUT}, v{T+1}, 3, v{V_AOUT}")
        e(f"s_mov_b32 s{S_C}, 0x{f32bits(CSCALE):08x}")
        e(f"s_mov_b32 s{S_CM}, 0x{f32bits(CMASK):08x}")
        e(f"s_mov_b32 s{S_LANDED}, 0")
        e(f"s_mov_b32 s{S_PD0}, 0")
        e(f"s_mov_b32 s{S_PD1}, 0")
        e(f"s_mov_b32 s{S_PCNT}, 0")
        e(f"s_mov_b32 s{S_EARLY}, 0")
        e(f"s_mov_b32 s{S_TKT}, 0")
        e(f"s_mov_b32 s{S_U0}, 0")
        e(f"s_mov_b32 s{S_N}, {N1}")
        e(f"s_mov_b32 s{S_PS0}, {PS_R1}")
        e(f"s_lshl_b32 s{S_CTR}, s{S_PAIR}, 2")
        e(f"s_add_u32 s{S_CTR}, s{S_CTR}, s{S_CI}")
        e(f"s_lshl_b32 s{S_CTR}, s{S_CTR}, 8")
        e(f"s_add_u32 s{S_CTR}, s{S_CTR}, {WS_CTR}")
        c("waves that skip the first K phase release its units right away")
        e(f"s_cmp_ge_u32 s{S_CI}, 2")
        e(f"s_cselect_b32 s{S_T}, {N1}, s{S_CI}")
        self.release(S_T)
        self.k_addrs(str(LDS_Q))
        e(f"v_mov_b32 v{V_TK}, 1")
        c("own staged pieces landed -> count; wait for all four waves")
        e("s_waitcnt vmcnt(0)")
        e("s_mov_b64 exec, 1")
        e(f"ds_add_u32 v{V_FLAGA}, v{V_TK} offset:4")
        e("s_mov_b64 exec, -1")
        self.poll("4", sreg=S_NEED, off=4, precheck=False, sleep=1)
        self.read_k(V_Q)

        e(f"s_cmp_lg_u32 s{S_SPLIT}, 3")
        e("s_cbranch_scc1 L_notree")
        c("---- tree tile (16 keys, masked): computed by every wave, goes into accumulator set 0 ----")
        self.k_addrs(str(LDS_TREE))
        self.read_k()
        for i in range(4):
            e(f"v_lshlrev_b32 v{V_MT+2*i}, 16, v{V_MSK+i}")
            e(f"v_and_b32 v{V_MT+2*i+1}, 0xffff0000, v{V_MSK+i}")
        for i in range(8):
            e(f"v_sub_f32 v{V_MT+i}, 1.0, v{V_MT+i}")
        for i in range(8):
            e(f"v_mul_f32 v{V_MT+i}, s{S_CM}, v{V_MT+i}")
        self.v_addrs(str(LDS_TREE + 8192))
        self.read_v([0], dst=V_MT + 12)
        e("s_waitcnt lgkmcnt(0)")
        for kk in range(16):
            self.qk_mfma(kk)
        e("s_nop 15")
        for i in range(8):
            e(f"v_fma_f32 v{S+i}, v{S+i}, s{S_C}, v{V_MT+i}")
        e(f"v_max3_f32 v{T}, v{S}, v{S+1}, v{S+2}")
        e(f"v_max3_f32 v{T+1}, v{S+3}, v{S+4}, v{S+5}")
        e(f"v_max3_f32 v{T}, v{T}, v{S+6}, v{S+7}")
        e(f"v_max_f32 v{T}, v{T}, v{T+1}")
        self.xhalf("v_max_f32", V_M, T, T + 1)
        for i in range(8):
            e(f"v_sub_f32 v{S+i}, v{S+i}, v{V_M}")
        for i in range(8):
            e(f"v_exp_f32 v{S+i}, v{S+i}")
        e("s_nop 0")
        e(f"v_add_f32 v{V_L}, v{S}, v{S+1}")
        for i in range(2, 8):
            e(f"v_add_f32 v{V_L}, v{V_L}, v{S+i}")
        for i in range(4):
            e(f"v_cvt_pk_bf16_f32 v{V_P+i}, v{S+2*i}, v{S+2*i+1}")
        e("s_nop 1")
        self.pv([0], 0, first=True, vsrc=V_MT + 12)
        e("s_nop 7")
        e(f"s_cmp_eq_u32 s{S_CI}, 0")
        e("s_cbranch_scc1 L_set1")
        e(f"v_mov_b32 v{V_M}, 0xff800000")
        e(f"v_mov_b32 v{V_L}, 0")
        e("s_branch L_set1")
        lab("L_notree")
        e(f"v_mov_b32 v{V_M}, 0xff800000")
        e(f"v_mov_b32 v{V_L}, 0")
        for i in range(32):
            e(f"v_mov_b32 v{V_O+i}, 0")
        lab("L_set1")
        for i in range(32):
            e(f"v_mov_b32 v{V_O+32+i}, 0")
        e("s_waitcnt lgkmcnt(0)")
        c("counter initialisation: wave c=2 of workgroup 0 claims d_debug[0] and zeroes all merge counters")
        e(f"s_xor_b32 s{S_T}, s{S_CI}, 2")
        e(f"s_or_b32 s{S_T}, s{S_T}, s2")
        e(f"s_cmp_lg_u32 s{S_T}, 0")
        e("s_cbranch_scc1 L_round")
        self.claim_and_init("L_round", "L_round")

        self.L.append(".p2align 6")
        lab("L_round")
        e(f"s_cmp_ge_u32 s{S_CI}, 2")
        e("s_cbranch_scc1 L_kskip")
        c("---- K phase (producers c = 0, 1 take alternate tiles) ----")
        e(f"s_mov_b32 s{S_J}, s{S_CI}")
        lab("L_kloop")
        e(f"s_add_u32 s{S_U}, s{S_U0}, s{S_J}")
        self.slot_of_u()
        self.k_addrs(f"s{S_SLOT}")
        self.p_addrs()
        e(f"s_add_u32 s{S_NEED}, s{S_U}, 1")
        e(f"s_mul_i32 s{S_NEED}, s{S_NEED}, {GPU}")
        e(f"s_add_u32 s{S_T+2}, s{S_U}, 2")
        e(f"s_add_u32 s{S_T+3}, s{S_U0}, s{S_N}")
        e(f"s_min_u32 s{S_T+2}, s{S_T+2}, s{S_T+3}")
        self.poll(f"s{S_NEED}", sleep=1)
        self.read_k()
        e(f"v_mov_b32 v{V_F}, s{S_T+2}")
        for kk in range(16):
            if kk < 8:
                e(f"s_waitcnt lgkmcnt({15 - kk})")
            elif kk == 8:
                e("s_waitcnt lgkmcnt(0)")
                e(f"ds_write_b32 v{V_RELA}, v{V_F}")
            self.qk_mfma(kk)
        e(f"s_add_u32 s{S_PCNT}, s{S_PCNT}, 1")
        e(f"v_mov_b32 v{V_TK}, s{S_PCNT}")
        e("s_nop 15")
        self.softmax()
        e("s_waitcnt lgkmcnt(0)")
        e(f"ds_write_b32 v{V_PDA}, v{V_TK}")
        e(f"s_add_u32 s{S_J}, s{S_J}, 2")
        e(f"s_cmp_lt_u32 s{S_J}, s{S_N}")
        e("s_cbranch_scc1 L_kloop")
        c("publish (m, l) of this producer (read by everyone after the last round)")
        e(f"v_mov_b32 v{T+2}, v{V_M}")
        e(f"v_mov_b32 v{T}, v{V_L}")
        self.xhalf("v_add_f32", T + 3, T, T + 1)
        e(f"s_lshl_b32 s{S_T}, s{S_CI}, 8")
        e(f"s_add_u32 s{S_T}, s{S_T}, {LDS_STAT}")
        e(f"v_and_b32 v{T}, 31, v{V_LANE}")
        e(f"v_lshlrev_b32 v{T}, 3, v{T}")
        e(f"v_add_u32 v{T}, s{S_T}, v{T}")
        e(f"ds_write_b64 v{T}, v[{T+2}:{T+3}]")
        e(f"s_add_u32 s{S_PCNT}, s{S_PCNT}, 1")
        e(f"v_mov_b32 v{V_TK}, s{S_PCNT}")
        e("s_waitcnt lgkmcnt(0)")
        e(f"ds_write_b32 v{V_PDA}, v{V_TK}")
        e("s_branch L_vphase")
        lab("L_kskip")
        c("wave c=2 makes sure the merge counters have been zeroed before the last V phase")
        c("(the ring dependency then covers every other wave of the workgroup)")
        e(f"s_cmp_lg_u32 s{S_CI}, 2")
        e("s_cbranch_scc1 L_vphase")
        e(f"s_cmp_eq_u32 s{S_U0}, 0")
        e("s_cbranch_scc1 L_vphase")
        e("s_mov_b64 exec, 1")
        e(f"buffer_load_dword v{V_TK}, v{V_ZERO}, s[{SRD_DBG}:{SRD_DBG+3}], 0 offen sc1")
        e("s_mov_b64 exec, -1")
        e("s_waitcnt vmcnt(0)")
        e(f"v_readfirstlane_b32 s{S_T}, v{V_TK}")
        e("s_nop 0")
        e(f"s_cmp_lg_u32 s{S_T}, 3")
        e("s_cbranch_scc1 L_check_loop")

        lab("L_vphase")
        c("---- V phase ----")
        e(f"s_mov_b32 s{S_J}, 0")
        c("pdone base of this round: round 2 starts after N1/2 tiles + 1 stats mark")
        e(f"s_cmp_eq_u32 s{S_U0}, 0")
        e(f"s_cselect_b32 s{S_T+8}, 0, {N1//2 + 1}")
        lab("L_vloop")
        for st in range(2):
            spd = S_PD0 if st == 0 else S_PD1
            e(f"s_add_u32 s{S_U}, s{S_U0}, s{S_N}")
            e(f"s_add_u32 s{S_U}, s{S_U}, s{S_J}")
            self.slot_of_u(early=False)
            self.v_addrs(f"s{S_SLOT}")
            self.p_addrs()
            e(f"s_lshr_b32 s{S_NEED}, s{S_J}, 1")
            e(f"s_add_u32 s{S_NEED}, s{S_NEED}, s{S_T+8}")
            e(f"s_add_u32 s{S_NEED}, s{S_NEED}, 1")
            self.poll(f"s{S_NEED}", sreg=spd, off=8 + 4 * st, sleep=2)
            e(f"ds_read_b32 v{V_ALPHA}, v{V_AA}")
            e(f"ds_read_b128 v[{V_P}:{V_P+3}], v{V_PA}")
            e(f"ds_read_b128 v[{V_P+4}:{V_P+7}], v{V_PA} offset:1024")
            if st == 0:
                e(f"s_cmp_ge_u32 s{S_U}, {NU - 8}")
                e("s_cbranch_scc1 L_hook")
                lab("L_hook_done")
            e(f"s_add_u32 s{S_T+2}, s{S_U}, 1")
            e(f"s_mul_i32 s{S_NEED}, s{S_T+2}, {GPU}")
            e("s_waitcnt lgkmcnt(0)")
            for i in range(0, 32, 2):
                self.pkmul(V_O + 32 * st + i, V_ALPHA)
            self.poll(f"s{S_NEED}", sleep=1)
            self.read_v([0, 1])
            e(f"v_mov_b32 v{V_F}, s{S_T+2}")
            e(f"s_add_u32 s{S_J}, s{S_J}, 1")
            e("s_waitcnt lgkmcnt(0)")
            e(f"ds_write_b32 v{V_RELA}, v{V_F}")
            self.pv([0, 1], st)
        e(f"s_cmp_lt_u32 s{S_J}, s{S_N}")
        e("s_cbranch_scc1 L_vloop")
        e(f"s_cmp_lg_u32 s{S_U0}, 0")
        e("s_cbranch_scc1 L_done")
        c("next round")
        e(f"s_mov_b32 s{S_U0}, {2*N1}")
        e(f"s_mov_b32 s{S_N}, {N2}")
        e(f"s_mov_b32 s{S_PS0}, 0")
        e(f"s_add_u32 s{S_T}, s{S_CI}, {2*N1}")
        e(f"s_cmp_ge_u32 s{S_CI}, 2")
        e(f"s_cselect_b32 s{S_T}, {2*N1 + N2}, s{S_T}")
        self.release(S_T)
        e("s_branch L_round")

        lab("L_done")
        self.stamp(3)
        A8, A16, AOUT = V_A8, V_A16, V_AOUT

        def issue_loads():
            c("stats of splits s^1, s^2, s^3 -> v[S+2i:S+2i+1]; partial O -> V_X + 32*(i-1)")
            e(f"s_lshl_b32 s{S_T}, s{S_PAIR}, 4")
            e(f"s_add_u32 s{S_T}, s{S_T}, s{S_CI}")
            for i in range(1, 4):
                e(f"s_xor_b32 s{S_T+1}, s{S_SPLIT}, {i}")
                e(f"s_lshl_b32 s{S_T+1}, s{S_T+1}, 2")
                e(f"s_add_u32 s{S_T+4+i}, s{S_T+1}, s{S_T}")
                e(f"s_lshl_b32 s{S_T+3}, s{S_T+4+i}, 9")
                e(f"s_add_u32 s{S_T+3}, s{S_T+3}, {WS_STAT}")
                e(f"buffer_load_dwordx2 v[{S+2*i}:{S+2*i+1}], v{A8}, s[{SRD_WS}:{SRD_WS+3}], s{S_T+3} offen sc1")
            for i in range(1, 4):
                e(f"s_lshl_b32 s{S_T+1}, s{S_T+4+i}, 13")
                e(f"s_add_u32 s{S_T+3}, s{S_T+1}, 4096")
                for rq in range(8):
                    so = S_T + 1 if rq < 4 else S_T + 3
                    r = V_X + 32 * (i - 1) + 4 * rq
                    e(f"buffer_load_dwordx4 v[{r}:{r+3}], v{A16}, s[{SRD_WS}:{SRD_WS+3}], s{so} offen offset:{(rq & 3)*1024} sc1")

        c("---- merge the two accumulator sets (factors were prepared in the hook) ----")
        e("s_nop 7")
        for i in range(0, 32, 2):
            self.pkmul(V_O + i, V_F0)
        for i in range(0, 32, 2):
            self.pkmul(V_O + 32 + i, V_F1)
        for i in range(0, 32, 2):
            self.pkadd(V_O + i, V_O + i, V_O + 32 + i)
        c("---- merge the 4 splits ----")
        e(f"s_cmp_eq_u32 s{S_EARLY}, 1")
        e("s_cbranch_scc1 L_combine")
        e(f"s_and_b32 s{S_T+6}, s{S_TKT}, 0xffff")
        e(f"s_cmp_ge_u32 s{S_T+6}, 3")
        e("s_cbranch_scc1 L_wait_done")
        c("not last: publish partial (write-through), then bump the done count")
        e(f"s_lshl_b32 s{S_T}, s{S_PAIR}, 4")
        e(f"s_add_u32 s{S_T}, s{S_T}, s{S_CI}")
        e(f"s_lshl_b32 s{S_T+1}, s{S_SPLIT}, 2")
        e(f"s_add_u32 s{S_T}, s{S_T}, s{S_T+1}")
        e(f"s_lshl_b32 s{S_T+1}, s{S_T}, 13")
        e(f"s_add_u32 s{S_T+2}, s{S_T+1}, 4096")
        e(f"s_lshl_b32 s{S_T+3}, s{S_T}, 9")
        e(f"s_add_u32 s{S_T+3}, s{S_T+3}, {WS_STAT}")
        e(f"buffer_store_dwordx2 v[{V_M}:{V_M+1}], v{A8}, s[{SRD_WS}:{SRD_WS+3}], s{S_T+3} offen sc1")
        for rq in range(8):
            so = S_T + 1 + (rq >> 2)
            e(f"buffer_store_dwordx4 v[{V_O+4*rq}:{V_O+4*rq+3}], v{A16}, s[{SRD_WS}:{SRD_WS+3}], s{so} offen offset:{(rq & 3)*1024} sc1")
        e(f"v_mov_b32 v{V_TK}, 0x10000")
        e("s_waitcnt vmcnt(0)")
        e("s_mov_b64 exec, 1")
        e(f"buffer_atomic_add v{V_TK}, v{V_ZERO}, s[{SRD_WS}:{SRD_WS+3}], s{S_CTR} offen")
        e("s_mov_b64 exec, -1")
        if a.stamps:
            self.stamp(4)
            e(f"s_mov_b32 s{S_T+9}, 0")
            e("s_branch L_fin")
        else:
            e("s_endpgm")

        c("last arriver: wait until the other three have published")
        lab("L_wait_done")
        e("s_mov_b64 exec, 1")
        e(f"buffer_load_dword v{V_TK}, v{V_ZERO}, s[{SRD_WS}:{SRD_WS+3}], s{S_CTR} offen sc1")
        e("s_mov_b64 exec, -1")
        e("s_waitcnt vmcnt(0)")
        e(f"v_readfirstlane_b32 s{S_TKT}, v{V_TK}")
        self.spin_guard()
        e(f"s_lshr_b32 s{S_T+6}, s{S_TKT}, 16")
        e(f"s_cmp_lg_u32 s{S_T+6}, 3")
        e("s_cbranch_scc1 L_wait_done")
        issue_loads()
        lab("L_combine")
        self.stamp(4)
        e(f"v_mov_b32 v{S}, v{V_M}")
        e(f"v_mov_b32 v{S+1}, v{V_L}")
        e(f"s_lshl_b32 s{S_T+8}, s{S_CI}, 7")
        e("s_waitcnt vmcnt(24)")
        e(f"v_max_f32 v{T}, v{S}, v{S+2}")
        e(f"v_max3_f32 v{V_M}, v{T}, v{S+4}, v{S+6}")
        F = [S + 8, S + 10, S + 12, S + 14]
        for i in range(4):
            e(f"v_sub_f32 v{F[i]}, v{S+2*i}, v{V_M}")
        for i in range(4):
            e(f"v_exp_f32 v{F[i]}, v{F[i]}")
        e("s_nop 0")
        for i in range(4):
            e(f"v_mul_f32 v{F[i]+1}, v{F[i]}, v{S+2*i+1}")
        e(f"v_add_f32 v{T}, v{F[0]+1}, v{F[1]+1}")
        e(f"v_add_f32 v{T+1}, v{F[2]+1}, v{F[3]+1}")
        e(f"v_add_f32 v{V_L}, v{T}, v{T+1}")
        e(f"v_rcp_f32 v{V_ALPHA}, v{V_L}")
        e("s_nop 0")
        for i in range(4):
            e(f"v_mul_f32 v{F[i]}, v{F[i]}, v{V_ALPHA}")
        src = [V_O, V_X, V_X + 32, V_X + 64]
        for i in range(4):
            if i:
                e(f"s_waitcnt vmcnt({24 - 8*i})")
            for r in range(0, 32, 2):
                self.pkmul(src[i] + r, F[i])
            if i == 1:
                for r in range(0, 32, 2):
                    self.pkadd(V_O + r, V_O + r, src[1] + r)
        for g8 in range(8):
            for r in (4 * g8, 4 * g8 + 2):
                self.pkadd(src[2] + r, src[2] + r, src[3] + r)
            for r in (4 * g8, 4 * g8 + 2):
                self.pkadd(V_O + r, V_O + r, src[2] + r)
            rr = V_X + 2 * g8
            e(f"v_cvt_pk_bf16_f32 v{rr}, v{V_O+4*g8}, v{V_O+4*g8+1}")
            e(f"v_cvt_pk_bf16_f32 v{rr+1}, v{V_O+4*g8+2}, v{V_O+4*g8+3}")
            e(f"buffer_store_dwordx2 v[{rr}:{rr+1}], v{AOUT}, s[{SRD_OUT}:{SRD_OUT+3}], s{S_T+8} offen offset:{g8*16}")
        if a.stamps:
            e("s_waitcnt vmcnt(0)")
            e(f"s_mov_b32 s{S_T+9}, 1")
            lab("L_fin")
            self.stamp_store()
        lab("L_end")
        e("s_endpgm")

        c("---- end-of-stream hooks, run at units NU-8, NU-6, NU-4, NU-2 (out of line) ----")
        lab("L_hook")
        e(f"s_cmp_lg_u32 s{S_U}, {NU - 8}")
        e("s_cbranch_scc1 L_hook2")
        c("NU-8: final (m, l) of both producers -> merge factors, M, L")
        e(f"s_mov_b32 s{S_NEED}, {(N1 + N2)//2 + 2}")
        self.poll(f"s{S_NEED}", sreg=S_PD0, off=8)
        self.poll(f"s{S_NEED}", sreg=S_PD1, off=12)
        e(f"v_and_b32 v{T}, 31, v{V_LANE}")
        e(f"v_lshlrev_b32 v{T}, 3, v{T}")
        e(f"v_add_u32 v{T}, {LDS_STAT}, v{T}")
        e(f"ds_read_b64 v[{S}:{S+1}], v{T}")
        e(f"ds_read_b64 v[{S+2}:{S+3}], v{T} offset:256")
        e("s_waitcnt lgkmcnt(0)")
        e(f"v_max_f32 v{V_M}, v{S}, v{S+2}")
        e(f"v_sub_f32 v{V_F0}, v{S}, v{V_M}")
        e(f"v_sub_f32 v{V_F1}, v{S+2}, v{V_M}")
        e(f"v_exp_f32 v{V_F0}, v{V_F0}")
        e(f"v_exp_f32 v{V_F1}, v{V_F1}")
        e("s_nop 0")
        e(f"v_mul_f32 v{S+1}, v{S+1}, v{V_F0}")
        e(f"v_mul_f32 v{S+3}, v{S+3}, v{V_F1}")
        e(f"v_add_f32 v{V_L}, v{S+1}, v{S+3}")
        e("s_branch L_hook_done")
        lab("L_hook2")
        e(f"s_cmp_lg_u32 s{S_U}, {NU - 6}")
        e("s_cbranch_scc1 L_hook3")
        c("NU-6: take the arrival ticket")
        e(f"v_mov_b32 v{V_TK}, 1")
        e("s_mov_b64 exec, 1")
        e(f"buffer_atomic_add v{V_TK}, v{V_ZERO}, s[{SRD_WS}:{SRD_WS+3}], s{S_CTR} offen sc0")
        e("s_mov_b64 exec, -1")
        e("s_branch L_hook_done")
        lab("L_hook3")
        e(f"s_cmp_lg_u32 s{S_U}, {NU - 4}")
        e("s_cbranch_scc1 L_hook4")
        c("NU-4: read the ticket; the last arriver refreshes the done count")
        e("s_waitcnt vmcnt(0)")
        e(f"v_readfirstlane_b32 s{S_TKT}, v{V_TK}")
        e("s_nop 0")
        e(f"s_and_b32 s{S_T}, s{S_TKT}, 0xffff")
        e(f"s_cmp_lg_u32 s{S_T}, 3")
        e("s_cbranch_scc1 L_hook_done")
        e("s_mov_b64 exec, 1")
        e(f"buffer_load_dword v{V_TK}, v{V_ZERO}, s[{SRD_WS}:{SRD_WS+3}], s{S_CTR} offen sc1")
        e("s_mov_b64 exec, -1")
        e("s_branch L_hook_done")
        lab("L_hook4")
        c("NU-2: if every other split has published, start loading their partials now")
        e(f"s_and_b32 s{S_T}, s{S_TKT}, 0xffff")
        e(f"s_cmp_lg_u32 s{S_T}, 3")
        e("s_cbranch_scc1 L_hook_done")
        e("s_waitcnt vmcnt(0)")
        e(f"v_readfirstlane_b32 s{S_T}, v{V_TK}")
        e("s_nop 0")
        e(f"s_lshr_b32 s{S_T}, s{S_T}, 16")
        e(f"s_cmp_lg_u32 s{S_T}, 3")
        e("s_cbranch_scc1 L_hook_done")
        issue_loads()
        e(f"s_mov_b32 s{S_EARLY}, 1")
        e("s_branch L_hook_done")

        c("rare: counters not ready yet. Claim the job if nobody has, else wait for whoever did.")
        lab("L_check_loop")
        self.claim_and_init("L_vphase", "L_check_wait")
        lab("L_check_wait")
        e("s_sleep 8")
        self.spin_guard()
        e("s_branch L_check_loop")

        out += "\n".join(self.L) + "\n"
        out += f""".section .rodata,"a"
.p2align 6
.amdhsa_kernel {K}
  .amdhsa_next_free_vgpr {NVGPR}
  .amdhsa_next_free_sgpr 102
  .amdhsa_accum_offset {NVGPR}
  .amdhsa_group_segment_fixed_size 0
  .amdhsa_kernarg_size 72
  .amdhsa_user_sgpr_count 2
  .amdhsa_user_sgpr_kernarg_segment_ptr 1
  .amdhsa_system_sgpr_workgroup_id_x 1
.end_amdhsa_kernel
"""
        return out


def main():
    ap = argparse.ArgumentParser()
    ap.add_argument("-o", default=f"cdna_kernels/{NAME}.s")
    ap.add_argument("--pol", default="nt")
    ap.add_argument("--stamps", type=int, default=0)
    ap.add_argument("--group", type=int, default=8)
    ap.add_argument("--ring", type=int, default=3)
    ap.add_argument("--sleep", type=int, default=2)
    ap.add_argument("--spin", type=int, default=4000000)
    ap.add_argument("--rmul", type=int, default=13)
    ap.add_argument("--su", default="8,32,80")
    args = ap.parse_args()
    args.pol = (" " + args.pol.replace(",", " ")) if args.pol else ""
    open(args.o, "w").write(G(args).gen())


if __name__ == "__main__":
    main()
```

```python
import argparse

from gen import HEADER, NAME, f32bits, CSCALE, CMASK

V_LANE = 1
V_T = 2
V_M = 10
V_L = 11
V_ALPHA = 12
V_ZERO = 13
V_FLAGA = 14
V_RELA = 15
V_BK = 16
V_BV = 17
V_PB = 18
V_AB = 19
V_A8 = 20
V_A16 = 21
V_AOUT = 22
V_PA = 23
V_AA = 24
V_PDA = 25
V_F0 = 26
V_AK = 28
V_AV = 28
V_F1 = 36
V_TK = 38
V_F = 39
V_P = 40
V_S = 48
V_O = 64
V_K = 128
V_V = 128
V_X = 144
V_Q = 192
V_MSK = 96
V_MT = 100
V_LD = 64
NVGPR = 256

S_SPLIT = 3
S_WAVE = 22
S_PAIR = 23
SRD_K = 24
SRD_V = 28
SRD_Q = 32
SRD_TK = 36
S_U0 = 40
S_N = 41
S_J = 42
S_PS0 = 43
SRD_MSK = 44
SRD_OUT = 48
SRD_WS = 52
SRD_DBG = 56
S_OFF = 60
S_OFF2 = 61
S_U = 62
S_C = 63
S_CM = 64
S_SLOT = 65
S_CI = 66
S_NEED = 67
S_LANDED = 68
S_CTR = 69
S_PCNT = 70
S_SPIN = 71
S_T = 72
S_TKT = 82
S_EARLY = 83
S_ST = 84
S_PD0 = 100
S_PD1 = 101
S_WSB = 60
S_ISS = 43
S_TB = 70

import os
N1 = int(os.environ.get("G5_N1", "12"))
N2 = 64 - N1
NPS = 52
NU = 128
LDS_RING = 0
LDS_P = 49152
LDS_AL = LDS_P + NPS * 2048
LDS_FLAG = LDS_AL + NPS * 128
LDS_STAT = LDS_FLAG + 64
LDS_TOTAL = LDS_STAT + 512
LDS_Q = LDS_P
LDS_TREE = LDS_P + 16384
LDS_X = LDS_P + 32768
PS_R1 = NPS - N1
assert LDS_TOTAL <= 163840 and PS_R1 * 2048 >= 32768 + 49152 and N1 % 6 == 0

WS_PAIR_SH = 18
WS_STAT = 131072
WS_CTR = 147456
WS_SPARE = 163840
WS_STAMP = 32 << 20


class G:
    def __init__(self, args):
        self.a = args
        self.L = []
        self.uid = 0

    def e(self, s):
        self.L.append("    " + s)

    def lab(self, s):
        self.L.append(s + ":")

    def c(self, s):
        self.L.append("    ; " + s)

    def newlab(self, base):
        self.uid += 1
        return f"L_{base}_{self.uid}"

    def srd(self, d, lo, hi, nbytes):
        self.e(f"s_mov_b32 s{d}, s{lo}")
        self.e(f"s_and_b32 s{d+1}, s{hi}, 0xffff")
        self.e(f"s_mov_b32 s{d+2}, {nbytes}")
        self.e(f"s_mov_b32 s{d+3}, 0x00020000")

    def srd_off(self, d, lo, hi, soff, nbytes):
        self.e(f"s_add_u32 s{d}, s{lo}, s{soff}")
        self.e(f"s_addc_u32 s{d+1}, s{hi}, 0")
        self.e(f"s_and_b32 s{d+1}, s{d+1}, 0xffff")
        self.e(f"s_mov_b32 s{d+2}, {nbytes}")
        self.e(f"s_mov_b32 s{d+3}, 0x00020000")

    def stamp(self, i):
        if not self.a.stamps:
            return
        self.e(f"s_memrealtime s[{S_ST+2*i}:{S_ST+2*i+1}]")
        self.e("s_waitcnt lgkmcnt(0)")

    def stamp_store(self):
        if not self.a.stamps:
            return
        e = self.e
        e("s_memtime s[98:99]")
        self.stamp(5)
        e(f"s_getreg_b32 s{S_T}, hwreg(HW_REG_XCC_ID)")
        e(f"s_mul_i32 s{S_T+2}, s2, 5")
        e(f"s_add_u32 s{S_T+2}, s{S_T+2}, s{S_WAVE}")
        e(f"s_lshl_b32 s{S_T+2}, s{S_T+2}, 6")
        e(f"s_add_u32 s{S_T+2}, s{S_T+2}, {WS_STAMP}")
        for i in range(6):
            e(f"v_mov_b32 v{V_S+i}, s{S_ST+2*i}")
        e(f"v_mov_b32 v{V_S+6}, s{S_T}")
        e(f"v_mov_b32 v{V_S+7}, s{S_T+9}")
        e(f"v_mov_b32 v{V_S+8}, s96")
        e(f"v_mov_b32 v{V_S+9}, s98")
        e(f"v_mov_b32 v{V_S+10}, 0")
        e(f"v_mov_b32 v{V_S+11}, s{S_SPIN}")
        e(f"v_mov_b32 v{V_T}, 0")
        e("s_mov_b64 exec, 1")
        for q in range(3):
            e(f"buffer_store_dwordx4 v[{V_S+4*q}:{V_S+4*q+3}], v{V_T}, s[{SRD_WS}:{SRD_WS+3}], s{S_T+2} offen offset:{16*q}")
        e("s_mov_b64 exec, -1")

    def spin_guard(self):
        self.e(f"s_sub_u32 s{S_SPIN}, s{S_SPIN}, 1")
        self.e("s_cbranch_scc1 L_end")

    def slot_of_u(self, early=True):
        e = self.e
        e(f"s_mul_i32 s{S_T}, s{S_U}, 43691")
        e(f"s_lshr_b32 s{S_T}, s{S_T}, 17")
        e(f"s_mul_i32 s{S_T+1}, s{S_T}, 3")
        e(f"s_sub_u32 s{S_T+1}, s{S_U}, s{S_T+1}")
        e(f"s_lshl_b32 s{S_SLOT}, s{S_T+1}, 14")
        if early:
            e(f"s_and_b32 s{S_T}, s{S_T}, 1")
            e(f"s_cmp_lt_u32 s{S_U}, {N1}")
            e(f"s_cselect_b32 s{S_T}, s{S_T}, 0")
            e(f"s_mul_i32 s{S_T}, s{S_T}, {LDS_X}")
            e(f"s_add_u32 s{S_SLOT}, s{S_SLOT}, s{S_T}")

    def dma_offsets(self, dk, dv):
        e = self.e
        T = V_T
        e(f"v_xor_b32 v{T+3}, v{T+2}, v{T+1}")
        e(f"v_lshlrev_b32 v{T+3}, 4, v{T+3}")
        e(f"v_lshl_or_b32 v{T+3}, v{T+1}, 9, v{T+3}")
        for jj in range(8):
            e(f"v_xor_b32 v{dk+jj}, {(2*jj << 4) | ((jj >> 2) << 12)}, v{T+3}")
        e(f"v_lshlrev_b32 v{T+4}, 2, v{T+1}")
        e(f"v_xor_b32 v{T+4}, v{T+2}, v{T+4}")
        e(f"v_lshlrev_b32 v{T+4}, 4, v{T+4}")
        e(f"v_lshl_or_b32 v{T+4}, v{T+1}, 9, v{T+4}")
        for x in range(4):
            e(f"v_xor_b32 v{dv+x}, {((x & 1) * 128) | ((x >> 1) << 12)}, v{T+4}")

    def piece(self, kind, j, srd, soffs, m0, vbase, pol):
        if j % 4 == 0:
            m0(j >> 2)
            self.e("s_nop 0")
        imm = (j & 3) * 1024
        if kind == "K":
            vo = vbase + (j & 7)
        else:
            vo = vbase + (j & 1) + 2 * ((j >> 2) & 1)
        self.e(f"buffer_load_dwordx4 v{vo}, s[{srd}:{srd+3}], {soffs[j >> 3]} offen offset:{imm}{pol} lds")

    def claim_and_init(self, l_ready, l_busy):
        e = self.e
        T = V_T
        e(f"v_mov_b32 v{T+6}, 1")
        e(f"v_mov_b32 v{T+7}, 0")
        e("s_mov_b64 exec, 1")
        e(f"buffer_atomic_cmpswap v[{T+6}:{T+7}], v{V_ZERO}, s[{SRD_DBG}:{SRD_DBG+3}], 0 offen sc0")
        e("s_mov_b64 exec, -1")
        e("s_waitcnt vmcnt(0)")
        e(f"v_readfirstlane_b32 s{S_T}, v{T+6}")
        e("s_nop 0")
        e(f"s_cmp_eq_u32 s{S_T}, 3")
        e(f"s_cbranch_scc1 {l_ready}")
        e(f"s_cmp_lg_u32 s{S_T}, 0")
        e(f"s_cbranch_scc1 {l_busy}")
        e(f"v_lshlrev_b32 v{T+6}, {WS_PAIR_SH}, v{V_LANE}")
        for i in range(4):
            e(f"s_mov_b32 s{S_T}, {WS_CTR + i*256}")
            e(f"buffer_store_dword v{V_ZERO}, v{T+6}, s[{SRD_WS}:{SRD_WS+3}], s{S_T} offen sc1")
        e("s_waitcnt vmcnt(0)")
        e(f"v_mov_b32 v{T+6}, 3")
        e("s_mov_b64 exec, 1")
        e(f"buffer_atomic_swap v{T+6}, v{V_ZERO}, s[{SRD_DBG}:{SRD_DBG+3}], 0 offen")
        e("s_mov_b64 exec, -1")
        e(f"s_branch {l_ready}")

    def poll(self, need, sreg=S_LANDED, off=0, precheck=True, sleep=None):
        e = self.e
        lp, go = self.newlab("poll"), self.newlab("go")
        if precheck:
            e(f"s_cmp_ge_u32 s{sreg}, {need}")
            e(f"s_cbranch_scc1 {go}")
        self.lab(lp)
        e(f"ds_read_b32 v{V_F}, v{V_FLAGA} offset:{off}")
        e("s_waitcnt lgkmcnt(0)")
        e(f"v_readfirstlane_b32 s{sreg}, v{V_F}")
        e("s_nop 0")
        e(f"s_cmp_ge_u32 s{sreg}, {need}")
        e(f"s_cbranch_scc1 {go}")
        sl = self.a.sleep if sleep is None else sleep
        if sl:
            e(f"s_sleep {sl}")
        self.spin_guard()
        e(f"s_branch {lp}")
        self.lab(go)

    def k_addrs(self, base_expr):
        self.e(f"v_add_u32 v{V_AK}, {base_expr}, v{V_BK}")
        for ee in range(1, 8):
            self.e(f"v_xor_b32 v{V_AK+ee}, {ee << 5}, v{V_AK}")

    def v_addrs(self, base_expr):
        self.e(f"v_add_u32 v{V_AV}, {base_expr}, v{V_BV}")
        self.e(f"v_xor_b32 v{V_AV+1}, 64, v{V_AV}")

    def read_k(self, dst=V_K):
        for kk in range(16):
            off = (kk >> 3) * 256
            self.e(f"ds_read_b128 v[{dst+4*kk}:{dst+4*kk+3}], v{V_AK + (kk & 7)} offset:{off}")

    def read_v(self, kss, dst=V_V):
        for ks in kss:
            for dtl in range(2):
                for jhi in range(2):
                    off = (16 * ks + 8 * jhi) * 512
                    r = dst + 8 * ks + 4 * dtl + 2 * jhi
                    self.e(f"ds_read_b64_tr_b16 v[{r}:{r+1}], v{V_AV + dtl} offset:{off}")

    def qk_mfma(self, kk):
        cin = "0" if kk == 0 else f"v[{V_S}:{V_S+15}]"
        self.e(f"v_mfma_f32_32x32x16_bf16 v[{V_S}:{V_S+15}], v[{V_K+4*kk}:{V_K+4*kk+3}], "
               f"v[{V_Q+4*kk}:{V_Q+4*kk+3}], {cin}")

    def pv(self, kss, oset, first=False, vsrc=V_V):
        for ks in kss:
            for dtl in range(2):
                o = V_O + 32 * oset + 16 * dtl
                r = vsrc + 8 * ks + 4 * dtl
                cin = "0" if first else f"v[{o}:{o+15}]"
                self.e(f"v_mfma_f32_32x32x16_bf16 v[{o}:{o+15}], v[{r}:{r+3}], v[{V_P+4*ks}:{V_P+4*ks+3}], {cin}")

    def xhalf(self, op, dst, a, b):
        self.e(f"v_mov_b32 v{b}, v{a}")
        self.e("s_nop 1")
        self.e(f"v_permlane32_swap_b32 v{a}, v{b}")
        self.e("s_nop 1")
        self.e(f"{op} v{dst}, v{a}, v{b}")

    def pkmul(self, r, f):
        self.e(f"v_pk_mul_f32 v[{r}:{r+1}], v[{r}:{r+1}], v[{f}:{f+1}] op_sel_hi:[1,0]")

    def pkadd(self, d, a, b):
        self.e(f"v_pk_add_f32 v[{d}:{d+1}], v[{a}:{a+1}], v[{b}:{b+1}]")

    def softmax(self):
        e = self.e
        S, T = V_S, V_T
        e(f"v_max3_f32 v{T}, v{S}, v{S+1}, v{S+2}")
        e(f"v_max3_f32 v{T+1}, v{S+3}, v{S+4}, v{S+5}")
        e(f"v_max3_f32 v{T+2}, v{S+6}, v{S+7}, v{S+8}")
        e(f"v_max3_f32 v{T+3}, v{S+9}, v{S+10}, v{S+11}")
        e(f"v_max3_f32 v{T}, v{T}, v{S+12}, v{S+13}")
        e(f"v_max3_f32 v{T+1}, v{T+1}, v{S+14}, v{S+15}")
        e(f"v_max3_f32 v{T}, v{T}, v{T+1}, v{T+2}")
        e(f"v_max_f32 v{T}, v{T}, v{T+3}")
        self.xhalf("v_max_f32", T, T, T + 1)
        e(f"v_mul_f32 v{T}, s{S_C}, v{T}")
        e(f"v_max_f32 v{T}, v{T}, v{V_M}")
        e(f"v_sub_f32 v{T+1}, v{V_M}, v{T}")
        e(f"v_mov_b32 v{V_M}, v{T}")
        e(f"v_exp_f32 v{V_ALPHA}, v{T+1}")
        for i in range(16):
            e(f"v_fma_f32 v{S+i}, v{S+i}, s{S_C}, -v{V_M}")
        for i in range(16):
            e(f"v_exp_f32 v{S+i}, v{S+i}")
        e("s_nop 0")
        for i in range(8):
            e(f"v_cvt_pk_bf16_f32 v{V_P+i}, v{S+2*i}, v{S+2*i+1}")
        e(f"ds_write_b32 v{V_AA}, v{V_ALPHA}")
        e(f"ds_write_b128 v{V_PA}, v[{V_P}:{V_P+3}]")
        e(f"ds_write_b128 v{V_PA}, v[{V_P+4}:{V_P+7}] offset:1024")
        e(f"v_add_f32 v{T}, v{S}, v{S+1}")
        e(f"v_add_f32 v{T+1}, v{S+2}, v{S+3}")
        for i in range(4, 16, 2):
            e(f"v_add_f32 v{T}, v{T}, v{S+i}")
            e(f"v_add_f32 v{T+1}, v{T+1}, v{S+i+1}")
        e(f"v_add_f32 v{T}, v{T}, v{T+1}")
        e(f"v_fma_f32 v{V_L}, v{V_L}, v{V_ALPHA}, v{T}")

    def p_addrs(self):
        e = self.e
        e(f"s_add_u32 s{S_T}, s{S_PS0}, s{S_J}")
        if N2 > NPS:
            e(f"s_min_u32 s{S_T}, s{S_T}, {NPS-1}")
        e(f"s_lshl_b32 s{S_T+1}, s{S_T}, 11")
        e(f"s_lshl_b32 s{S_T}, s{S_T}, 7")
        e(f"v_add_u32 v{V_PA}, s{S_T+1}, v{V_PB}")
        e(f"v_add_u32 v{V_AA}, s{S_T}, v{V_AB}")

    def release(self, sreg):
        self.e(f"v_mov_b32 v{V_F}, s{sreg}")
        self.e(f"ds_write_b32 v{V_RELA}, v{V_F}")

    def gen(self):
        a = self.a
        e, lab, c = self.e, self.lab, self.c
        T = V_T
        S = V_S
        Gp, R = a.group, a.ring
        GPU = 16 // Gp
        K = NAME + "_kernel"
        out = HEADER + f"; @launch grid=(256,1,1) block=(320,1,1) lds={LDS_TOTAL}\n"
        out += '.amdgcn_target "amdgcn-amd-amdhsa--gfx950"\n.text\n'
        out += f".globl {K}\n.p2align 8\n.type {K},@function\n{K}:\n"

        e("s_cmp_ge_u32 s2, 256")
        e("s_cbranch_scc1 L_end")
        if a.stamps:
            e("s_memtime s[96:97]")
        self.stamp(0)
        e("s_load_dwordx16 s[4:19], s[0:1], 0")
        e("s_load_dwordx2 s[20:21], s[0:1], 64")
        e(f"v_lshrrev_b32 v{T}, 6, v0")
        e(f"v_and_b32 v{V_LANE}, 63, v0")
        e(f"v_readfirstlane_b32 s{S_WAVE}, v{T}")
        e(f"v_lshrrev_b32 v{T+1}, 5, v{V_LANE}")
        e(f"v_and_b32 v{T+2}, 31, v{V_LANE}")
        e(f"s_and_b32 s{S_PAIR}, s2, 63")
        e(f"s_lshr_b32 s{S_SPLIT}, s2, 6")
        e(f"v_mov_b32 v{V_FLAGA}, {LDS_FLAG}")
        e(f"v_mov_b32 v{V_ZERO}, 0")
        e(f"s_mov_b32 s{S_SPIN}, {a.spin}")
        if a.stamps:
            e(f"s_mov_b32 s{S_T+9}, 0")
        e(f"s_cmp_lg_u32 s{S_WAVE}, 0")
        e("s_cbranch_scc1 L_consumer")

        c("================= loader wave =================")
        e("s_setprio 3")
        self.dma_offsets(V_LD, V_LD + 8)
        c("tile order is rotated per pair (de-phases the streams of different pairs)")
        e(f"s_mul_i32 s{S_TB}, s{S_PAIR}, {a.rmul}")
        e(f"s_and_b32 s{S_OFF}, s{S_TB}, 63")
        e(f"s_lshl_b32 s{S_OFF}, s{S_OFF}, 14")
        e(f"s_add_u32 s{S_OFF2}, s{S_OFF}, 8192")
        e(f"s_lshl_b32 s{S_T}, s{S_PAIR}, 22")
        e(f"s_lshl_b32 s{S_T+1}, s{S_SPLIT}, 20")
        e(f"s_add_u32 s{S_T}, s{S_T}, s{S_T+1}")
        e(f"s_mov_b32 s{S_SLOT}, 0")
        e("s_waitcnt lgkmcnt(0)")
        self.srd_off(SRD_K, 6, 7, S_T, 1 << 20)
        soffs = [f"s{S_OFF}", f"s{S_OFF2}"]

        def m0_slot(q):
            e(f"s_add_u32 m0, s{S_SLOT}, {LDS_RING + q*4096}")

        def m0_abs(base):
            def f(q):
                e(f"s_mov_b32 m0, {base + q*4096}")
            return f

        def group(kind, g):
            for p in range(g * Gp, (g + 1) * Gp):
                if kind == "K":
                    self.piece("K", p, SRD_K, soffs, m0_slot, V_LD, a.pol)
                else:
                    self.piece("V", p, SRD_V, soffs, m0_slot, V_LD + 8, a.pol)

        def publish():
            e(f"s_waitcnt vmcnt({(R-1)*Gp})")
            e(f"s_sub_i32 s{S_T+2}, s{S_ISS}, {R-1}")
            e(f"s_max_i32 s{S_T+2}, s{S_T+2}, 0")
            e(f"v_mov_b32 v{V_F}, s{S_T+2}")
            e(f"ds_write_b32 v{V_FLAGA}, v{V_F}")
            e(f"s_add_u32 s{S_ISS}, s{S_ISS}, 1")

        c("unit 0 goes out immediately")
        for g in range(GPU):
            group("K", g)
        self.srd_off(SRD_V, 8, 9, S_T, 1 << 20)
        if a.stamps:
            self.srd(SRD_WS, 20, 21, 64 << 20)
        e(f"v_mov_b32 v{V_ALPHA}, 0")
        e(f"ds_write_b64 v{V_FLAGA}, v[{V_ALPHA}:{V_ALPHA+1}]")
        e(f"ds_write_b64 v{V_FLAGA}, v[{V_ALPHA}:{V_ALPHA+1}] offset:8")
        e(f"s_mov_b32 s{S_ISS}, {GPU}")
        e(f"s_mov_b32 s{S_U}, 1")
        e(f"s_mov_b32 s{S_J}, 1")
        e(f"s_mov_b32 s{S_N}, {N1}")
        e("s_waitcnt lgkmcnt(0)")
        e("s_barrier")

        def ld_phase(kind):
            lab(f"L_ld_{kind}")
            e(f"s_add_u32 s{S_OFF}, s{S_TB}, s{S_J}")
            e(f"s_and_b32 s{S_OFF}, s{S_OFF}, 63")
            e(f"s_lshl_b32 s{S_OFF}, s{S_OFF}, 14")
            e(f"s_add_u32 s{S_OFF2}, s{S_OFF}, 8192")
            self.slot_of_u(early=(kind == "K"))
            c("slot free?  every wave has released all units below u-2 (u-5 in the 6-slot start-up ring)")
            e(f"s_cmp_lt_u32 s{S_U}, {N1}")
            e(f"s_cselect_b32 s{S_T+4}, 5, 2")
            def free_estimate():
                e(f"ds_read_b128 v[{V_S}:{V_S+3}], v{V_FLAGA} offset:16")
                e("s_waitcnt lgkmcnt(0)")
                e(f"v_min_u32 v{V_S}, v{V_S}, v{V_S+1}")
                e(f"v_min3_u32 v{V_S}, v{V_S}, v{V_S+2}, v{V_S+3}")
                e("s_nop 0")
                e(f"v_readfirstlane_b32 s{S_T}, v{V_S}")
                e("s_nop 0")
                e(f"s_add_u32 s{S_T}, s{S_T}, s{S_T+4}")
            free_estimate()
            publish()
            lab(f"L_ld_chk{kind}")
            e(f"s_cmp_ge_u32 s{S_T}, s{S_U}")
            e(f"s_cbranch_scc1 L_ld_free{kind}")
            if a.stamps:
                e(f"s_mov_b32 s{S_T+3}, 1")
                e(f"s_cmp_ge_u32 s{S_U}, 8")
                e(f"s_cselect_b32 s{S_T+3}, 0x100, s{S_T+3}")
                e(f"s_cmp_ge_u32 s{S_U}, 28")
                e(f"s_cselect_b32 s{S_T+3}, 0x10000, s{S_T+3}")
                e(f"s_cmp_ge_u32 s{S_U}, 74")
                e(f"s_cselect_b32 s{S_T+3}, 0x1000000, s{S_T+3}")
                e(f"s_add_u32 s{S_T+9}, s{S_T+9}, s{S_T+3}")
            self.spin_guard()
            free_estimate()
            e(f"s_branch L_ld_chk{kind}")
            lab(f"L_ld_free{kind}")
            if a.stamps:
                su = [int(v) for v in a.su.split(",")]
                for ti, si in ((su[0], 1), (su[1], 2), (su[2], 4)):
                    l2 = self.newlab("pst")
                    e(f"s_cmp_lg_u32 s{S_U}, {ti}")
                    e(f"s_cbranch_scc1 {l2}")
                    self.stamp(si)
                    lab(l2)
            group(kind, 0)
            for g in range(1, GPU):
                publish()
                group(kind, g)
            e(f"s_add_u32 s{S_U}, s{S_U}, 1")
            e(f"s_add_u32 s{S_J}, s{S_J}, 1")
            e(f"s_cmp_lt_u32 s{S_J}, s{S_N}")
            e(f"s_cbranch_scc1 L_ld_{kind}")
            e(f"s_mov_b32 s{S_J}, 0")

        assert R - 1 <= 2 * GPU
        ld_phase("K")
        ld_phase("V")
        e(f"s_add_u32 s{S_TB}, s{S_TB}, s{S_N}")
        e(f"s_mov_b32 s{S_N}, {N2}")
        e(f"s_cmp_lt_u32 s{S_U}, {NU}")
        e("s_cbranch_scc1 L_ld_K")
        c("drain")
        for r in range(R - 1, -1, -1):
            e(f"s_waitcnt vmcnt({r*Gp})")
            e(f"v_mov_b32 v{V_F}, {NU*GPU - r}")
            e(f"ds_write_b32 v{V_FLAGA}, v{V_F}")
        self.stamp(3)
        self.stamp_store()
        e("s_endpgm")

        lab("L_consumer")
        c("================= compute waves =================")
        e(f"s_sub_u32 s{S_CI}, s{S_WAVE}, 1")
        e(f"s_lshl_b32 s{S_T}, s{S_CI}, 2")
        e(f"s_add_u32 s{S_T+1}, s{S_T}, {LDS_FLAG + 16}")
        e(f"v_mov_b32 v{V_RELA}, s{S_T+1}")
        e(f"s_add_u32 s{S_T+1}, s{S_T}, {LDS_FLAG + 8}")
        e(f"v_mov_b32 v{V_PDA}, s{S_T+1}")
        e(f"ds_write_b32 v{V_RELA}, v{V_ZERO}")
        c("DMA source offsets (temporarily in the K fragment registers)")
        self.dma_offsets(V_K, V_K + 8)
        e(f"s_lshl_b32 s{S_T+1}, s{S_PAIR}, 14")
        e(f"s_lshl_b32 s{S_T+2}, s{S_PAIR}, 13")
        c("Q pieces 4c..4c+3: source offsets of pieces (4c+i)&7, soffset (c>>1)*8192, LDS_Q + c*4096")
        e(f"s_and_b32 s{S_T+3}, s{S_CI}, 1")
        e(f"s_mul_i32 s{S_T+3}, s{S_T+3}, {128 | 4096}")
        for i in range(4):
            e(f"v_xor_b32 v{V_K+12+i}, s{S_T+3}, v{V_K+i}")
        e(f"s_lshr_b32 s{S_T+4}, s{S_CI}, 1")
        e(f"s_lshl_b32 s{S_T+4}, s{S_T+4}, 13")
        e(f"s_lshl_b32 s{S_T+5}, s{S_CI}, 12")
        e("s_waitcnt lgkmcnt(0)")
        self.srd_off(SRD_Q, 4, 5, S_T + 1, 16384)
        e(f"s_add_u32 m0, s{S_T+5}, {LDS_Q}")
        e("s_nop 0")
        for i in range(4):
            e(f"buffer_load_dwordx4 v{V_K+12+i}, s[{SRD_Q}:{SRD_Q+3}], s{S_T+4} offen offset:{i*1024} lds")
        e(f"s_cmp_lg_u32 s{S_SPLIT}, 3")
        e("s_cbranch_scc1 L_c_notree0")
        c("split 3: wave c=2 stages tree K, c=3 tree V; everyone loads its mask words")
        self.srd(SRD_MSK, 14, 15, 4096)
        e(f"v_and_b32 v{T+6}, 15, v{V_LANE}")
        e(f"v_lshlrev_b32 v{T+6}, 5, v{T+6}")
        e(f"v_lshl_or_b32 v{T+6}, v{T+1}, 3, v{T+6}")
        e(f"s_lshr_b32 s{S_T+4}, s{S_PAIR}, 3")
        e(f"s_lshl_b32 s{S_T+4}, s{S_T+4}, 9")
        e(f"buffer_load_dwordx2 v[{V_MSK}:{V_MSK+1}], v{T+6}, s[{SRD_MSK}:{SRD_MSK+3}], s{S_T+4} offen")
        e(f"buffer_load_dwordx2 v[{V_MSK+2}:{V_MSK+3}], v{T+6}, s[{SRD_MSK}:{SRD_MSK+3}], s{S_T+4} offen offset:16")
        e(f"s_cmp_lg_u32 s{S_CI}, 2")
        e("s_cbranch_scc1 L_c_tk_done")
        self.srd_off(SRD_TK, 10, 11, S_T + 2, 8192)
        for j in range(8):
            self.piece("K", j, SRD_TK, ["0"], m0_abs(LDS_TREE), V_K, "")
        lab("L_c_tk_done")
        e(f"s_cmp_lg_u32 s{S_CI}, 3")
        e("s_cbranch_scc1 L_c_notree0")
        self.srd_off(SRD_TK, 12, 13, S_T + 2, 8192)
        for j in range(8):
            self.piece("V", j, SRD_TK, ["0"], m0_abs(LDS_TREE + 8192), V_K + 8, "")
        lab("L_c_notree0")
        e("s_barrier")
        self.stamp(1)
        self.stamp(2)
        self.srd_off(SRD_OUT, 16, 17, S_T + 1, 16384)
        self.srd(SRD_WS, 20, 21, 64 << 20)
        self.srd(SRD_DBG, 18, 19, 256)
        c("LDS read bases")
        e(f"v_and_b32 v{T+3}, 15, v{T+2}")
        e(f"v_xor_b32 v{T+3}, v{T+3}, v{T+1}")
        e(f"v_lshlrev_b32 v{T+3}, 4, v{T+3}")
        e(f"v_lshl_or_b32 v{V_BK}, v{T+2}, 9, v{T+3}")
        e(f"v_bfe_u32 v{T+3}, v{V_LANE}, 2, 2")
        e(f"v_lshl_add_u32 v{T+4}, v{T+1}, 2, v{T+3}")
        e(f"v_lshlrev_b32 v{T+4}, 9, v{T+4}")
        e(f"v_lshl_or_b32 v{T+4}, v{T+3}, 6, v{T+4}")
        e(f"v_bfe_u32 v{T+3}, v{V_LANE}, 4, 1")
        e(f"v_lshl_or_b32 v{T+4}, v{T+3}, 5, v{T+4}")
        e(f"v_and_b32 v{T+3}, 3, v{V_LANE}")
        e(f"v_lshl_or_b32 v{T+4}, v{T+3}, 3, v{T+4}")
        c("d-tiles 2c, 2c+1: xor (dt&3)<<6, + (dt>>2)*256")
        e(f"s_and_b32 s{S_T}, s{S_CI}, 1")
        e(f"s_lshl_b32 s{S_T}, s{S_T}, 7")
        e(f"s_lshr_b32 s{S_T+1}, s{S_CI}, 1")
        e(f"s_lshl_b32 s{S_T+1}, s{S_T+1}, 8")
        e(f"s_or_b32 s{S_T}, s{S_T}, s{S_T+1}")
        e(f"v_xor_b32 v{V_BV}, s{S_T}, v{T+4}")
        e(f"v_lshlrev_b32 v{V_A16}, 4, v{V_LANE}")
        e(f"v_lshlrev_b32 v{V_A8}, 3, v{V_LANE}")
        e(f"v_add_u32 v{V_PB}, {LDS_P}, v{V_A16}")
        e(f"v_lshlrev_b32 v{V_AB}, 2, v{T+2}")
        e(f"v_add_u32 v{V_AB}, {LDS_AL}, v{V_AB}")
        c("output address: q = l&31, d = 64*c + 8*g8 + 4*h")
        e(f"v_lshlrev_b32 v{V_AOUT}, 9, v{T+2}")
        e(f"v_lshl_or_b32 v{V_AOUT}, v{T+1}, 3, v{V_AOUT}")
        e(f"s_mov_b32 s{S_C}, 0x{f32bits(CSCALE):08x}")
        e(f"s_mov_b32 s{S_CM}, 0x{f32bits(CMASK):08x}")
        e(f"s_mov_b32 s{S_LANDED}, 0")
        e(f"s_mov_b32 s{S_PD0}, 0")
        e(f"s_mov_b32 s{S_PD1}, 0")
        e(f"s_mov_b32 s{S_PCNT}, 0")
        e(f"s_mov_b32 s{S_EARLY}, 0")
        e(f"s_mov_b32 s{S_TKT}, 0")
        e(f"s_mov_b32 s{S_U0}, 0")
        e(f"s_mov_b32 s{S_N}, {N1}")
        e(f"s_mov_b32 s{S_PS0}, {PS_R1}")
        e(f"s_lshl_b32 s{S_WSB}, s{S_PAIR}, {WS_PAIR_SH}")
        e(f"s_lshl_b32 s{S_CTR}, s{S_CI}, 8")
        e(f"s_add_u32 s{S_CTR}, s{S_CTR}, s{S_WSB}")
        e(f"s_add_u32 s{S_CTR}, s{S_CTR}, {WS_CTR}")
        if a.touch:
            c("wave c=3 touches the pages that are first needed later (V, d_ws region, d_out): warms the TLBs")
            e(f"s_cmp_lg_u32 s{S_CI}, 3")
            e("s_cbranch_scc1 L_notouch")
            e(f"s_lshl_b32 s{S_T}, s{S_PAIR}, 22")
            e(f"s_lshl_b32 s{S_T+1}, s{S_SPLIT}, 20")
            e(f"s_add_u32 s{S_T}, s{S_T}, s{S_T+1}")
            self.srd_off(SRD_V, 8, 9, S_T, 1 << 20)
            e(f"s_add_u32 s{S_T}, s{S_WSB}, {WS_SPARE}")
            e("s_mov_b64 exec, 1")
            e(f"buffer_load_dword v{S}, v{V_ZERO}, s[{SRD_V}:{SRD_V+3}], 0 offen nt")
            e(f"buffer_load_dword v{S+1}, v{V_ZERO}, s[{SRD_WS}:{SRD_WS+3}], s{S_T} offen nt")
            e(f"buffer_load_dword v{S+2}, v{V_ZERO}, s[{SRD_OUT}:{SRD_OUT+3}], 0 offen nt")
            e("s_mov_b64 exec, -1")
            lab("L_notouch")
        c("waves that skip the first K phase release its units right away")
        e(f"s_cmp_ge_u32 s{S_CI}, 2")
        e(f"s_cselect_b32 s{S_T}, {N1}, s{S_CI}")
        self.release(S_T)
        self.k_addrs(str(LDS_Q))
        e(f"v_mov_b32 v{V_TK}, 1")
        c("own staged pieces landed -> count; wait for all four waves")
        e("s_waitcnt vmcnt(0)")
        e("s_mov_b64 exec, 1")
        e(f"ds_add_u32 v{V_FLAGA}, v{V_TK} offset:4")
        e("s_mov_b64 exec, -1")
        self.poll("4", sreg=S_NEED, off=4, precheck=False, sleep=1)
        self.read_k(V_Q)

        e(f"s_cmp_lg_u32 s{S_SPLIT}, 3")
        e("s_cbranch_scc1 L_notree")
        c("---- tree tile (16 keys, masked): computed by every wave, goes into accumulator set 0 ----")
        self.k_addrs(str(LDS_TREE))
        self.read_k()
        for i in range(4):
            e(f"v_lshlrev_b32 v{V_MT+2*i}, 16, v{V_MSK+i}")
            e(f"v_and_b32 v{V_MT+2*i+1}, 0xffff0000, v{V_MSK+i}")
        for i in range(8):
            e(f"v_sub_f32 v{V_MT+i}, 1.0, v{V_MT+i}")
        for i in range(8):
            e(f"v_mul_f32 v{V_MT+i}, s{S_CM}, v{V_MT+i}")
        self.v_addrs(str(LDS_TREE + 8192))
        self.read_v([0], dst=V_MT + 12)
        e("s_waitcnt lgkmcnt(0)")
        for kk in range(16):
            self.qk_mfma(kk)
        e("s_nop 15")
        for i in range(8):
            e(f"v_fma_f32 v{S+i}, v{S+i}, s{S_C}, v{V_MT+i}")
        e(f"v_max3_f32 v{T}, v{S}, v{S+1}, v{S+2}")
        e(f"v_max3_f32 v{T+1}, v{S+3}, v{S+4}, v{S+5}")
        e(f"v_max3_f32 v{T}, v{T}, v{S+6}, v{S+7}")
        e(f"v_max_f32 v{T}, v{T}, v{T+1}")
        self.xhalf("v_max_f32", V_M, T, T + 1)
        for i in range(8):
            e(f"v_sub_f32 v{S+i}, v{S+i}, v{V_M}")
        for i in range(8):
            e(f"v_exp_f32 v{S+i}, v{S+i}")
        e("s_nop 0")
        e(f"v_add_f32 v{V_L}, v{S}, v{S+1}")
        for i in range(2, 8):
            e(f"v_add_f32 v{V_L}, v{V_L}, v{S+i}")
        for i in range(4):
            e(f"v_cvt_pk_bf16_f32 v{V_P+i}, v{S+2*i}, v{S+2*i+1}")
        e("s_nop 1")
        self.pv([0], 0, first=True, vsrc=V_MT + 12)
        e("s_nop 7")
        e(f"s_cmp_eq_u32 s{S_CI}, 0")
        e("s_cbranch_scc1 L_set1")
        e(f"v_mov_b32 v{V_M}, 0xff800000")
        e(f"v_mov_b32 v{V_L}, 0")
        e("s_branch L_set1")
        lab("L_notree")
        e(f"v_mov_b32 v{V_M}, 0xff800000")
        e(f"v_mov_b32 v{V_L}, 0")
        for i in range(32):
            e(f"v_mov_b32 v{V_O+i}, 0")
        lab("L_set1")
        for i in range(32):
            e(f"v_mov_b32 v{V_O+32+i}, 0")
        e("s_waitcnt lgkmcnt(0)")
        c("counter initialisation: wave c=2 of workgroup 0 claims d_debug[0] and zeroes all merge counters")
        e(f"s_xor_b32 s{S_T}, s{S_CI}, 2")
        e(f"s_or_b32 s{S_T}, s{S_T}, s2")
        e(f"s_cmp_lg_u32 s{S_T}, 0")
        e("s_cbranch_scc1 L_round")
        self.claim_and_init("L_round", "L_round")

        self.L.append(".p2align 6")
        lab("L_round")
        e(f"s_cmp_ge_u32 s{S_CI}, 2")
        e("s_cbranch_scc1 L_kskip")
        c("---- K phase (producers c = 0, 1 take alternate tiles) ----")
        e(f"s_mov_b32 s{S_J}, s{S_CI}")
        lab("L_kloop")
        e(f"s_add_u32 s{S_U}, s{S_U0}, s{S_J}")
        self.slot_of_u()
        self.k_addrs(f"s{S_SLOT}")
        self.p_addrs()
        e(f"s_add_u32 s{S_NEED}, s{S_U}, 1")
        e(f"s_mul_i32 s{S_NEED}, s{S_NEED}, {GPU}")
        e(f"s_add_u32 s{S_T+2}, s{S_U}, 2")
        e(f"s_add_u32 s{S_T+3}, s{S_U0}, s{S_N}")
        e(f"s_min_u32 s{S_T+2}, s{S_T+2}, s{S_T+3}")
        self.poll(f"s{S_NEED}", sleep=1)
        self.read_k()
        e(f"v_mov_b32 v{V_F}, s{S_T+2}")
        for kk in range(16):
            if kk < 8:
                e(f"s_waitcnt lgkmcnt({15 - kk})")
            elif kk == 8:
                e("s_waitcnt lgkmcnt(0)")
                e(f"ds_write_b32 v{V_RELA}, v{V_F}")
            self.qk_mfma(kk)
        e(f"s_add_u32 s{S_PCNT}, s{S_PCNT}, 1")
        e(f"v_mov_b32 v{V_TK}, s{S_PCNT}")
        e("s_nop 15")
        self.softmax()
        e("s_waitcnt lgkmcnt(0)")
        e(f"ds_write_b32 v{V_PDA}, v{V_TK}")
        e(f"s_add_u32 s{S_J}, s{S_J}, 2")
        e(f"s_cmp_lt_u32 s{S_J}, s{S_N}")
        e("s_cbranch_scc1 L_kloop")
        c("publish (m, l) of this producer (read by everyone after the last round)")
        e(f"v_mov_b32 v{T+2}, v{V_M}")
        e(f"v_mov_b32 v{T}, v{V_L}")
        self.xhalf("v_add_f32", T + 3, T, T + 1)
        e(f"s_lshl_b32 s{S_T}, s{S_CI}, 8")
        e(f"s_add_u32 s{S_T}, s{S_T}, {LDS_STAT}")
        e(f"v_and_b32 v{T}, 31, v{V_LANE}")
        e(f"v_lshlrev_b32 v{T}, 3, v{T}")
        e(f"v_add_u32 v{T}, s{S_T}, v{T}")
        e(f"ds_write_b64 v{T}, v[{T+2}:{T+3}]")
        e(f"s_add_u32 s{S_PCNT}, s{S_PCNT}, 1")
        e(f"v_mov_b32 v{V_TK}, s{S_PCNT}")
        e("s_waitcnt lgkmcnt(0)")
        e(f"ds_write_b32 v{V_PDA}, v{V_TK}")
        e("s_branch L_vphase")
        lab("L_kskip")
        c("wave c=2 makes sure the merge counters have been zeroed before the last V phase")
        c("(the ring dependency then covers every other wave of the workgroup)")
        e(f"s_cmp_lg_u32 s{S_CI}, 2")
        e("s_cbranch_scc1 L_vphase")
        e(f"s_cmp_eq_u32 s{S_U0}, 0")
        e("s_cbranch_scc1 L_vphase")
        e("s_mov_b64 exec, 1")
        e(f"buffer_load_dword v{V_TK}, v{V_ZERO}, s[{SRD_DBG}:{SRD_DBG+3}], 0 offen sc1")
        e("s_mov_b64 exec, -1")
        e("s_waitcnt vmcnt(0)")
        e(f"v_readfirstlane_b32 s{S_T}, v{V_TK}")
        e("s_nop 0")
        e(f"s_cmp_lg_u32 s{S_T}, 3")
        e("s_cbranch_scc1 L_check_loop")

        lab("L_vphase")
        c("---- V phase ----")
        e(f"s_mov_b32 s{S_J}, 0")
        c("pdone base of this round: round 2 starts after N1/2 tiles + 1 stats mark")
        e(f"s_cmp_eq_u32 s{S_U0}, 0")
        e(f"s_cselect_b32 s{S_T+8}, 0, {N1//2 + 1}")
        lab("L_vloop")
        for st in range(2):
            spd = S_PD0 if st == 0 else S_PD1
            e(f"s_add_u32 s{S_U}, s{S_U0}, s{S_N}")
            e(f"s_add_u32 s{S_U}, s{S_U}, s{S_J}")
            self.slot_of_u(early=False)
            self.v_addrs(f"s{S_SLOT}")
            self.p_addrs()
            e(f"s_lshr_b32 s{S_NEED}, s{S_J}, 1")
            e(f"s_add_u32 s{S_NEED}, s{S_NEED}, s{S_T+8}")
            e(f"s_add_u32 s{S_NEED}, s{S_NEED}, 1")
            self.poll(f"s{S_NEED}", sreg=spd, off=8 + 4 * st, sleep=2)
            e(f"ds_read_b32 v{V_ALPHA}, v{V_AA}")
            e(f"ds_read_b128 v[{V_P}:{V_P+3}], v{V_PA}")
            e(f"ds_read_b128 v[{V_P+4}:{V_P+7}], v{V_PA} offset:1024")
            if st == 0:
                e(f"s_cmp_ge_u32 s{S_U}, {NU - 8}")
                e("s_cbranch_scc1 L_hook")
                lab("L_hook_done")
            e(f"s_add_u32 s{S_T+2}, s{S_U}, 1")
            e(f"s_mul_i32 s{S_NEED}, s{S_T+2}, {GPU}")
            e("s_waitcnt lgkmcnt(0)")
            for i in range(0, 32, 2):
                self.pkmul(V_O + 32 * st + i, V_ALPHA)
            self.poll(f"s{S_NEED}", sleep=1)
            self.read_v([0, 1])
            e(f"v_mov_b32 v{V_F}, s{S_T+2}")
            e(f"s_add_u32 s{S_J}, s{S_J}, 1")
            e("s_waitcnt lgkmcnt(0)")
            e(f"ds_write_b32 v{V_RELA}, v{V_F}")
            self.pv([0, 1], st)
        e(f"s_cmp_lt_u32 s{S_J}, s{S_N}")
        e("s_cbranch_scc1 L_vloop")
        e(f"s_cmp_lg_u32 s{S_U0}, 0")
        e("s_cbranch_scc1 L_done")
        c("next round")
        e(f"s_mov_b32 s{S_U0}, {2*N1}")
        e(f"s_mov_b32 s{S_N}, {N2}")
        e(f"s_mov_b32 s{S_PS0}, 0")
        e(f"s_add_u32 s{S_T}, s{S_CI}, {2*N1}")
        e(f"s_cmp_ge_u32 s{S_CI}, 2")
        e(f"s_cselect_b32 s{S_T}, {2*N1 + N2}, s{S_T}")
        self.release(S_T)
        e("s_branch L_round")

        lab("L_done")
        self.stamp(3)
        A8, A16, AOUT = V_A8, V_A16, V_AOUT

        def issue_loads():
            c("stats of splits s^1, s^2, s^3 -> v[S+2i:S+2i+1]; partial O -> V_X + 32*(i-1)")
            for i in range(1, 4):
                e(f"s_xor_b32 s{S_T+1}, s{S_SPLIT}, {i}")
                e(f"s_lshl_b32 s{S_T+1}, s{S_T+1}, 2")
                e(f"s_add_u32 s{S_T+4+i}, s{S_T+1}, s{S_CI}")
                e(f"s_lshl_b32 s{S_T+3}, s{S_T+4+i}, 9")
                e(f"s_add_u32 s{S_T+3}, s{S_T+3}, s{S_WSB}")
                e(f"s_add_u32 s{S_T+3}, s{S_T+3}, {WS_STAT}")
                e(f"buffer_load_dwordx2 v[{S+2*i}:{S+2*i+1}], v{A8}, s[{SRD_WS}:{SRD_WS+3}], s{S_T+3} offen sc1")
            for i in range(1, 4):
                e(f"s_lshl_b32 s{S_T+1}, s{S_T+4+i}, 13")
                e(f"s_add_u32 s{S_T+1}, s{S_T+1}, s{S_WSB}")
                e(f"s_add_u32 s{S_T+3}, s{S_T+1}, 4096")
                for rq in range(8):
                    so = S_T + 1 if rq < 4 else S_T + 3
                    r = V_X + 32 * (i - 1) + 4 * rq
                    e(f"buffer_load_dwordx4 v[{r}:{r+3}], v{A16}, s[{SRD_WS}:{SRD_WS+3}], s{so} offen offset:{(rq & 3)*1024} sc1")

        c("---- merge the two accumulator sets (factors were prepared in the hook) ----")
        e("s_nop 7")
        for i in range(0, 32, 2):
            self.pkmul(V_O + i, V_F0)
        for i in range(0, 32, 2):
            self.pkmul(V_O + 32 + i, V_F1)
        for i in range(0, 32, 2):
            self.pkadd(V_O + i, V_O + i, V_O + 32 + i)
        c("---- merge the 4 splits ----")
        e(f"s_cmp_eq_u32 s{S_EARLY}, 1")
        e("s_cbranch_scc1 L_combine")
        e(f"s_and_b32 s{S_T+6}, s{S_TKT}, 0xffff")
        e(f"s_cmp_ge_u32 s{S_T+6}, 3")
        e("s_cbranch_scc1 L_wait_done")
        c("not last: publish partial (write-through), then bump the done count")
        e(f"s_lshl_b32 s{S_T}, s{S_SPLIT}, 2")
        e(f"s_add_u32 s{S_T}, s{S_T}, s{S_CI}")
        e(f"s_lshl_b32 s{S_T+1}, s{S_T}, 13")
        e(f"s_add_u32 s{S_T+1}, s{S_T+1}, s{S_WSB}")
        e(f"s_add_u32 s{S_T+2}, s{S_T+1}, 4096")
        e(f"s_lshl_b32 s{S_T+3}, s{S_T}, 9")
        e(f"s_add_u32 s{S_T+3}, s{S_T+3}, s{S_WSB}")
        e(f"s_add_u32 s{S_T+3}, s{S_T+3}, {WS_STAT}")
        e(f"buffer_store_dwordx2 v[{V_M}:{V_M+1}], v{A8}, s[{SRD_WS}:{SRD_WS+3}], s{S_T+3} offen sc1")
        for rq in range(8):
            so = S_T + 1 + (rq >> 2)
            e(f"buffer_store_dwordx4 v[{V_O+4*rq}:{V_O+4*rq+3}], v{A16}, s[{SRD_WS}:{SRD_WS+3}], s{so} offen offset:{(rq & 3)*1024} sc1")
        e(f"v_mov_b32 v{V_TK}, 0x10000")
        e("s_waitcnt vmcnt(0)")
        e("s_mov_b64 exec, 1")
        e(f"buffer_atomic_add v{V_TK}, v{V_ZERO}, s[{SRD_WS}:{SRD_WS+3}], s{S_CTR} offen")
        e("s_mov_b64 exec, -1")
        if a.stamps:
            self.stamp(4)
            e(f"s_mov_b32 s{S_T+9}, 0")
            e("s_branch L_fin")
        else:
            e("s_endpgm")

        c("last arriver: wait until the other three have published")
        lab("L_wait_done")
        e("s_mov_b64 exec, 1")
        e(f"buffer_load_dword v{V_TK}, v{V_ZERO}, s[{SRD_WS}:{SRD_WS+3}], s{S_CTR} offen sc1")
        e("s_mov_b64 exec, -1")
        e("s_waitcnt vmcnt(0)")
        e(f"v_readfirstlane_b32 s{S_TKT}, v{V_TK}")
        self.spin_guard()
        e(f"s_lshr_b32 s{S_T+6}, s{S_TKT}, 16")
        e(f"s_cmp_lg_u32 s{S_T+6}, 3")
        e("s_cbranch_scc1 L_wait_done")
        issue_loads()
        lab("L_combine")
        self.stamp(4)
        e(f"v_mov_b32 v{S}, v{V_M}")
        e(f"v_mov_b32 v{S+1}, v{V_L}")
        e(f"s_lshl_b32 s{S_T+8}, s{S_CI}, 7")
        e("s_waitcnt vmcnt(24)")
        e(f"v_max_f32 v{T}, v{S}, v{S+2}")
        e(f"v_max3_f32 v{V_M}, v{T}, v{S+4}, v{S+6}")
        F = [S + 8, S + 10, S + 12, S + 14]
        for i in range(4):
            e(f"v_sub_f32 v{F[i]}, v{S+2*i}, v{V_M}")
        for i in range(4):
            e(f"v_exp_f32 v{F[i]}, v{F[i]}")
        e("s_nop 0")
        for i in range(4):
            e(f"v_mul_f32 v{F[i]+1}, v{F[i]}, v{S+2*i+1}")
        e(f"v_add_f32 v{T}, v{F[0]+1}, v{F[1]+1}")
        e(f"v_add_f32 v{T+1}, v{F[2]+1}, v{F[3]+1}")
        e(f"v_add_f32 v{V_L}, v{T}, v{T+1}")
        e(f"v_rcp_f32 v{V_ALPHA}, v{V_L}")
        e("s_nop 0")
        for i in range(4):
            e(f"v_mul_f32 v{F[i]}, v{F[i]}, v{V_ALPHA}")
        src = [V_O, V_X, V_X + 32, V_X + 64]
        for i in range(4):
            if i:
                e(f"s_waitcnt vmcnt({24 - 8*i})")
            for r in range(0, 32, 2):
                self.pkmul(src[i] + r, F[i])
            if i == 1:
                for r in range(0, 32, 2):
                    self.pkadd(V_O + r, V_O + r, src[1] + r)
        for g8 in range(8):
            for r in (4 * g8, 4 * g8 + 2):
                self.pkadd(src[2] + r, src[2] + r, src[3] + r)
            for r in (4 * g8, 4 * g8 + 2):
                self.pkadd(V_O + r, V_O + r, src[2] + r)
            rr = V_X + 2 * g8
            e(f"v_cvt_pk_bf16_f32 v{rr}, v{V_O+4*g8}, v{V_O+4*g8+1}")
            e(f"v_cvt_pk_bf16_f32 v{rr+1}, v{V_O+4*g8+2}, v{V_O+4*g8+3}")
            e(f"buffer_store_dwordx2 v[{rr}:{rr+1}], v{AOUT}, s[{SRD_OUT}:{SRD_OUT+3}], s{S_T+8} offen offset:{g8*16}")
        if a.stamps:
            e("s_waitcnt vmcnt(0)")
            e(f"s_mov_b32 s{S_T+9}, 1")
            lab("L_fin")
            self.stamp_store()
        lab("L_end")
        e("s_endpgm")

        c("---- end-of-stream hooks, run at units NU-8, NU-6, NU-4, NU-2 (out of line) ----")
        lab("L_hook")
        e(f"s_cmp_lg_u32 s{S_U}, {NU - 8}")
        e("s_cbranch_scc1 L_hook2")
        c("NU-8: final (m, l) of both producers -> merge factors, M, L")
        e(f"s_mov_b32 s{S_NEED}, {(N1 + N2)//2 + 2}")
        self.poll(f"s{S_NEED}", sreg=S_PD0, off=8)
        self.poll(f"s{S_NEED}", sreg=S_PD1, off=12)
        e(f"v_and_b32 v{T}, 31, v{V_LANE}")
        e(f"v_lshlrev_b32 v{T}, 3, v{T}")
        e(f"v_add_u32 v{T}, {LDS_STAT}, v{T}")
        e(f"ds_read_b64 v[{S}:{S+1}], v{T}")
        e(f"ds_read_b64 v[{S+2}:{S+3}], v{T} offset:256")
        e("s_waitcnt lgkmcnt(0)")
        e(f"v_max_f32 v{V_M}, v{S}, v{S+2}")
        e(f"v_sub_f32 v{V_F0}, v{S}, v{V_M}")
        e(f"v_sub_f32 v{V_F1}, v{S+2}, v{V_M}")
        e(f"v_exp_f32 v{V_F0}, v{V_F0}")
        e(f"v_exp_f32 v{V_F1}, v{V_F1}")
        e("s_nop 0")
        e(f"v_mul_f32 v{S+1}, v{S+1}, v{V_F0}")
        e(f"v_mul_f32 v{S+3}, v{S+3}, v{V_F1}")
        e(f"v_add_f32 v{V_L}, v{S+1}, v{S+3}")
        e("s_branch L_hook_done")
        lab("L_hook2")
        e(f"s_cmp_lg_u32 s{S_U}, {NU - 6}")
        e("s_cbranch_scc1 L_hook3")
        c("NU-6: take the arrival ticket")
        e(f"v_mov_b32 v{V_TK}, 1")
        e("s_mov_b64 exec, 1")
        e(f"buffer_atomic_add v{V_TK}, v{V_ZERO}, s[{SRD_WS}:{SRD_WS+3}], s{S_CTR} offen sc0")
        e("s_mov_b64 exec, -1")
        e("s_branch L_hook_done")
        lab("L_hook3")
        e(f"s_cmp_lg_u32 s{S_U}, {NU - 4}")
        e("s_cbranch_scc1 L_hook4")
        c("NU-4: read the ticket; the last arriver refreshes the done count")
        e("s_waitcnt vmcnt(0)")
        e(f"v_readfirstlane_b32 s{S_TKT}, v{V_TK}")
        e("s_nop 0")
        e(f"s_and_b32 s{S_T}, s{S_TKT}, 0xffff")
        e(f"s_cmp_lg_u32 s{S_T}, 3")
        e("s_cbranch_scc1 L_hook_done")
        e("s_mov_b64 exec, 1")
        e(f"buffer_load_dword v{V_TK}, v{V_ZERO}, s[{SRD_WS}:{SRD_WS+3}], s{S_CTR} offen sc1")
        e("s_mov_b64 exec, -1")
        e("s_branch L_hook_done")
        lab("L_hook4")
        c("NU-2: if every other split has published, start loading their partials now")
        e(f"s_and_b32 s{S_T}, s{S_TKT}, 0xffff")
        e(f"s_cmp_lg_u32 s{S_T}, 3")
        e("s_cbranch_scc1 L_hook_done")
        e("s_waitcnt vmcnt(0)")
        e(f"v_readfirstlane_b32 s{S_T}, v{V_TK}")
        e("s_nop 0")
        e(f"s_lshr_b32 s{S_T}, s{S_T}, 16")
        e(f"s_cmp_lg_u32 s{S_T}, 3")
        e("s_cbranch_scc1 L_hook_done")
        issue_loads()
        e(f"s_mov_b32 s{S_EARLY}, 1")
        e("s_branch L_hook_done")

        c("rare: counters not ready yet. Claim the job if nobody has, else wait for whoever did.")
        lab("L_check_loop")
        self.claim_and_init("L_vphase", "L_check_wait")
        lab("L_check_wait")
        e("s_sleep 8")
        self.spin_guard()
        e("s_branch L_check_loop")

        out += "\n".join(self.L) + "\n"
        out += f""".section .rodata,"a"
.p2align 6
.amdhsa_kernel {K}
  .amdhsa_next_free_vgpr {NVGPR}
  .amdhsa_next_free_sgpr 102
  .amdhsa_accum_offset {NVGPR}
  .amdhsa_group_segment_fixed_size 0
  .amdhsa_kernarg_size 72
  .amdhsa_user_sgpr_count 2
  .amdhsa_user_sgpr_kernarg_segment_ptr 1
  .amdhsa_system_sgpr_workgroup_id_x 1
.end_amdhsa_kernel
"""
        return out


def main():
    ap = argparse.ArgumentParser()
    ap.add_argument("-o", default=f"cdna_kernels/{NAME}.s")
    ap.add_argument("--pol", default="nt")
    ap.add_argument("--stamps", type=int, default=0)
    ap.add_argument("--group", type=int, default=8)
    ap.add_argument("--ring", type=int, default=3)
    ap.add_argument("--sleep", type=int, default=2)
    ap.add_argument("--spin", type=int, default=4000000)
    ap.add_argument("--rmul", type=int, default=13)
    ap.add_argument("--su", default="8,32,80")
    ap.add_argument("--touch", type=int, default=0)
    args = ap.parse_args()
    args.pol = (" " + args.pol.replace(",", " ")) if args.pol else ""
    open(args.o, "w").write(G(args).gen())


if __name__ == "__main__":
    main()
```

```python
import argparse

from gen import HEADER, NAME, f32bits, CSCALE, CMASK

V_LANE = 1
V_T = 2
V_M = 10
V_L = 11
V_ALPHA = 12
V_ZERO = 13
V_FLAGA = 14
V_RELA = 15
V_BK = 16
V_BV = 17
V_PB = 18
V_AB = 19
V_A8 = 20
V_A16 = 21
V_AOUT = 22
V_PA = 23
V_AA = 24
V_PDA = 25
V_F0 = 26
V_AK = 28
V_AV = 28
V_F1 = 36
V_TK = 38
V_F = 39
V_P = 40
V_S = 48
V_O = 64
V_K = 128
V_V = 128
V_X = 144
V_Q = 192
V_MSK = 96
V_MT = 100
V_LD = 64
NVGPR = 256

S_SPLIT = 3
S_WAVE = 22
S_PAIR = 23
SRD_K = 24
SRD_V = 28
SRD_Q = 32
SRD_TK = 36
S_U0 = 40
S_N = 41
S_J = 42
S_PS0 = 43
SRD_MSK = 44
SRD_OUT = 48
SRD_WS = 52
SRD_DBG = 56
S_OFF = 60
S_OFF2 = 61
S_U = 62
S_C = 63
S_CM = 64
S_SLOT = 65
S_CI = 66
S_NEED = 67
S_LANDED = 68
S_CTR = 69
S_PCNT = 70
S_SPIN = 71
S_T = 72
S_TKT = 82
S_GOT = 83
S_ST = 84
S_PD0 = 100
S_PD1 = 101
S_WSB = 60
S_ISS = 43
S_TB = 70

import os
N1 = int(os.environ.get("G5_N1", "12"))
N2 = 64 - N1
NPS = 52
NU = 128
LDS_RING = 0
LDS_P = 49152
LDS_AL = LDS_P + NPS * 2048
LDS_FLAG = LDS_AL + NPS * 128
LDS_STAT = LDS_FLAG + 64
LDS_TOTAL = LDS_STAT + 512
LDS_Q = LDS_P
LDS_TREE = LDS_P + 16384
LDS_X = LDS_P + 32768
PS_R1 = NPS - N1
assert LDS_TOTAL <= 163840 and PS_R1 * 2048 >= 32768 + 49152 and N1 % 6 == 0

WS_PAIR_SH = 18
WS_STAT = 131072
WS_CTR = 147456
WS_SPARE = 163840
WS_STAMP = 32 << 20


class G:
    def __init__(self, args):
        self.a = args
        self.L = []
        self.uid = 0

    def e(self, s):
        self.L.append("    " + s)

    def lab(self, s):
        self.L.append(s + ":")

    def c(self, s):
        self.L.append("    ; " + s)

    def newlab(self, base):
        self.uid += 1
        return f"L_{base}_{self.uid}"

    def srd(self, d, lo, hi, nbytes):
        self.e(f"s_mov_b32 s{d}, s{lo}")
        self.e(f"s_and_b32 s{d+1}, s{hi}, 0xffff")
        self.e(f"s_mov_b32 s{d+2}, {nbytes}")
        self.e(f"s_mov_b32 s{d+3}, 0x00020000")

    def srd_off(self, d, lo, hi, soff, nbytes):
        self.e(f"s_add_u32 s{d}, s{lo}, s{soff}")
        self.e(f"s_addc_u32 s{d+1}, s{hi}, 0")
        self.e(f"s_and_b32 s{d+1}, s{d+1}, 0xffff")
        self.e(f"s_mov_b32 s{d+2}, {nbytes}")
        self.e(f"s_mov_b32 s{d+3}, 0x00020000")

    def stamp(self, i):
        if not self.a.stamps:
            return
        self.e(f"s_memrealtime s[{S_ST+2*i}:{S_ST+2*i+1}]")
        self.e("s_waitcnt lgkmcnt(0)")

    def stamp_store(self):
        if not self.a.stamps:
            return
        e = self.e
        e("s_memtime s[98:99]")
        self.stamp(5)
        e(f"s_getreg_b32 s{S_T}, hwreg(HW_REG_XCC_ID)")
        e(f"s_mul_i32 s{S_T+2}, s2, 5")
        e(f"s_add_u32 s{S_T+2}, s{S_T+2}, s{S_WAVE}")
        e(f"s_lshl_b32 s{S_T+2}, s{S_T+2}, 6")
        e(f"s_add_u32 s{S_T+2}, s{S_T+2}, {WS_STAMP}")
        for i in range(6):
            e(f"v_mov_b32 v{V_S+i}, s{S_ST+2*i}")
        e(f"v_mov_b32 v{V_S+6}, s{S_T}")
        e(f"v_mov_b32 v{V_S+7}, s{S_T+9}")
        e(f"v_mov_b32 v{V_S+8}, s96")
        e(f"v_mov_b32 v{V_S+9}, s98")
        e(f"v_mov_b32 v{V_S+10}, 0")
        e(f"v_mov_b32 v{V_S+11}, s{S_SPIN}")
        e(f"v_mov_b32 v{V_T}, 0")
        e("s_mov_b64 exec, 1")
        for q in range(3):
            e(f"buffer_store_dwordx4 v[{V_S+4*q}:{V_S+4*q+3}], v{V_T}, s[{SRD_WS}:{SRD_WS+3}], s{S_T+2} offen offset:{16*q}")
        e("s_mov_b64 exec, -1")

    def spin_guard(self):
        self.e(f"s_sub_u32 s{S_SPIN}, s{S_SPIN}, 1")
        self.e("s_cbranch_scc1 L_end")

    def slot_of_u(self, early=True):
        e = self.e
        e(f"s_mul_i32 s{S_T}, s{S_U}, 43691")
        e(f"s_lshr_b32 s{S_T}, s{S_T}, 17")
        e(f"s_mul_i32 s{S_T+1}, s{S_T}, 3")
        e(f"s_sub_u32 s{S_T+1}, s{S_U}, s{S_T+1}")
        e(f"s_lshl_b32 s{S_SLOT}, s{S_T+1}, 14")
        if early:
            e(f"s_and_b32 s{S_T}, s{S_T}, 1")
            e(f"s_cmp_lt_u32 s{S_U}, {N1}")
            e(f"s_cselect_b32 s{S_T}, s{S_T}, 0")
            e(f"s_mul_i32 s{S_T}, s{S_T}, {LDS_X}")
            e(f"s_add_u32 s{S_SLOT}, s{S_SLOT}, s{S_T}")

    def dma_offsets(self, dk, dv):
        e = self.e
        T = V_T
        e(f"v_xor_b32 v{T+3}, v{T+2}, v{T+1}")
        e(f"v_lshlrev_b32 v{T+3}, 4, v{T+3}")
        e(f"v_lshl_or_b32 v{T+3}, v{T+1}, 9, v{T+3}")
        for jj in range(8):
            e(f"v_xor_b32 v{dk+jj}, {(2*jj << 4) | ((jj >> 2) << 12)}, v{T+3}")
        e(f"v_lshlrev_b32 v{T+4}, 2, v{T+1}")
        e(f"v_xor_b32 v{T+4}, v{T+2}, v{T+4}")
        e(f"v_lshlrev_b32 v{T+4}, 4, v{T+4}")
        e(f"v_lshl_or_b32 v{T+4}, v{T+1}, 9, v{T+4}")
        for x in range(4):
            e(f"v_xor_b32 v{dv+x}, {((x & 1) * 128) | ((x >> 1) << 12)}, v{T+4}")

    def piece(self, kind, j, srd, soffs, m0, vbase, pol):
        if j % 4 == 0:
            m0(j >> 2)
            self.e("s_nop 0")
        imm = (j & 3) * 1024
        if kind == "K":
            vo = vbase + (j & 7)
        else:
            vo = vbase + (j & 1) + 2 * ((j >> 2) & 1)
        self.e(f"buffer_load_dwordx4 v{vo}, s[{srd}:{srd+3}], {soffs[j >> 3]} offen offset:{imm}{pol} lds")

    def claim_and_init(self, l_ready, l_busy):
        e = self.e
        T = V_T
        e(f"v_mov_b32 v{T+6}, 1")
        e(f"v_mov_b32 v{T+7}, 0")
        e("s_mov_b64 exec, 1")
        e(f"buffer_atomic_cmpswap v[{T+6}:{T+7}], v{V_ZERO}, s[{SRD_DBG}:{SRD_DBG+3}], 0 offen sc0")
        e("s_mov_b64 exec, -1")
        e("s_waitcnt vmcnt(0)")
        e(f"v_readfirstlane_b32 s{S_T}, v{T+6}")
        e("s_nop 0")
        e(f"s_cmp_eq_u32 s{S_T}, 3")
        e(f"s_cbranch_scc1 {l_ready}")
        e(f"s_cmp_lg_u32 s{S_T}, 0")
        e(f"s_cbranch_scc1 {l_busy}")
        e(f"v_lshlrev_b32 v{T+6}, {WS_PAIR_SH}, v{V_LANE}")
        for i in range(4):
            e(f"s_mov_b32 s{S_T}, {WS_CTR + i*256}")
            e(f"buffer_store_dword v{V_ZERO}, v{T+6}, s[{SRD_WS}:{SRD_WS+3}], s{S_T} offen sc1")
        e("s_waitcnt vmcnt(0)")
        e(f"v_mov_b32 v{T+6}, 3")
        e("s_mov_b64 exec, 1")
        e(f"buffer_atomic_swap v{T+6}, v{V_ZERO}, s[{SRD_DBG}:{SRD_DBG+3}], 0 offen")
        e("s_mov_b64 exec, -1")
        e(f"s_branch {l_ready}")

    def poll(self, need, sreg=S_LANDED, off=0, precheck=True, sleep=None):
        e = self.e
        lp, go = self.newlab("poll"), self.newlab("go")
        if precheck:
            e(f"s_cmp_ge_u32 s{sreg}, {need}")
            e(f"s_cbranch_scc1 {go}")
        self.lab(lp)
        e(f"ds_read_b32 v{V_F}, v{V_FLAGA} offset:{off}")
        e("s_waitcnt lgkmcnt(0)")
        e(f"v_readfirstlane_b32 s{sreg}, v{V_F}")
        e("s_nop 0")
        e(f"s_cmp_ge_u32 s{sreg}, {need}")
        e(f"s_cbranch_scc1 {go}")
        sl = self.a.sleep if sleep is None else sleep
        if sl:
            e(f"s_sleep {sl}")
        self.spin_guard()
        e(f"s_branch {lp}")
        self.lab(go)

    def k_addrs(self, base_expr):
        self.e(f"v_add_u32 v{V_AK}, {base_expr}, v{V_BK}")
        for ee in range(1, 8):
            self.e(f"v_xor_b32 v{V_AK+ee}, {ee << 5}, v{V_AK}")

    def v_addrs(self, base_expr):
        self.e(f"v_add_u32 v{V_AV}, {base_expr}, v{V_BV}")
        self.e(f"v_xor_b32 v{V_AV+1}, 64, v{V_AV}")

    def read_k(self, dst=V_K):
        for kk in range(16):
            off = (kk >> 3) * 256
            self.e(f"ds_read_b128 v[{dst+4*kk}:{dst+4*kk+3}], v{V_AK + (kk & 7)} offset:{off}")

    def read_v(self, kss, dst=V_V):
        for ks in kss:
            for dtl in range(2):
                for jhi in range(2):
                    off = (16 * ks + 8 * jhi) * 512
                    r = dst + 8 * ks + 4 * dtl + 2 * jhi
                    self.e(f"ds_read_b64_tr_b16 v[{r}:{r+1}], v{V_AV + dtl} offset:{off}")

    def qk_mfma(self, kk):
        cin = "0" if kk == 0 else f"v[{V_S}:{V_S+15}]"
        self.e(f"v_mfma_f32_32x32x16_bf16 v[{V_S}:{V_S+15}], v[{V_K+4*kk}:{V_K+4*kk+3}], "
               f"v[{V_Q+4*kk}:{V_Q+4*kk+3}], {cin}")

    def pv(self, kss, oset, first=False, vsrc=V_V):
        for ks in kss:
            for dtl in range(2):
                o = V_O + 32 * oset + 16 * dtl
                r = vsrc + 8 * ks + 4 * dtl
                cin = "0" if first else f"v[{o}:{o+15}]"
                self.e(f"v_mfma_f32_32x32x16_bf16 v[{o}:{o+15}], v[{r}:{r+3}], v[{V_P+4*ks}:{V_P+4*ks+3}], {cin}")

    def xhalf(self, op, dst, a, b):
        self.e(f"v_mov_b32 v{b}, v{a}")
        self.e("s_nop 1")
        self.e(f"v_permlane32_swap_b32 v{a}, v{b}")
        self.e("s_nop 1")
        self.e(f"{op} v{dst}, v{a}, v{b}")

    def pkmul(self, r, f):
        self.e(f"v_pk_mul_f32 v[{r}:{r+1}], v[{r}:{r+1}], v[{f}:{f+1}] op_sel_hi:[1,0]")

    def pkadd(self, d, a, b):
        self.e(f"v_pk_add_f32 v[{d}:{d+1}], v[{a}:{a+1}], v[{b}:{b+1}]")

    def softmax(self):
        e = self.e
        S, T = V_S, V_T
        e(f"v_max3_f32 v{T}, v{S}, v{S+1}, v{S+2}")
        e(f"v_max3_f32 v{T+1}, v{S+3}, v{S+4}, v{S+5}")
        e(f"v_max3_f32 v{T+2}, v{S+6}, v{S+7}, v{S+8}")
        e(f"v_max3_f32 v{T+3}, v{S+9}, v{S+10}, v{S+11}")
        e(f"v_max3_f32 v{T}, v{T}, v{S+12}, v{S+13}")
        e(f"v_max3_f32 v{T+1}, v{T+1}, v{S+14}, v{S+15}")
        e(f"v_max3_f32 v{T}, v{T}, v{T+1}, v{T+2}")
        e(f"v_max_f32 v{T}, v{T}, v{T+3}")
        self.xhalf("v_max_f32", T, T, T + 1)
        e(f"v_mul_f32 v{T}, s{S_C}, v{T}")
        e(f"v_max_f32 v{T}, v{T}, v{V_M}")
        e(f"v_sub_f32 v{T+1}, v{V_M}, v{T}")
        e(f"v_mov_b32 v{V_M}, v{T}")
        e(f"v_exp_f32 v{V_ALPHA}, v{T+1}")
        for i in range(16):
            e(f"v_fma_f32 v{S+i}, v{S+i}, s{S_C}, -v{V_M}")
        for i in range(16):
            e(f"v_exp_f32 v{S+i}, v{S+i}")
        e("s_nop 0")
        for i in range(8):
            e(f"v_cvt_pk_bf16_f32 v{V_P+i}, v{S+2*i}, v{S+2*i+1}")
        e(f"ds_write_b32 v{V_AA}, v{V_ALPHA}")
        e(f"ds_write_b128 v{V_PA}, v[{V_P}:{V_P+3}]")
        e(f"ds_write_b128 v{V_PA}, v[{V_P+4}:{V_P+7}] offset:1024")
        e(f"v_add_f32 v{T}, v{S}, v{S+1}")
        e(f"v_add_f32 v{T+1}, v{S+2}, v{S+3}")
        for i in range(4, 16, 2):
            e(f"v_add_f32 v{T}, v{T}, v{S+i}")
            e(f"v_add_f32 v{T+1}, v{T+1}, v{S+i+1}")
        e(f"v_add_f32 v{T}, v{T}, v{T+1}")
        e(f"v_fma_f32 v{V_L}, v{V_L}, v{V_ALPHA}, v{T}")

    def p_addrs(self):
        e = self.e
        e(f"s_add_u32 s{S_T}, s{S_PS0}, s{S_J}")
        if N2 > NPS:
            e(f"s_min_u32 s{S_T}, s{S_T}, {NPS-1}")
        e(f"s_lshl_b32 s{S_T+1}, s{S_T}, 11")
        e(f"s_lshl_b32 s{S_T}, s{S_T}, 7")
        e(f"v_add_u32 v{V_PA}, s{S_T+1}, v{V_PB}")
        e(f"v_add_u32 v{V_AA}, s{S_T}, v{V_AB}")

    def release(self, sreg):
        self.e(f"v_mov_b32 v{V_F}, s{sreg}")
        self.e(f"ds_write_b32 v{V_RELA}, v{V_F}")

    def gen(self):
        a = self.a
        e, lab, c = self.e, self.lab, self.c
        T = V_T
        S = V_S
        Gp, R = a.group, a.ring
        GPU = 16 // Gp
        K = NAME + "_kernel"
        out = HEADER + f"; @launch grid=(256,1,1) block=(320,1,1) lds={LDS_TOTAL}\n"
        out += '.amdgcn_target "amdgcn-amd-amdhsa--gfx950"\n.text\n'
        out += f".globl {K}\n.p2align 8\n.type {K},@function\n{K}:\n"

        e("s_cmp_ge_u32 s2, 256")
        e("s_cbranch_scc1 L_end")
        if a.stamps:
            e("s_memtime s[96:97]")
        self.stamp(0)
        e("s_load_dwordx16 s[4:19], s[0:1], 0")
        e("s_load_dwordx2 s[20:21], s[0:1], 64")
        e(f"v_lshrrev_b32 v{T}, 6, v0")
        e(f"v_and_b32 v{V_LANE}, 63, v0")
        e(f"v_readfirstlane_b32 s{S_WAVE}, v{T}")
        e(f"v_lshrrev_b32 v{T+1}, 5, v{V_LANE}")
        e(f"v_and_b32 v{T+2}, 31, v{V_LANE}")
        e(f"s_and_b32 s{S_PAIR}, s2, 63")
        e(f"s_lshr_b32 s{S_SPLIT}, s2, 6")
        e(f"v_mov_b32 v{V_FLAGA}, {LDS_FLAG}")
        e(f"v_mov_b32 v{V_ZERO}, 0")
        e(f"s_mov_b32 s{S_SPIN}, {a.spin}")
        if a.stamps:
            e(f"s_mov_b32 s{S_T+9}, 0")
        e(f"s_cmp_lg_u32 s{S_WAVE}, 0")
        e("s_cbranch_scc1 L_consumer")

        c("================= loader wave =================")
        e("s_setprio 3")
        self.dma_offsets(V_LD, V_LD + 8)
        c("tile order is rotated per pair (de-phases the streams of different pairs)")
        e(f"s_mul_i32 s{S_TB}, s{S_PAIR}, {a.rmul}")
        tsh = 16 if a.inter else 14
        nrec = (4 << 20) - 49152 if a.inter else (1 << 20)
        e(f"s_and_b32 s{S_OFF}, s{S_TB}, 63")
        e(f"s_lshl_b32 s{S_OFF}, s{S_OFF}, {tsh}")
        e(f"s_add_u32 s{S_OFF2}, s{S_OFF}, 8192")
        e(f"s_lshl_b32 s{S_T}, s{S_PAIR}, 22")
        e(f"s_lshl_b32 s{S_T+1}, s{S_SPLIT}, {14 if a.inter else 20}")
        e(f"s_add_u32 s{S_T}, s{S_T}, s{S_T+1}")
        e(f"s_mov_b32 s{S_SLOT}, 0")
        e("s_waitcnt lgkmcnt(0)")
        self.srd_off(SRD_K, 6, 7, S_T, nrec)
        soffs = [f"s{S_OFF}", f"s{S_OFF2}"]

        def m0_slot(q):
            e(f"s_add_u32 m0, s{S_SLOT}, {LDS_RING + q*4096}")

        def m0_abs(base):
            def f(q):
                e(f"s_mov_b32 m0, {base + q*4096}")
            return f

        def group(kind, g):
            for p in range(g * Gp, (g + 1) * Gp):
                if kind == "K":
                    self.piece("K", p, SRD_K, soffs, m0_slot, V_LD, a.polk)
                else:
                    self.piece("V", p, SRD_V, soffs, m0_slot, V_LD + 8, a.polv)

        def publish():
            e(f"s_waitcnt vmcnt({(R-1)*Gp})")
            e(f"s_sub_i32 s{S_T+2}, s{S_ISS}, {R-1}")
            e(f"s_max_i32 s{S_T+2}, s{S_T+2}, 0")
            e(f"v_mov_b32 v{V_F}, s{S_T+2}")
            e(f"ds_write_b32 v{V_FLAGA}, v{V_F}")
            e(f"s_add_u32 s{S_ISS}, s{S_ISS}, 1")

        c("unit 0 goes out immediately")
        for g in range(GPU):
            group("K", g)
        self.srd_off(SRD_V, 8, 9, S_T, nrec)
        if a.stamps:
            self.srd(SRD_WS, 20, 21, 64 << 20)
        e(f"v_mov_b32 v{V_ALPHA}, 0")
        e(f"ds_write_b64 v{V_FLAGA}, v[{V_ALPHA}:{V_ALPHA+1}]")
        e(f"ds_write_b64 v{V_FLAGA}, v[{V_ALPHA}:{V_ALPHA+1}] offset:8")
        e(f"s_mov_b32 s{S_ISS}, {GPU}")
        e(f"s_mov_b32 s{S_U}, 1")
        e(f"s_mov_b32 s{S_J}, 1")
        e(f"s_mov_b32 s{S_N}, {N1}")
        e("s_waitcnt lgkmcnt(0)")
        e("s_barrier")

        def ld_phase(kind):
            lab(f"L_ld_{kind}")
            e(f"s_add_u32 s{S_OFF}, s{S_TB}, s{S_J}")
            e(f"s_and_b32 s{S_OFF}, s{S_OFF}, 63")
            e(f"s_lshl_b32 s{S_OFF}, s{S_OFF}, {tsh}")
            e(f"s_add_u32 s{S_OFF2}, s{S_OFF}, 8192")
            self.slot_of_u(early=(kind == "K"))
            c("slot free?  every wave has released all units below u-2 (u-5 in the 6-slot start-up ring)")
            e(f"s_cmp_lt_u32 s{S_U}, {N1}")
            e(f"s_cselect_b32 s{S_T+4}, 5, 2")
            def free_estimate():
                e(f"ds_read_b128 v[{V_S}:{V_S+3}], v{V_FLAGA} offset:16")
                e("s_waitcnt lgkmcnt(0)")
                e(f"v_min_u32 v{V_S}, v{V_S}, v{V_S+1}")
                e(f"v_min3_u32 v{V_S}, v{V_S}, v{V_S+2}, v{V_S+3}")
                e("s_nop 0")
                e(f"v_readfirstlane_b32 s{S_T}, v{V_S}")
                e("s_nop 0")
                e(f"s_add_u32 s{S_T}, s{S_T}, s{S_T+4}")
            free_estimate()
            publish()
            lab(f"L_ld_chk{kind}")
            e(f"s_cmp_ge_u32 s{S_T}, s{S_U}")
            e(f"s_cbranch_scc1 L_ld_free{kind}")
            if a.stamps:
                e(f"s_mov_b32 s{S_T+3}, 1")
                e(f"s_cmp_ge_u32 s{S_U}, 8")
                e(f"s_cselect_b32 s{S_T+3}, 0x100, s{S_T+3}")
                e(f"s_cmp_ge_u32 s{S_U}, 28")
                e(f"s_cselect_b32 s{S_T+3}, 0x10000, s{S_T+3}")
                e(f"s_cmp_ge_u32 s{S_U}, 74")
                e(f"s_cselect_b32 s{S_T+3}, 0x1000000, s{S_T+3}")
                e(f"s_add_u32 s{S_T+9}, s{S_T+9}, s{S_T+3}")
            self.spin_guard()
            free_estimate()
            e(f"s_branch L_ld_chk{kind}")
            lab(f"L_ld_free{kind}")
            if a.stamps:
                su = [int(v) for v in a.su.split(",")]
                for ti, si in ((su[0], 1), (su[1], 2), (su[2], 4)):
                    l2 = self.newlab("pst")
                    e(f"s_cmp_lg_u32 s{S_U}, {ti}")
                    e(f"s_cbranch_scc1 {l2}")
                    self.stamp(si)
                    lab(l2)
            group(kind, 0)
            for g in range(1, GPU):
                publish()
                group(kind, g)
            e(f"s_add_u32 s{S_U}, s{S_U}, 1")
            e(f"s_add_u32 s{S_J}, s{S_J}, 1")
            e(f"s_cmp_lt_u32 s{S_J}, s{S_N}")
            e(f"s_cbranch_scc1 L_ld_{kind}")
            e(f"s_mov_b32 s{S_J}, 0")

        assert R - 1 <= 2 * GPU
        ld_phase("K")
        ld_phase("V")
        e(f"s_add_u32 s{S_TB}, s{S_TB}, s{S_N}")
        e(f"s_mov_b32 s{S_N}, {N2}")
        e(f"s_cmp_lt_u32 s{S_U}, {NU}")
        e("s_cbranch_scc1 L_ld_K")
        c("drain")
        for r in range(R - 1, -1, -1):
            e(f"s_waitcnt vmcnt({r*Gp})")
            e(f"v_mov_b32 v{V_F}, {NU*GPU - r}")
            e(f"ds_write_b32 v{V_FLAGA}, v{V_F}")
        self.stamp(3)
        self.stamp_store()
        e("s_endpgm")

        lab("L_consumer")
        c("================= compute waves =================")
        e(f"s_sub_u32 s{S_CI}, s{S_WAVE}, 1")
        e(f"s_lshl_b32 s{S_T}, s{S_CI}, 2")
        e(f"s_add_u32 s{S_T+1}, s{S_T}, {LDS_FLAG + 16}")
        e(f"v_mov_b32 v{V_RELA}, s{S_T+1}")
        e(f"s_add_u32 s{S_T+1}, s{S_T}, {LDS_FLAG + 8}")
        e(f"v_mov_b32 v{V_PDA}, s{S_T+1}")
        e(f"ds_write_b32 v{V_RELA}, v{V_ZERO}")
        c("DMA source offsets (temporarily in the K fragment registers)")
        self.dma_offsets(V_K, V_K + 8)
        e(f"s_lshl_b32 s{S_T+1}, s{S_PAIR}, 14")
        e(f"s_lshl_b32 s{S_T+2}, s{S_PAIR}, 13")
        c("Q pieces 4c..4c+3: source offsets of pieces (4c+i)&7, soffset (c>>1)*8192, LDS_Q + c*4096")
        e(f"s_and_b32 s{S_T+3}, s{S_CI}, 1")
        e(f"s_mul_i32 s{S_T+3}, s{S_T+3}, {128 | 4096}")
        for i in range(4):
            e(f"v_xor_b32 v{V_K+12+i}, s{S_T+3}, v{V_K+i}")
        e(f"s_lshr_b32 s{S_T+4}, s{S_CI}, 1")
        e(f"s_lshl_b32 s{S_T+4}, s{S_T+4}, 13")
        e(f"s_lshl_b32 s{S_T+5}, s{S_CI}, 12")
        e("s_waitcnt lgkmcnt(0)")
        self.srd_off(SRD_Q, 4, 5, S_T + 1, 16384)
        e(f"s_add_u32 m0, s{S_T+5}, {LDS_Q}")
        e("s_nop 0")
        for i in range(4):
            e(f"buffer_load_dwordx4 v{V_K+12+i}, s[{SRD_Q}:{SRD_Q+3}], s{S_T+4} offen offset:{i*1024}{a.polq} lds")
        e(f"s_cmp_lg_u32 s{S_SPLIT}, 3")
        e("s_cbranch_scc1 L_c_notree0")
        c("split 3: wave c=2 stages tree K, c=3 tree V; everyone loads its mask words")
        self.srd(SRD_MSK, 14, 15, 4096)
        e(f"v_and_b32 v{T+6}, 15, v{V_LANE}")
        e(f"v_lshlrev_b32 v{T+6}, 5, v{T+6}")
        e(f"v_lshl_or_b32 v{T+6}, v{T+1}, 3, v{T+6}")
        e(f"s_lshr_b32 s{S_T+4}, s{S_PAIR}, 3")
        e(f"s_lshl_b32 s{S_T+4}, s{S_T+4}, 9")
        e(f"buffer_load_dwordx2 v[{V_MSK}:{V_MSK+1}], v{T+6}, s[{SRD_MSK}:{SRD_MSK+3}], s{S_T+4} offen")
        e(f"buffer_load_dwordx2 v[{V_MSK+2}:{V_MSK+3}], v{T+6}, s[{SRD_MSK}:{SRD_MSK+3}], s{S_T+4} offen offset:16")
        e(f"s_cmp_lg_u32 s{S_CI}, 2")
        e("s_cbranch_scc1 L_c_tk_done")
        self.srd_off(SRD_TK, 10, 11, S_T + 2, 8192)
        for j in range(8):
            self.piece("K", j, SRD_TK, ["0"], m0_abs(LDS_TREE), V_K, a.polq)
        lab("L_c_tk_done")
        e(f"s_cmp_lg_u32 s{S_CI}, 3")
        e("s_cbranch_scc1 L_c_notree0")
        self.srd_off(SRD_TK, 12, 13, S_T + 2, 8192)
        for j in range(8):
            self.piece("V", j, SRD_TK, ["0"], m0_abs(LDS_TREE + 8192), V_K + 8, a.polq)
        lab("L_c_notree0")
        e("s_barrier")
        self.stamp(1)
        self.stamp(2)
        self.srd_off(SRD_OUT, 16, 17, S_T + 1, 16384)
        self.srd(SRD_WS, 20, 21, 64 << 20)
        self.srd(SRD_DBG, 18, 19, 256)
        c("LDS read bases")
        e(f"v_and_b32 v{T+3}, 15, v{T+2}")
        e(f"v_xor_b32 v{T+3}, v{T+3}, v{T+1}")
        e(f"v_lshlrev_b32 v{T+3}, 4, v{T+3}")
        e(f"v_lshl_or_b32 v{V_BK}, v{T+2}, 9, v{T+3}")
        e(f"v_bfe_u32 v{T+3}, v{V_LANE}, 2, 2")
        e(f"v_lshl_add_u32 v{T+4}, v{T+1}, 2, v{T+3}")
        e(f"v_lshlrev_b32 v{T+4}, 9, v{T+4}")
        e(f"v_lshl_or_b32 v{T+4}, v{T+3}, 6, v{T+4}")
        e(f"v_bfe_u32 v{T+3}, v{V_LANE}, 4, 1")
        e(f"v_lshl_or_b32 v{T+4}, v{T+3}, 5, v{T+4}")
        e(f"v_and_b32 v{T+3}, 3, v{V_LANE}")
        e(f"v_lshl_or_b32 v{T+4}, v{T+3}, 3, v{T+4}")
        c("d-tiles 2c, 2c+1: xor (dt&3)<<6, + (dt>>2)*256")
        e(f"s_and_b32 s{S_T}, s{S_CI}, 1")
        e(f"s_lshl_b32 s{S_T}, s{S_T}, 7")
        e(f"s_lshr_b32 s{S_T+1}, s{S_CI}, 1")
        e(f"s_lshl_b32 s{S_T+1}, s{S_T+1}, 8")
        e(f"s_or_b32 s{S_T}, s{S_T}, s{S_T+1}")
        e(f"v_xor_b32 v{V_BV}, s{S_T}, v{T+4}")
        e(f"v_lshlrev_b32 v{V_A16}, 4, v{V_LANE}")
        e(f"v_lshlrev_b32 v{V_A8}, 3, v{V_LANE}")
        e(f"v_add_u32 v{V_PB}, {LDS_P}, v{V_A16}")
        e(f"v_lshlrev_b32 v{V_AB}, 2, v{T+2}")
        e(f"v_add_u32 v{V_AB}, {LDS_AL}, v{V_AB}")
        c("output address: q = l&31, d = 64*c + 8*g8 + 4*h")
        e(f"v_lshlrev_b32 v{V_AOUT}, 9, v{T+2}")
        e(f"v_lshl_or_b32 v{V_AOUT}, v{T+1}, 3, v{V_AOUT}")
        e(f"s_mov_b32 s{S_C}, 0x{f32bits(CSCALE):08x}")
        e(f"s_mov_b32 s{S_CM}, 0x{f32bits(CMASK):08x}")
        e(f"s_mov_b32 s{S_LANDED}, 0")
        e(f"s_mov_b32 s{S_PD0}, 0")
        e(f"s_mov_b32 s{S_PD1}, 0")
        e(f"s_mov_b32 s{S_PCNT}, 0")
        e(f"s_add_u32 s{S_T}, s{S_SPLIT}, 8")
        e(f"s_lshl_b32 s{S_GOT}, 1, s{S_T}")
        e(f"s_mov_b32 s{S_TKT}, 0")
        e(f"s_mov_b32 s{S_U0}, 0")
        e(f"s_mov_b32 s{S_N}, {N1}")
        e(f"s_mov_b32 s{S_PS0}, {PS_R1}")
        e(f"s_lshl_b32 s{S_WSB}, s{S_PAIR}, {WS_PAIR_SH}")
        e(f"s_lshl_b32 s{S_CTR}, s{S_CI}, 8")
        e(f"s_add_u32 s{S_CTR}, s{S_CTR}, s{S_WSB}")
        e(f"s_add_u32 s{S_CTR}, s{S_CTR}, {WS_CTR}")
        if a.touch:
            c("wave c=3 touches the pages that are first needed later (V, d_ws region, d_out): warms the TLBs")
            e(f"s_cmp_lg_u32 s{S_CI}, 3")
            e("s_cbranch_scc1 L_notouch")
            e(f"s_lshl_b32 s{S_T}, s{S_PAIR}, 22")
            e(f"s_lshl_b32 s{S_T+1}, s{S_SPLIT}, 20")
            e(f"s_add_u32 s{S_T}, s{S_T}, s{S_T+1}")
            self.srd_off(SRD_V, 8, 9, S_T, 1 << 20)
            e(f"s_add_u32 s{S_T}, s{S_WSB}, {WS_SPARE}")
            e("s_mov_b64 exec, 1")
            e(f"buffer_load_dword v{S}, v{V_ZERO}, s[{SRD_V}:{SRD_V+3}], 0 offen nt")
            e(f"buffer_load_dword v{S+1}, v{V_ZERO}, s[{SRD_WS}:{SRD_WS+3}], s{S_T} offen nt")
            e(f"buffer_load_dword v{S+2}, v{V_ZERO}, s[{SRD_OUT}:{SRD_OUT+3}], 0 offen nt")
            e("s_mov_b64 exec, -1")
            lab("L_notouch")
        c("waves that skip the first K phase release its units right away")
        e(f"s_cmp_ge_u32 s{S_CI}, 2")
        e(f"s_cselect_b32 s{S_T}, {N1}, s{S_CI}")
        self.release(S_T)
        self.k_addrs(str(LDS_Q))
        e(f"v_mov_b32 v{V_TK}, 1")
        c("own staged pieces landed -> count; wait for all four waves")
        e("s_waitcnt vmcnt(0)")
        e("s_mov_b64 exec, 1")
        e(f"ds_add_u32 v{V_FLAGA}, v{V_TK} offset:4")
        e("s_mov_b64 exec, -1")
        self.poll("4", sreg=S_NEED, off=4, precheck=False, sleep=1)
        self.read_k(V_Q)

        e(f"s_cmp_lg_u32 s{S_SPLIT}, 3")
        e("s_cbranch_scc1 L_notree")
        c("---- tree tile (16 keys, masked): computed by every wave, goes into accumulator set 0 ----")
        self.k_addrs(str(LDS_TREE))
        self.read_k()
        for i in range(4):
            e(f"v_lshlrev_b32 v{V_MT+2*i}, 16, v{V_MSK+i}")
            e(f"v_and_b32 v{V_MT+2*i+1}, 0xffff0000, v{V_MSK+i}")
        for i in range(8):
            e(f"v_sub_f32 v{V_MT+i}, 1.0, v{V_MT+i}")
        for i in range(8):
            e(f"v_mul_f32 v{V_MT+i}, s{S_CM}, v{V_MT+i}")
        self.v_addrs(str(LDS_TREE + 8192))
        self.read_v([0], dst=V_MT + 12)
        e("s_waitcnt lgkmcnt(0)")
        for kk in range(16):
            self.qk_mfma(kk)
        e("s_nop 15")
        for i in range(8):
            e(f"v_fma_f32 v{S+i}, v{S+i}, s{S_C}, v{V_MT+i}")
        e(f"v_max3_f32 v{T}, v{S}, v{S+1}, v{S+2}")
        e(f"v_max3_f32 v{T+1}, v{S+3}, v{S+4}, v{S+5}")
        e(f"v_max3_f32 v{T}, v{T}, v{S+6}, v{S+7}")
        e(f"v_max_f32 v{T}, v{T}, v{T+1}")
        self.xhalf("v_max_f32", V_M, T, T + 1)
        for i in range(8):
            e(f"v_sub_f32 v{S+i}, v{S+i}, v{V_M}")
        for i in range(8):
            e(f"v_exp_f32 v{S+i}, v{S+i}")
        e("s_nop 0")
        e(f"v_add_f32 v{V_L}, v{S}, v{S+1}")
        for i in range(2, 8):
            e(f"v_add_f32 v{V_L}, v{V_L}, v{S+i}")
        for i in range(4):
            e(f"v_cvt_pk_bf16_f32 v{V_P+i}, v{S+2*i}, v{S+2*i+1}")
        e("s_nop 1")
        self.pv([0], 0, first=True, vsrc=V_MT + 12)
        e("s_nop 7")
        e(f"s_cmp_eq_u32 s{S_CI}, 0")
        e("s_cbranch_scc1 L_set1")
        e(f"v_mov_b32 v{V_M}, 0xff800000")
        e(f"v_mov_b32 v{V_L}, 0")
        e("s_branch L_set1")
        lab("L_notree")
        e(f"v_mov_b32 v{V_M}, 0xff800000")
        e(f"v_mov_b32 v{V_L}, 0")
        for i in range(32):
            e(f"v_mov_b32 v{V_O+i}, 0")
        lab("L_set1")
        for i in range(32):
            e(f"v_mov_b32 v{V_O+32+i}, 0")
        e("s_waitcnt lgkmcnt(0)")
        c("counter initialisation: wave c=2 of workgroup 0 claims d_debug[0] and zeroes all merge counters")
        e(f"s_xor_b32 s{S_T}, s{S_CI}, 2")
        e(f"s_or_b32 s{S_T}, s{S_T}, s2")
        e(f"s_cmp_lg_u32 s{S_T}, {9999 if a.nowg0 else 0}")
        e("s_cbranch_scc1 L_round")
        self.claim_and_init("L_round", "L_round")

        self.L.append(".p2align 6")
        lab("L_round")
        e(f"s_cmp_ge_u32 s{S_CI}, 2")
        e("s_cbranch_scc1 L_kskip")
        c("---- K phase (producers c = 0, 1 take alternate tiles) ----")
        e(f"s_mov_b32 s{S_J}, s{S_CI}")
        lab("L_kloop")
        e(f"s_add_u32 s{S_U}, s{S_U0}, s{S_J}")
        self.slot_of_u()
        self.k_addrs(f"s{S_SLOT}")
        self.p_addrs()
        e(f"s_add_u32 s{S_NEED}, s{S_U}, 1")
        e(f"s_mul_i32 s{S_NEED}, s{S_NEED}, {GPU}")
        e(f"s_add_u32 s{S_T+2}, s{S_U}, 2")
        e(f"s_add_u32 s{S_T+3}, s{S_U0}, s{S_N}")
        e(f"s_min_u32 s{S_T+2}, s{S_T+2}, s{S_T+3}")
        self.poll(f"s{S_NEED}", sleep=1)
        self.read_k()
        e(f"v_mov_b32 v{V_F}, s{S_T+2}")
        for kk in range(16):
            if kk < 8:
                e(f"s_waitcnt lgkmcnt({15 - kk})")
            elif kk == 8:
                e("s_waitcnt lgkmcnt(0)")
                e(f"ds_write_b32 v{V_RELA}, v{V_F}")
            self.qk_mfma(kk)
        e(f"s_add_u32 s{S_PCNT}, s{S_PCNT}, 1")
        e(f"v_mov_b32 v{V_TK}, s{S_PCNT}")
        e("s_nop 15")
        self.softmax()
        e("s_waitcnt lgkmcnt(0)")
        e(f"ds_write_b32 v{V_PDA}, v{V_TK}")
        e(f"s_add_u32 s{S_J}, s{S_J}, 2")
        e(f"s_cmp_lt_u32 s{S_J}, s{S_N}")
        e("s_cbranch_scc1 L_kloop")
        c("publish (m, l) of this producer (read by everyone after the last round)")
        e(f"v_mov_b32 v{T+2}, v{V_M}")
        e(f"v_mov_b32 v{T}, v{V_L}")
        self.xhalf("v_add_f32", T + 3, T, T + 1)
        e(f"s_lshl_b32 s{S_T}, s{S_CI}, 8")
        e(f"s_add_u32 s{S_T}, s{S_T}, {LDS_STAT}")
        e(f"v_and_b32 v{T}, 31, v{V_LANE}")
        e(f"v_lshlrev_b32 v{T}, 3, v{T}")
        e(f"v_add_u32 v{T}, s{S_T}, v{T}")
        e(f"ds_write_b64 v{T}, v[{T+2}:{T+3}]")
        e(f"s_add_u32 s{S_PCNT}, s{S_PCNT}, 1")
        e(f"v_mov_b32 v{V_TK}, s{S_PCNT}")
        e("s_waitcnt lgkmcnt(0)")
        e(f"ds_write_b32 v{V_PDA}, v{V_TK}")
        e("s_branch L_vphase")
        lab("L_kskip")
        c("wave c=2 makes sure the merge counters have been zeroed before the last V phase")
        c("(the ring dependency then covers every other wave of the workgroup)")
        e(f"s_cmp_lg_u32 s{S_CI}, 2")
        e("s_cbranch_scc1 L_vphase")
        e(f"s_cmp_eq_u32 s{S_U0}, 0")
        e("s_cbranch_scc1 L_vphase")
        e("s_mov_b64 exec, 1")
        e(f"buffer_load_dword v{V_TK}, v{V_ZERO}, s[{SRD_DBG}:{SRD_DBG+3}], 0 offen sc1")
        e("s_mov_b64 exec, -1")
        e("s_waitcnt vmcnt(0)")
        e(f"v_readfirstlane_b32 s{S_T}, v{V_TK}")
        e("s_nop 0")
        e(f"s_cmp_lg_u32 s{S_T}, 3")
        e("s_cbranch_scc1 L_check_loop")

        lab("L_vphase")
        c("---- V phase ----")
        e(f"s_mov_b32 s{S_J}, 0")
        c("pdone base of this round: round 2 starts after N1/2 tiles + 1 stats mark")
        e(f"s_cmp_eq_u32 s{S_U0}, 0")
        e(f"s_cselect_b32 s{S_T+8}, 0, {N1//2 + 1}")
        lab("L_vloop")
        for st in range(2):
            spd = S_PD0 if st == 0 else S_PD1
            e(f"s_add_u32 s{S_U}, s{S_U0}, s{S_N}")
            e(f"s_add_u32 s{S_U}, s{S_U}, s{S_J}")
            self.slot_of_u(early=False)
            self.v_addrs(f"s{S_SLOT}")
            self.p_addrs()
            e(f"s_lshr_b32 s{S_NEED}, s{S_J}, 1")
            e(f"s_add_u32 s{S_NEED}, s{S_NEED}, s{S_T+8}")
            e(f"s_add_u32 s{S_NEED}, s{S_NEED}, 1")
            self.poll(f"s{S_NEED}", sreg=spd, off=8 + 4 * st, sleep=2)
            e(f"ds_read_b32 v{V_ALPHA}, v{V_AA}")
            e(f"ds_read_b128 v[{V_P}:{V_P+3}], v{V_PA}")
            e(f"ds_read_b128 v[{V_P+4}:{V_P+7}], v{V_PA} offset:1024")
            if st == 0:
                e(f"s_cmp_ge_u32 s{S_U}, {NU - 8}")
                e("s_cbranch_scc1 L_hook")
                lab("L_hook_done")
            e(f"s_add_u32 s{S_T+2}, s{S_U}, 1")
            e(f"s_mul_i32 s{S_NEED}, s{S_T+2}, {GPU}")
            e("s_waitcnt lgkmcnt(0)")
            for i in range(0, 32, 2):
                self.pkmul(V_O + 32 * st + i, V_ALPHA)
            if st == 1:
                e(f"s_cmp_eq_u32 s{S_U}, {NU - 1}")
                e("s_cbranch_scc1 L_scale0")
                lab("L_scale0_done")
            self.poll(f"s{S_NEED}", sleep=1)
            self.read_v([0, 1])
            e(f"v_mov_b32 v{V_F}, s{S_T+2}")
            e(f"s_add_u32 s{S_J}, s{S_J}, 1")
            e("s_waitcnt lgkmcnt(0)")
            e(f"ds_write_b32 v{V_RELA}, v{V_F}")
            self.pv([0, 1], st)
        e(f"s_cmp_lt_u32 s{S_J}, s{S_N}")
        e("s_cbranch_scc1 L_vloop")
        e(f"s_cmp_lg_u32 s{S_U0}, 0")
        e("s_cbranch_scc1 L_done")
        c("next round")
        e(f"s_mov_b32 s{S_U0}, {2*N1}")
        e(f"s_mov_b32 s{S_N}, {N2}")
        e(f"s_mov_b32 s{S_PS0}, 0")
        e(f"s_add_u32 s{S_T}, s{S_CI}, {2*N1}")
        e(f"s_cmp_ge_u32 s{S_CI}, 2")
        e(f"s_cselect_b32 s{S_T}, {2*N1 + N2}, s{S_T}")
        self.release(S_T)
        e("s_branch L_round")

        lab("L_done")
        self.stamp(3)
        A8, A16, AOUT = V_A8, V_A16, V_AOUT

        def issue_loads(sval):
            for i in range(1, 4):
                skip = self.newlab("nold")
                e(f"s_xor_b32 s{S_T+1}, s{S_SPLIT}, {i}")
                e(f"s_add_u32 s{S_T+3}, s{S_T+1}, 8")
                e(f"s_lshl_b32 s{S_T+3}, 1, s{S_T+3}")
                e(f"s_andn2_b32 s{S_T+5}, s{sval}, s{S_GOT}")
                e(f"s_and_b32 s{S_T+5}, s{S_T+5}, s{S_T+3}")
                e(f"s_cbranch_scc0 {skip}")
                e(f"s_or_b32 s{S_GOT}, s{S_GOT}, s{S_T+3}")
                e(f"s_lshl_b32 s{S_T+1}, s{S_T+1}, 2")
                e(f"s_add_u32 s{S_T+1}, s{S_T+1}, s{S_CI}")
                e(f"s_lshl_b32 s{S_T+3}, s{S_T+1}, 9")
                e(f"s_add_u32 s{S_T+3}, s{S_T+3}, s{S_WSB}")
                e(f"s_add_u32 s{S_T+3}, s{S_T+3}, {WS_STAT}")
                e(f"buffer_load_dwordx2 v[{S+2*i}:{S+2*i+1}], v{A8}, s[{SRD_WS}:{SRD_WS+3}], s{S_T+3} offen sc1")
                e(f"s_lshl_b32 s{S_T+1}, s{S_T+1}, 13")
                e(f"s_add_u32 s{S_T+1}, s{S_T+1}, s{S_WSB}")
                e(f"s_add_u32 s{S_T+3}, s{S_T+1}, 4096")
                for rq in range(8):
                    so = S_T + 1 if rq < 4 else S_T + 3
                    r = V_X + 32 * (i - 1) + 4 * rq
                    e(f"buffer_load_dwordx4 v[{r}:{r+3}], v{A16}, s[{SRD_WS}:{SRD_WS+3}], s{so} offen offset:{(rq & 3)*1024} sc1")
                lab(skip)

        c("---- merge the two accumulator sets (set 0 was scaled while waiting for the last V tile) ----")
        e("s_nop 7")
        e("s_nop 3")
        for i in range(0, 32, 2):
            e(f"v_pk_fma_f32 v[{V_O+i}:{V_O+i+1}], v[{V_O+32+i}:{V_O+33+i}], v[{V_F1}:{V_F1+1}], v[{V_O+i}:{V_O+i+1}] op_sel_hi:[1,0,1]")
        c("---- merge the 4 splits ----")
        e(f"s_and_b32 s{S_T+6}, s{S_TKT}, 0xff")
        e(f"s_cmp_ge_u32 s{S_T+6}, 3")
        e("s_cbranch_scc1 L_last")
        c("not last: publish partial (write-through), then set the done bit")
        e(f"s_lshl_b32 s{S_T}, s{S_SPLIT}, 2")
        e(f"s_add_u32 s{S_T}, s{S_T}, s{S_CI}")
        e(f"s_lshl_b32 s{S_T+1}, s{S_T}, 13")
        e(f"s_add_u32 s{S_T+1}, s{S_T+1}, s{S_WSB}")
        e(f"s_add_u32 s{S_T+2}, s{S_T+1}, 4096")
        e(f"s_lshl_b32 s{S_T+3}, s{S_T}, 9")
        e(f"s_add_u32 s{S_T+3}, s{S_T+3}, s{S_WSB}")
        e(f"s_add_u32 s{S_T+3}, s{S_T+3}, {WS_STAT}")
        e(f"buffer_store_dwordx2 v[{V_M}:{V_M+1}], v{A8}, s[{SRD_WS}:{SRD_WS+3}], s{S_T+3} offen sc1")
        for rq in range(8):
            so = S_T + 1 + (rq >> 2)
            e(f"buffer_store_dwordx4 v[{V_O+4*rq}:{V_O+4*rq+3}], v{A16}, s[{SRD_WS}:{SRD_WS+3}], s{so} offen offset:{(rq & 3)*1024} sc1")
        e(f"v_mov_b32 v{V_TK}, s{S_GOT}")
        e("s_waitcnt vmcnt(0)")
        e("s_mov_b64 exec, 1")
        e(f"buffer_atomic_or v{V_TK}, v{V_ZERO}, s[{SRD_WS}:{SRD_WS+3}], s{S_CTR} offen")
        e("s_mov_b64 exec, -1")
        if a.stamps:
            self.stamp(4)
            e(f"s_mov_b32 s{S_T+9}, 0")
            e("s_branch L_fin")
        else:
            e("s_endpgm")

        c("last arriver: fetch each partial as soon as its done bit shows up")
        lab("L_last")
        e(f"s_cmp_eq_u32 s{S_GOT}, 0xf00")
        e("s_cbranch_scc1 L_combine")
        c("(a refresh of the counter is already in flight from the last hook)")
        lab("L_wait_done")
        e("s_waitcnt vmcnt(0)")
        e(f"v_readfirstlane_b32 s{S_TKT}, v{V_TK}")
        e("s_nop 0")
        issue_loads(S_TKT)
        e(f"s_cmp_eq_u32 s{S_GOT}, 0xf00")
        e("s_cbranch_scc1 L_combine")
        e("s_mov_b64 exec, 1")
        e(f"buffer_load_dword v{V_TK}, v{V_ZERO}, s[{SRD_WS}:{SRD_WS+3}], s{S_CTR} offen sc1")
        e("s_mov_b64 exec, -1")
        self.spin_guard()
        e("s_branch L_wait_done")
        lab("L_combine")
        self.stamp(4)
        e(f"v_mov_b32 v{S}, v{V_M}")
        e(f"v_mov_b32 v{S+1}, v{V_L}")
        e(f"s_lshl_b32 s{S_T+8}, s{S_CI}, 7")
        c("every stats load is older than the 8 youngest loads")
        e("s_waitcnt vmcnt(8)")
        e(f"v_max_f32 v{T}, v{S}, v{S+2}")
        e(f"v_max3_f32 v{V_M}, v{T}, v{S+4}, v{S+6}")
        F = [S + 8, S + 10, S + 12, S + 14]
        for i in range(4):
            e(f"v_sub_f32 v{F[i]}, v{S+2*i}, v{V_M}")
        for i in range(4):
            e(f"v_exp_f32 v{F[i]}, v{F[i]}")
        e("s_nop 0")
        for i in range(4):
            e(f"v_mul_f32 v{F[i]+1}, v{F[i]}, v{S+2*i+1}")
        e(f"v_add_f32 v{T}, v{F[0]+1}, v{F[1]+1}")
        e(f"v_add_f32 v{T+1}, v{F[2]+1}, v{F[3]+1}")
        e(f"v_add_f32 v{V_L}, v{T}, v{T+1}")
        e(f"v_rcp_f32 v{V_ALPHA}, v{V_L}")
        e("s_nop 0")
        for i in range(4):
            e(f"v_mul_f32 v{F[i]}, v{F[i]}, v{V_ALPHA}")
        src = [V_O, V_X, V_X + 32, V_X + 64]
        for i in range(4):
            if i == 1:
                e("s_waitcnt vmcnt(0)")
            for r in range(0, 32, 2):
                self.pkmul(src[i] + r, F[i])
            if i == 1:
                for r in range(0, 32, 2):
                    self.pkadd(V_O + r, V_O + r, src[1] + r)
        for g8 in range(8):
            for r in (4 * g8, 4 * g8 + 2):
                self.pkadd(src[2] + r, src[2] + r, src[3] + r)
            for r in (4 * g8, 4 * g8 + 2):
                self.pkadd(V_O + r, V_O + r, src[2] + r)
            rr = V_X + 2 * g8
            e(f"v_cvt_pk_bf16_f32 v{rr}, v{V_O+4*g8}, v{V_O+4*g8+1}")
            e(f"v_cvt_pk_bf16_f32 v{rr+1}, v{V_O+4*g8+2}, v{V_O+4*g8+3}")
            e(f"buffer_store_dwordx2 v[{rr}:{rr+1}], v{AOUT}, s[{SRD_OUT}:{SRD_OUT+3}], s{S_T+8} offen offset:{g8*16}")
        c("nobody touches this counter any more: leave it zero (every launch re-zeroes it anyway)")
        e("s_mov_b64 exec, 1")
        e(f"buffer_store_dword v{V_ZERO}, v{V_ZERO}, s[{SRD_WS}:{SRD_WS+3}], s{S_CTR} offen sc1")
        e("s_mov_b64 exec, -1")
        if a.stamps:
            e("s_waitcnt vmcnt(0)")
            e(f"s_mov_b32 s{S_T+9}, 1")
            lab("L_fin")
            self.stamp_store()
        lab("L_end")
        e("s_endpgm")

        c("---- end-of-stream hooks, run at units NU-8, NU-6, NU-4, NU-2 (out of line) ----")
        lab("L_hook")
        e(f"s_cmp_lg_u32 s{S_U}, {NU - 8}")
        e("s_cbranch_scc1 L_hook2")
        c("NU-8: final (m, l) of both producers -> merge factors, M, L")
        e(f"s_mov_b32 s{S_NEED}, {(N1 + N2)//2 + 2}")
        self.poll(f"s{S_NEED}", sreg=S_PD0, off=8)
        self.poll(f"s{S_NEED}", sreg=S_PD1, off=12)
        e(f"v_and_b32 v{T}, 31, v{V_LANE}")
        e(f"v_lshlrev_b32 v{T}, 3, v{T}")
        e(f"v_add_u32 v{T}, {LDS_STAT}, v{T}")
        e(f"ds_read_b64 v[{S}:{S+1}], v{T}")
        e(f"ds_read_b64 v[{S+2}:{S+3}], v{T} offset:256")
        e("s_waitcnt lgkmcnt(0)")
        e(f"v_max_f32 v{V_M}, v{S}, v{S+2}")
        e(f"v_sub_f32 v{V_F0}, v{S}, v{V_M}")
        e(f"v_sub_f32 v{V_F1}, v{S+2}, v{V_M}")
        e(f"v_exp_f32 v{V_F0}, v{V_F0}")
        e(f"v_exp_f32 v{V_F1}, v{V_F1}")
        e("s_nop 0")
        e(f"v_mul_f32 v{S+1}, v{S+1}, v{V_F0}")
        e(f"v_mul_f32 v{S+3}, v{S+3}, v{V_F1}")
        e(f"v_add_f32 v{V_L}, v{S+1}, v{S+3}")
        e("s_branch L_hook_done")
        lab("L_hook2")
        e(f"s_cmp_lg_u32 s{S_U}, {NU - a.tk}")
        e("s_cbranch_scc1 L_hook3")
        c("take the arrival ticket")
        e(f"v_mov_b32 v{V_TK}, 1")
        e("s_mov_b64 exec, 1")
        e(f"buffer_atomic_add v{V_TK}, v{V_ZERO}, s[{SRD_WS}:{SRD_WS+3}], s{S_CTR} offen sc0")
        e("s_mov_b64 exec, -1")
        e("s_branch L_hook_done")
        lab("L_hook3")
        e(f"s_cmp_lt_u32 s{S_U}, {NU - a.tk}")
        e("s_cbranch_scc1 L_hook_done")
        e(f"s_cmp_lg_u32 s{S_U}, {NU - a.tk + 2}")
        e("s_cbranch_scc1 L_hook4")
        c("read the ticket")
        e("s_waitcnt vmcnt(0)")
        e(f"v_readfirstlane_b32 s{S_TKT}, v{V_TK}")
        e("s_nop 0")
        lab("L_hook4")
        c("last arriver: start loading what has been published, refresh the counter")
        e(f"s_and_b32 s{S_T}, s{S_TKT}, 0xff")
        e(f"s_cmp_lt_u32 s{S_T}, 3")
        e("s_cbranch_scc1 L_hook_done")
        e("s_waitcnt vmcnt(0)")
        e(f"v_readfirstlane_b32 s{S_TKT}, v{V_TK}")
        e("s_nop 0")
        issue_loads(S_TKT)
        e(f"s_cmp_eq_u32 s{S_GOT}, 0xf00")
        e("s_cbranch_scc1 L_hook_done")
        e("s_mov_b64 exec, 1")
        e(f"buffer_load_dword v{V_TK}, v{V_ZERO}, s[{SRD_WS}:{SRD_WS+3}], s{S_CTR} offen sc1")
        e("s_mov_b64 exec, -1")
        e("s_branch L_hook_done")

        lab("L_scale0")
        for i in range(0, 32, 2):
            self.pkmul(V_O + i, V_F0)
        if a.late:
            c("last arriver: one more look at the counter before the last V tile")
            e(f"s_and_b32 s{S_T}, s{S_TKT}, 0xff")
            e(f"s_cmp_lt_u32 s{S_T}, 3")
            e("s_cbranch_scc1 L_scale0_done")
            e(f"s_cmp_eq_u32 s{S_GOT}, 0xf00")
            e("s_cbranch_scc1 L_scale0_done")
            e("s_waitcnt vmcnt(0)")
            e(f"v_readfirstlane_b32 s{S_TKT}, v{V_TK}")
            e("s_nop 0")
            issue_loads(S_TKT)
            e(f"s_cmp_eq_u32 s{S_GOT}, 0xf00")
            e("s_cbranch_scc1 L_scale0_done")
            e("s_mov_b64 exec, 1")
            e(f"buffer_load_dword v{V_TK}, v{V_ZERO}, s[{SRD_WS}:{SRD_WS+3}], s{S_CTR} offen sc1")
            e("s_mov_b64 exec, -1")
        e("s_branch L_scale0_done")

        c("rare: counters not ready yet. Claim the job if nobody has, else wait for whoever did.")
        lab("L_check_loop")
        self.claim_and_init("L_vphase", "L_check_wait")
        lab("L_check_wait")
        e("s_sleep 8")
        self.spin_guard()
        e("s_branch L_check_loop")

        out += "\n".join(self.L) + "\n"
        out += f""".section .rodata,"a"
.p2align 6
.amdhsa_kernel {K}
  .amdhsa_next_free_vgpr {NVGPR}
  .amdhsa_next_free_sgpr 102
  .amdhsa_accum_offset {NVGPR}
  .amdhsa_group_segment_fixed_size 0
  .amdhsa_kernarg_size 72
  .amdhsa_user_sgpr_count 2
  .amdhsa_user_sgpr_kernarg_segment_ptr 1
  .amdhsa_system_sgpr_workgroup_id_x 1
.end_amdhsa_kernel
"""
        return out


def main():
    ap = argparse.ArgumentParser()
    ap.add_argument("-o", default=f"cdna_kernels/{NAME}.s")
    ap.add_argument("--polk", default="nt")
    ap.add_argument("--polv", default="nt")
    ap.add_argument("--polq", default="nt")
    ap.add_argument("--stamps", type=int, default=0)
    ap.add_argument("--group", type=int, default=8)
    ap.add_argument("--ring", type=int, default=3)
    ap.add_argument("--sleep", type=int, default=2)
    ap.add_argument("--spin", type=int, default=400000)
    ap.add_argument("--rmul", type=int, default=13)
    ap.add_argument("--su", default="8,32,80")
    ap.add_argument("--tk", type=int, default=4)
    ap.add_argument("--late", type=int, default=1)
    ap.add_argument("--inter", type=int, default=1)
    ap.add_argument("--nowg0", type=int, default=0)
    ap.add_argument("--touch", type=int, default=0)
    args = ap.parse_args()
    for n in ("polk", "polv", "polq"):
        v = getattr(args, n)
        setattr(args, n, (" " + v.replace(",", " ")) if v else "")
    open(args.o, "w").write(G(args).gen())


if __name__ == "__main__":
    main()
```

```python
import argparse

from gen import HEADER, NAME, f32bits, CSCALE, CMASK
import gen6
from gen6 import (V_LANE, V_T, V_M, V_L, V_ALPHA, V_ZERO, V_FLAGA, V_RELA, V_BK, V_BV, V_PB, V_AB, V_A8, V_A16,
                  V_AOUT, V_PA, V_AA, V_PDA, V_F0, V_AK, V_AV, V_F1, V_TK, V_F, V_P, V_S, V_O, V_K, V_V, V_X, V_Q,
                  V_LD, NVGPR, S_SPLIT, S_WAVE, S_PAIR, SRD_K, SRD_V, SRD_Q, SRD_TK, S_J, SRD_MSK, SRD_OUT, SRD_WS,
                  SRD_DBG, S_OFF, S_OFF2, S_U, S_C, S_CM, S_SLOT, S_CI, S_NEED, S_LANDED, S_CTR, S_PCNT, S_SPIN,
                  S_T, S_TKT, S_GOT, S_ST, S_PD0, S_PD1, S_WSB, S_ISS, S_TB, NU, LDS_RING, LDS_P, LDS_AL, LDS_FLAG,
                  LDS_STAT, LDS_TOTAL, LDS_Q, LDS_TREE, WS_PAIR_SH, WS_STAT, WS_CTR, WS_STAMP)

assert gen6.N1 == 12 and gen6.NPS == 52
NT = 64
NPK = 12
NPS = 52
V_PK = 144
V_PKA = 240
V_MSK = 64
V_MT = 68
GATE1 = 16
GATE2 = 48


class G(gen6.G):
    def stamp_index(self):
        pass

    def stamp_store7(self, idx_sreg_expr):
        if not self.a.stamps:
            return
        e = self.e
        e("s_memtime s[98:99]")
        self.stamp(5)
        e(f"s_getreg_b32 s{S_T}, hwreg(HW_REG_XCC_ID)")
        e(f"s_mul_i32 s{S_T+2}, s2, 5")
        e(f"s_add_u32 s{S_T+2}, s{S_T+2}, {idx_sreg_expr}")
        e(f"s_lshl_b32 s{S_T+2}, s{S_T+2}, 6")
        e(f"s_add_u32 s{S_T+2}, s{S_T+2}, {WS_STAMP}")
        for i in range(6):
            e(f"v_mov_b32 v{V_S+i}, s{S_ST+2*i}")
        e(f"v_mov_b32 v{V_S+6}, s{S_T}")
        e(f"v_mov_b32 v{V_S+7}, s{S_T+9}")
        e(f"v_mov_b32 v{V_S+8}, s96")
        e(f"v_mov_b32 v{V_S+9}, s98")
        e(f"v_mov_b32 v{V_S+10}, 0")
        e(f"v_mov_b32 v{V_S+11}, s{S_SPIN}")
        e(f"v_mov_b32 v{V_T}, 0")
        e("s_mov_b64 exec, 1")
        for q in range(3):
            e(f"buffer_store_dwordx4 v[{V_S+4*q}:{V_S+4*q+3}], v{V_T}, s[{SRD_WS}:{SRD_WS+3}], s{S_T+2} offen offset:{16*q}")
        e("s_mov_b64 exec, -1")

    def p_addrs7(self):
        e = self.e
        e(f"s_add_u32 s{S_T}, s{S_J}, {NPS - NPK}")
        e(f"s_sub_u32 s{S_T+1}, s{S_J}, {NPK}")
        e(f"s_cmp_lt_u32 s{S_J}, {NPK}")
        e(f"s_cselect_b32 s{S_T}, s{S_T}, s{S_T+1}")
        e(f"s_lshl_b32 s{S_T+1}, s{S_T}, 11")
        e(f"s_lshl_b32 s{S_T}, s{S_T}, 7")
        e(f"v_add_u32 v{V_PA}, s{S_T+1}, v{V_PB}")
        e(f"v_add_u32 v{V_AA}, s{S_T}, v{V_AB}")

    def pv7(self, oset, psrc):
        for ks in range(2):
            for dtl in range(2):
                o = V_O + 32 * oset + 16 * dtl
                r = V_V + 8 * ks + 4 * dtl
                self.e(f"v_mfma_f32_32x32x16_bf16 v[{o}:{o+15}], v[{r}:{r+3}], v[{psrc+4*ks}:{psrc+4*ks+3}], v[{o}:{o+15}]")

    def release_const(self, val):
        self.e(f"v_mov_b32 v{V_F}, {val}")
        self.e(f"ds_write_b32 v{V_RELA}, v{V_F}")

    def gen(self):
        a = self.a
        e, lab, c = self.e, self.lab, self.c
        T = V_T
        S = V_S
        Gp, R = a.group, a.ring
        GPU = 16 // Gp
        K = NAME + "_kernel"
        out = HEADER + f"; @launch grid=(256,1,1) block=(448,1,1) lds={LDS_TOTAL}\n"
        out += '.amdgcn_target "amdgcn-amd-amdhsa--gfx950"\n'
        out += "".join("; " + ln + "\n" for ln in __doc__.strip().splitlines()[2:])
        out += '.text\n'
        out += f".globl {K}\n.p2align 8\n.type {K},@function\n{K}:\n"

        e("s_cmp_ge_u32 s2, 256")
        e("s_cbranch_scc1 L_end")
        if a.stamps:
            e("s_memtime s[96:97]")
        self.stamp(0)
        e("s_load_dwordx16 s[4:19], s[0:1], 0")
        e("s_load_dwordx2 s[20:21], s[0:1], 64")
        e(f"v_lshrrev_b32 v{T}, 6, v0")
        e(f"v_and_b32 v{V_LANE}, 63, v0")
        e(f"v_readfirstlane_b32 s{S_WAVE}, v{T}")
        e(f"v_lshrrev_b32 v{T+1}, 5, v{V_LANE}")
        e(f"v_and_b32 v{T+2}, 31, v{V_LANE}")
        e(f"s_and_b32 s{S_PAIR}, s2, 63")
        e(f"s_lshr_b32 s{S_SPLIT}, s2, 6")
        e(f"v_mov_b32 v{V_FLAGA}, {LDS_FLAG}")
        e(f"v_mov_b32 v{V_ZERO}, 0")
        e(f"s_mov_b32 s{S_SPIN}, {a.spin}")
        if a.stamps:
            e(f"s_mov_b32 s{S_T+9}, 0")
        e(f"s_cmp_lg_u32 s{S_WAVE}, 0")
        e("s_cbranch_scc1 L_notloader")

        c("================= loader wave =================")
        e("s_setprio 3")
        self.dma_offsets(V_LD, V_LD + 8)
        c("tile t of split s = rows of 16 KiB block 4*((t + 13*pair) & 63) + s of the pair")
        nrec = (4 << 20) - 49152
        e(f"s_mul_i32 s{S_TB}, s{S_PAIR}, {a.rmul}")
        e(f"s_and_b32 s{S_OFF}, s{S_TB}, 63")
        e(f"s_lshl_b32 s{S_OFF}, s{S_OFF}, 16")
        e(f"s_add_u32 s{S_OFF2}, s{S_OFF}, 8192")
        e(f"s_lshl_b32 s{S_T}, s{S_PAIR}, 22")
        e(f"s_lshl_b32 s{S_T+1}, s{S_SPLIT}, 14")
        e(f"s_add_u32 s{S_T}, s{S_T}, s{S_T+1}")
        e(f"s_mov_b32 s{S_SLOT}, 0")
        e("s_waitcnt lgkmcnt(0)")
        self.srd_off(SRD_K, 6, 7, S_T, nrec)
        soffs = [f"s{S_OFF}", f"s{S_OFF2}"]

        def m0_slot(q):
            e(f"s_add_u32 m0, s{S_SLOT}, {LDS_RING + q*4096}")

        def m0_abs(base):
            def f(q):
                e(f"s_mov_b32 m0, {base + q*4096}")
            return f

        def group(kind, g):
            for p in range(g * Gp, (g + 1) * Gp):
                if kind == "K":
                    self.piece("K", p, SRD_K, soffs, m0_slot, V_LD, a.polk)
                else:
                    self.piece("V", p, SRD_V, soffs, m0_slot, V_LD + 8, a.polv)

        def publish():
            e(f"s_waitcnt vmcnt({(R-1)*Gp})")
            e(f"s_sub_i32 s{S_T+2}, s{S_ISS}, {R-1}")
            e(f"s_max_i32 s{S_T+2}, s{S_T+2}, 0")
            e(f"v_mov_b32 v{V_F}, s{S_T+2}")
            e(f"ds_write_b32 v{V_FLAGA}, v{V_F}")
            e(f"s_add_u32 s{S_ISS}, s{S_ISS}, 1")

        c("unit 0 goes out immediately")
        for g in range(GPU):
            group("K", g)
        self.srd_off(SRD_V, 8, 9, S_T, nrec)
        if a.stamps:
            self.srd(SRD_WS, 20, 21, 64 << 20)
        e(f"v_mov_b32 v{V_ALPHA}, 0")
        e(f"ds_write_b64 v{V_FLAGA}, v[{V_ALPHA}:{V_ALPHA+1}]")
        e(f"ds_write_b64 v{V_FLAGA}, v[{V_ALPHA}:{V_ALPHA+1}] offset:8")
        e(f"s_mov_b32 s{S_ISS}, {GPU}")
        e(f"s_mov_b32 s{S_U}, 1")
        e(f"s_mov_b32 s{S_J}, 1")
        e("s_waitcnt lgkmcnt(0)")
        e("s_barrier")

        def ld_phase(kind):
            lab(f"L_ld_{kind}")
            e(f"s_add_u32 s{S_OFF}, s{S_TB}, s{S_J}")
            e(f"s_and_b32 s{S_OFF}, s{S_OFF}, 63")
            e(f"s_lshl_b32 s{S_OFF}, s{S_OFF}, 16")
            e(f"s_add_u32 s{S_OFF2}, s{S_OFF}, 8192")
            self.slot_of_u(early=(kind == "K"))
            c("slot free?  every wave has released all units below u-2 (u-5 in the 6-slot start-up ring)")
            e(f"s_cmp_lt_u32 s{S_U}, {gen6.N1}")
            e(f"s_cselect_b32 s{S_T+4}, 5, 2")

            def free_estimate():
                e(f"ds_read_b128 v[{V_S}:{V_S+3}], v{V_FLAGA} offset:16")
                e(f"ds_read_b64 v[{V_S+4}:{V_S+5}], v{V_FLAGA} offset:32")
                e("s_waitcnt lgkmcnt(0)")
                e(f"v_min3_u32 v{V_S}, v{V_S}, v{V_S+1}, v{V_S+2}")
                e(f"v_min3_u32 v{V_S+3}, v{V_S+3}, v{V_S+4}, v{V_S+5}")
                e(f"v_min_u32 v{V_S}, v{V_S}, v{V_S+3}")
                e("s_nop 0")
                e(f"v_readfirstlane_b32 s{S_T}, v{V_S}")
                e("s_nop 0")
                e(f"s_add_u32 s{S_T}, s{S_T}, s{S_T+4}")
            free_estimate()
            publish()
            lab(f"L_ld_chk{kind}")
            e(f"s_cmp_ge_u32 s{S_T}, s{S_U}")
            e(f"s_cbranch_scc1 L_ld_free{kind}")
            if a.stamps:
                e(f"s_mov_b32 s{S_T+3}, 1")
                e(f"s_cmp_ge_u32 s{S_U}, 8")
                e(f"s_cselect_b32 s{S_T+3}, 0x100, s{S_T+3}")
                e(f"s_cmp_ge_u32 s{S_U}, 28")
                e(f"s_cselect_b32 s{S_T+3}, 0x10000, s{S_T+3}")
                e(f"s_cmp_ge_u32 s{S_U}, 62")
                e(f"s_cselect_b32 s{S_T+3}, 0x1000000, s{S_T+3}")
                e(f"s_add_u32 s{S_T+9}, s{S_T+9}, s{S_T+3}")
            self.spin_guard()
            free_estimate()
            e(f"s_branch L_ld_chk{kind}")
            lab(f"L_ld_free{kind}")
            if a.stamps:
                su = [int(v) for v in a.su.split(",")]
                for ti, si in ((su[0], 1), (su[1], 2), (su[2], 4)):
                    l2 = self.newlab("pst")
                    e(f"s_cmp_lg_u32 s{S_U}, {ti}")
                    e(f"s_cbranch_scc1 {l2}")
                    self.stamp(si)
                    lab(l2)
            group(kind, 0)
            for g in range(1, GPU):
                publish()
                group(kind, g)
            e(f"s_add_u32 s{S_U}, s{S_U}, 1")
            e(f"s_add_u32 s{S_J}, s{S_J}, 1")
            e(f"s_cmp_lt_u32 s{S_J}, {NT}")
            e(f"s_cbranch_scc1 L_ld_{kind}")
            e(f"s_mov_b32 s{S_J}, 0")

        assert R - 1 <= 2 * GPU
        ld_phase("K")
        ld_phase("V")
        c("drain")
        for r in range(R - 1, -1, -1):
            e(f"s_waitcnt vmcnt({r*Gp})")
            e(f"v_mov_b32 v{V_F}, {NU*GPU - r}")
            e(f"ds_write_b32 v{V_FLAGA}, v{V_F}")
        self.stamp(3)
        self.stamp_store7("0")
        e("s_endpgm")

        lab("L_notloader")
        e(f"v_lshlrev_b32 v{V_A16}, 4, v{V_LANE}")
        e(f"v_add_u32 v{V_PB}, {LDS_P}, v{V_A16}")
        e(f"v_lshlrev_b32 v{V_AB}, 2, v{T+2}")
        e(f"v_add_u32 v{V_AB}, {LDS_AL}, v{V_AB}")
        e(f"s_mov_b32 s{S_LANDED}, 0")
        e(f"s_cmp_ge_u32 s{S_WAVE}, 3")
        e("s_cbranch_scc1 L_pvwave")

        c("================= producer waves =================")
        e(f"s_sub_u32 s{S_CI}, s{S_WAVE}, 1")
        e(f"s_lshl_b32 s{S_T}, s{S_CI}, 2")
        e(f"s_add_u32 s{S_T+1}, s{S_T}, {LDS_FLAG + 32}")
        e(f"v_mov_b32 v{V_RELA}, s{S_T+1}")
        e(f"s_add_u32 s{S_T+1}, s{S_T}, {LDS_FLAG + 8}")
        e(f"v_mov_b32 v{V_PDA}, s{S_T+1}")
        c("producer p never reads units below p")
        self.release(S_CI)
        e(f"v_and_b32 v{T+3}, 15, v{T+2}")
        e(f"v_xor_b32 v{T+3}, v{T+3}, v{T+1}")
        e(f"v_lshlrev_b32 v{T+3}, 4, v{T+3}")
        e(f"v_lshl_or_b32 v{V_BK}, v{T+2}, 9, v{T+3}")
        e(f"s_mov_b32 s{S_C}, 0x{f32bits(CSCALE):08x}")
        e(f"s_mov_b32 s{S_CM}, 0x{f32bits(CMASK):08x}")
        e(f"v_mov_b32 v{V_M}, 0xff800000")
        e(f"v_mov_b32 v{V_L}, 0")
        c("tree duty: producer 0 of split 3")
        e(f"s_xor_b32 s{S_T+8}, s{S_SPLIT}, 3")
        e(f"s_or_b32 s{S_T+8}, s{S_T+8}, s{S_CI}")
        e("s_waitcnt lgkmcnt(0)")
        e(f"s_cmp_lg_u32 s{S_T+8}, 0")
        e("s_cbranch_scc1 L_p_nomask")
        self.srd(SRD_MSK, 14, 15, 4096)
        e(f"v_and_b32 v{T+6}, 15, v{V_LANE}")
        e(f"v_lshlrev_b32 v{T+6}, 5, v{T+6}")
        e(f"v_lshl_or_b32 v{T+6}, v{T+1}, 3, v{T+6}")
        e(f"s_lshr_b32 s{S_T+4}, s{S_PAIR}, 3")
        e(f"s_lshl_b32 s{S_T+4}, s{S_T+4}, 9")
        e(f"buffer_load_dwordx2 v[{V_MSK}:{V_MSK+1}], v{T+6}, s[{SRD_MSK}:{SRD_MSK+3}], s{S_T+4} offen")
        e(f"buffer_load_dwordx2 v[{V_MSK+2}:{V_MSK+3}], v{T+6}, s[{SRD_MSK}:{SRD_MSK+3}], s{S_T+4} offen offset:16")
        lab("L_p_nomask")
        e("s_barrier")
        self.k_addrs(str(LDS_Q))
        self.poll("4", sreg=S_NEED, off=4, precheck=False, sleep=1)
        self.read_k(V_Q)
        e(f"s_cmp_lg_u32 s{S_T+8}, 0")
        e("s_cbranch_scc1 L_p_notree")
        c("---- tree tile (16 keys, masked): P goes to the start of the tree staging area ----")
        self.k_addrs(str(LDS_TREE))
        self.read_k()
        e("s_waitcnt vmcnt(0)")
        for i in range(4):
            e(f"v_lshlrev_b32 v{V_MT+2*i}, 16, v{V_MSK+i}")
            e(f"v_and_b32 v{V_MT+2*i+1}, 0xffff0000, v{V_MSK+i}")
        for i in range(8):
            e(f"v_sub_f32 v{V_MT+i}, 1.0, v{V_MT+i}")
        for i in range(8):
            e(f"v_mul_f32 v{V_MT+i}, s{S_CM}, v{V_MT+i}")
        e("s_waitcnt lgkmcnt(0)")
        for kk in range(16):
            self.qk_mfma(kk)
        e("s_nop 15")
        for i in range(8):
            e(f"v_fma_f32 v{S+i}, v{S+i}, s{S_C}, v{V_MT+i}")
        e(f"v_max3_f32 v{T}, v{S}, v{S+1}, v{S+2}")
        e(f"v_max3_f32 v{T+1}, v{S+3}, v{S+4}, v{S+5}")
        e(f"v_max3_f32 v{T}, v{T}, v{S+6}, v{S+7}")
        e(f"v_max_f32 v{T}, v{T}, v{T+1}")
        self.xhalf("v_max_f32", V_M, T, T + 1)
        for i in range(8):
            e(f"v_sub_f32 v{S+i}, v{S+i}, v{V_M}")
        for i in range(8):
            e(f"v_exp_f32 v{S+i}, v{S+i}")
        e("s_nop 0")
        e(f"v_add_f32 v{V_L}, v{S}, v{S+1}")
        for i in range(2, 8):
            e(f"v_add_f32 v{V_L}, v{V_L}, v{S+i}")
        for i in range(4):
            e(f"v_cvt_pk_bf16_f32 v{V_P+i}, v{S+2*i}, v{S+2*i+1}")
        e(f"ds_write_b128 v{V_PB}, v[{V_P}:{V_P+3}] offset:{LDS_TREE - LDS_P}")
        lab("L_p_notree")
        c("count 1 = start-up work (tree tile, if any) done")
        e(f"s_mov_b32 s{S_PCNT}, 1")
        e(f"v_mov_b32 v{V_TK}, 1")
        e("s_waitcnt lgkmcnt(0)")
        e(f"ds_write_b32 v{V_PDA}, v{V_TK}")
        e(f"s_mov_b32 s{S_J}, s{S_CI}")
        self.L.append(".p2align 6")
        lab("L_kloop")
        e(f"s_mov_b32 s{S_U}, s{S_J}")
        self.slot_of_u()
        self.k_addrs(f"s{S_SLOT}")
        self.p_addrs7()
        e(f"s_add_u32 s{S_NEED}, s{S_U}, 1")
        e(f"s_mul_i32 s{S_NEED}, s{S_NEED}, {GPU}")
        e(f"s_add_u32 s{S_T+2}, s{S_U}, 2")
        e(f"s_cmp_ge_u32 s{S_T+2}, {NT}")
        e(f"s_cselect_b32 s{S_T+2}, {NU}, s{S_T+2}")
        self.poll(f"s{S_NEED}", sleep=1)
        self.read_k()
        e(f"v_mov_b32 v{V_F}, s{S_T+2}")
        for kk in range(16):
            if kk < 8:
                e(f"s_waitcnt lgkmcnt({15 - kk})")
            elif kk == 8:
                e("s_waitcnt lgkmcnt(0)")
                e(f"ds_write_b32 v{V_RELA}, v{V_F}")
            self.qk_mfma(kk)
        e(f"s_add_u32 s{S_PCNT}, s{S_PCNT}, 1")
        e(f"v_mov_b32 v{V_TK}, s{S_PCNT}")
        e("s_nop 15")
        self.softmax()
        e("s_waitcnt lgkmcnt(0)")
        e(f"ds_write_b32 v{V_PDA}, v{V_TK}")
        e(f"s_add_u32 s{S_J}, s{S_J}, 2")
        e(f"s_cmp_lt_u32 s{S_J}, {NT}")
        e("s_cbranch_scc1 L_kloop")
        c("publish (m, l) of this producer")
        e(f"v_mov_b32 v{T+2}, v{V_M}")
        e(f"v_mov_b32 v{T}, v{V_L}")
        self.xhalf("v_add_f32", T + 3, T, T + 1)
        e(f"s_lshl_b32 s{S_T}, s{S_CI}, 8")
        e(f"s_add_u32 s{S_T}, s{S_T}, {LDS_STAT}")
        e(f"v_and_b32 v{T}, 31, v{V_LANE}")
        e(f"v_lshlrev_b32 v{T}, 3, v{T}")
        e(f"v_add_u32 v{T}, s{S_T}, v{T}")
        e(f"ds_write_b64 v{T}, v[{T+2}:{T+3}]")
        e(f"v_mov_b32 v{V_TK}, {NT//2 + 2}")
        e("s_waitcnt lgkmcnt(0)")
        e(f"ds_write_b32 v{V_PDA}, v{V_TK}")
        e("s_waitcnt lgkmcnt(0)")
        e("s_endpgm")

        lab("L_pvwave")
        c("================= PV waves =================")
        e(f"s_sub_u32 s{S_CI}, s{S_WAVE}, 3")
        e(f"s_lshl_b32 s{S_T}, s{S_CI}, 2")
        e(f"s_add_u32 s{S_T+1}, s{S_T}, {LDS_FLAG + 16}")
        e(f"v_mov_b32 v{V_RELA}, s{S_T+1}")
        self.release_const(GATE1)
        c("stage Q (and the tree K/V of split 3) into LDS")
        self.dma_offsets(V_PK, V_PK + 8)
        e(f"s_lshl_b32 s{S_T+1}, s{S_PAIR}, 14")
        e(f"s_lshl_b32 s{S_T+2}, s{S_PAIR}, 13")
        e(f"s_and_b32 s{S_T+3}, s{S_CI}, 1")
        e(f"s_mul_i32 s{S_T+3}, s{S_T+3}, {128 | 4096}")
        for i in range(4):
            e(f"v_xor_b32 v{V_PK+12+i}, s{S_T+3}, v{V_PK+i}")
        e(f"s_lshr_b32 s{S_T+4}, s{S_CI}, 1")
        e(f"s_lshl_b32 s{S_T+4}, s{S_T+4}, 13")
        e(f"s_lshl_b32 s{S_T+5}, s{S_CI}, 12")
        e("s_waitcnt lgkmcnt(0)")
        self.srd_off(SRD_Q, 4, 5, S_T + 1, 16384)
        e(f"s_add_u32 m0, s{S_T+5}, {LDS_Q}")
        e("s_nop 0")
        for i in range(4):
            e(f"buffer_load_dwordx4 v{V_PK+12+i}, s[{SRD_Q}:{SRD_Q+3}], s{S_T+4} offen offset:{i*1024}{a.polq} lds")
        e(f"s_cmp_lg_u32 s{S_SPLIT}, 3")
        e("s_cbranch_scc1 L_c_notree0")
        e(f"s_cmp_lg_u32 s{S_CI}, 2")
        e("s_cbranch_scc1 L_c_tk_done")
        self.srd_off(SRD_TK, 10, 11, S_T + 2, 8192)
        for j in range(8):
            self.piece("K", j, SRD_TK, ["0"], m0_abs(LDS_TREE), V_PK, a.polq)
        lab("L_c_tk_done")
        e(f"s_cmp_lg_u32 s{S_CI}, 3")
        e("s_cbranch_scc1 L_c_notree0")
        self.srd_off(SRD_TK, 12, 13, S_T + 2, 8192)
        for j in range(8):
            self.piece("V", j, SRD_TK, ["0"], m0_abs(LDS_TREE + 8192), V_PK + 8, a.polq)
        lab("L_c_notree0")
        e("s_barrier")
        self.stamp(1)
        self.stamp(2)
        self.srd_off(SRD_OUT, 16, 17, S_T + 1, 16384)
        self.srd(SRD_WS, 20, 21, 64 << 20)
        self.srd(SRD_DBG, 18, 19, 256)
        e(f"v_bfe_u32 v{T+3}, v{V_LANE}, 2, 2")
        e(f"v_lshl_add_u32 v{T+4}, v{T+1}, 2, v{T+3}")
        e(f"v_lshlrev_b32 v{T+4}, 9, v{T+4}")
        e(f"v_lshl_or_b32 v{T+4}, v{T+3}, 6, v{T+4}")
        e(f"v_bfe_u32 v{T+3}, v{V_LANE}, 4, 1")
        e(f"v_lshl_or_b32 v{T+4}, v{T+3}, 5, v{T+4}")
        e(f"v_and_b32 v{T+3}, 3, v{V_LANE}")
        e(f"v_lshl_or_b32 v{T+4}, v{T+3}, 3, v{T+4}")
        c("d-tiles 2c, 2c+1: xor (dt&3)<<6, + (dt>>2)*256")
        e(f"s_and_b32 s{S_T}, s{S_CI}, 1")
        e(f"s_lshl_b32 s{S_T}, s{S_T}, 7")
        e(f"s_lshr_b32 s{S_T+1}, s{S_CI}, 1")
        e(f"s_lshl_b32 s{S_T+1}, s{S_T+1}, 8")
        e(f"s_or_b32 s{S_T}, s{S_T}, s{S_T+1}")
        e(f"v_xor_b32 v{V_BV}, s{S_T}, v{T+4}")
        e(f"v_lshlrev_b32 v{V_A8}, 3, v{V_LANE}")
        c("output address: q = l&31, d = 64*c + 8*g8 + 4*h")
        e(f"v_lshlrev_b32 v{V_AOUT}, 9, v{T+2}")
        e(f"v_lshl_or_b32 v{V_AOUT}, v{T+1}, 3, v{V_AOUT}")
        e(f"s_mov_b32 s{S_PD0}, 0")
        e(f"s_mov_b32 s{S_PD1}, 0")
        e(f"s_add_u32 s{S_T}, s{S_SPLIT}, 8")
        e(f"s_lshl_b32 s{S_GOT}, 1, s{S_T}")
        e(f"s_mov_b32 s{S_TKT}, 0")
        e(f"s_lshl_b32 s{S_WSB}, s{S_PAIR}, {WS_PAIR_SH}")
        e(f"s_lshl_b32 s{S_CTR}, s{S_CI}, 8")
        e(f"s_add_u32 s{S_CTR}, s{S_CTR}, s{S_WSB}")
        e(f"s_add_u32 s{S_CTR}, s{S_CTR}, {WS_CTR}")
        for i in range(64):
            e(f"v_mov_b32 v{V_O+i}, 0")
        e(f"v_mov_b32 v{V_TK}, 1")
        c("own staged pieces landed -> count")
        e("s_waitcnt vmcnt(0)")
        e("s_mov_b64 exec, 1")
        e(f"ds_add_u32 v{V_FLAGA}, v{V_TK} offset:4")
        e("s_mov_b64 exec, -1")
        e(f"s_cmp_lg_u32 s{S_SPLIT}, 3")
        e("s_cbranch_scc1 L_v_notree")
        c("---- tree tile: O set 0 = V_tree^T P_tree^T (P ready implies all staging has landed) ----")
        self.poll("1", sreg=S_PD0, off=8, precheck=False, sleep=2)
        e(f"ds_read_b128 v[{V_P}:{V_P+3}], v{V_PB} offset:{LDS_TREE - LDS_P}")
        self.v_addrs(str(LDS_TREE + 8192))
        self.read_v([0])
        e("s_waitcnt lgkmcnt(0)")
        self.pv([0], 0, first=True)
        lab("L_v_notree")
        self.release_const(GATE2)
        c("counter initialisation: PV wave 2 of workgroup 0 claims d_debug[0] and zeroes all merge counters")
        e(f"s_xor_b32 s{S_T}, s{S_CI}, 2")
        e(f"s_or_b32 s{S_T}, s{S_T}, s2")
        e(f"s_cmp_lg_u32 s{S_T}, {9999 if a.nowg0 else 0}")
        e("s_cbranch_scc1 L_park")
        self.claim_and_init("L_park", "L_park")
        lab("L_park")
        c("---- park the first 12 P tiles in registers ----")
        self.poll(str(NPK // 2 + 1), sreg=S_PD0, off=8, sleep=4)
        self.poll(str(NPK // 2 + 1), sreg=S_PD1, off=12, sleep=4)
        e(f"v_add_u32 v{V_PA}, {(NPS - NPK) * 2048}, v{V_PB}")
        for j in range(NPK):
            e(f"ds_read_b128 v[{V_PK+8*j}:{V_PK+8*j+3}], v{V_PA} offset:{j*2048}")
            e(f"ds_read_b128 v[{V_PK+8*j+4}:{V_PK+8*j+7}], v{V_PA} offset:{j*2048 + 1024}")
            e(f"ds_read_b32 v{V_PKA+j}, v{V_AB} offset:{(NPS - NPK + j) * 128}")
        e("s_waitcnt lgkmcnt(0)")
        self.release_const(NT)
        c("PV wave 2 makes sure the merge counters have been zeroed before the V phase")
        c("(the ring dependency then covers every other wave of the workgroup)")
        e(f"s_cmp_lg_u32 s{S_CI}, 2")
        e("s_cbranch_scc1 L_vphase")
        e(f"s_mov_b32 s{S_NEED}, {32 * GPU}")
        self.poll(f"s{S_NEED}", sleep=8)
        e("s_mov_b64 exec, 1")
        e(f"buffer_load_dword v{V_TK}, v{V_ZERO}, s[{SRD_DBG}:{SRD_DBG+3}], 0 offen sc1")
        e("s_mov_b64 exec, -1")
        e("s_waitcnt vmcnt(0)")
        e(f"v_readfirstlane_b32 s{S_T}, v{V_TK}")
        e("s_nop 0")
        e(f"s_cmp_lg_u32 s{S_T}, 3")
        e("s_cbranch_scc1 L_check_loop")

        lab("L_vphase")
        c("idle until the K phase is nearly over")
        e(f"s_mov_b32 s{S_NEED}, {(NT - 2) * GPU}")
        self.poll(f"s{S_NEED}", sleep=8)
        c("---- V phase, parked tiles ----")
        for j in range(NPK):
            u = NT + j
            st = j & 1
            self.v_addrs(str((u % 3) * 16384))
            e(f"v_mov_b32 v{V_ALPHA}, v{V_PKA+j}")
            for i in range(0, 32, 2):
                self.pkmul(V_O + 32 * st + i, V_ALPHA)
            self.poll(str((u + 1) * GPU), sleep=1)
            self.read_v([0, 1])
            e(f"v_mov_b32 v{V_F}, {u + 1}")
            e("s_waitcnt lgkmcnt(0)")
            e(f"ds_write_b32 v{V_RELA}, v{V_F}")
            self.pv7(st, V_PK + 8 * j)
        c("---- V phase, tiles from LDS ----")
        e(f"s_mov_b32 s{S_J}, {NPK}")
        self.L.append(".p2align 6")
        lab("L_vloop")
        for st in range(2):
            spd = S_PD0 if st == 0 else S_PD1
            e(f"s_add_u32 s{S_U}, s{S_J}, {NT}")
            self.slot_of_u(early=False)
            self.v_addrs(f"s{S_SLOT}")
            self.p_addrs7()
            e(f"s_lshr_b32 s{S_NEED}, s{S_J}, 1")
            e(f"s_add_u32 s{S_NEED}, s{S_NEED}, 2")
            self.poll(f"s{S_NEED}", sreg=spd, off=8 + 4 * st, sleep=2)
            e(f"ds_read_b32 v{V_ALPHA}, v{V_AA}")
            e(f"ds_read_b128 v[{V_P}:{V_P+3}], v{V_PA}")
            e(f"ds_read_b128 v[{V_P+4}:{V_P+7}], v{V_PA} offset:1024")
            if st == 0:
                e(f"s_cmp_ge_u32 s{S_U}, {NU - 8}")
                e("s_cbranch_scc1 L_hook")
                lab("L_hook_done")
            e(f"s_add_u32 s{S_T+2}, s{S_U}, 1")
            e(f"s_mul_i32 s{S_NEED}, s{S_T+2}, {GPU}")
            e("s_waitcnt lgkmcnt(0)")
            for i in range(0, 32, 2):
                self.pkmul(V_O + 32 * st + i, V_ALPHA)
            if st == 1:
                e(f"s_cmp_eq_u32 s{S_U}, {NU - 1}")
                e("s_cbranch_scc1 L_scale0")
                lab("L_scale0_done")
            self.poll(f"s{S_NEED}", sleep=1)
            self.read_v([0, 1])
            e(f"v_mov_b32 v{V_F}, s{S_T+2}")
            e(f"s_add_u32 s{S_J}, s{S_J}, 1")
            e("s_waitcnt lgkmcnt(0)")
            e(f"ds_write_b32 v{V_RELA}, v{V_F}")
            self.pv7(st, V_P)
        e(f"s_cmp_lt_u32 s{S_J}, {NT}")
        e("s_cbranch_scc1 L_vloop")

        self.stamp(3)
        A8, A16, AOUT = V_A8, V_A16, V_AOUT

        def issue_loads(sval):
            for i in range(1, 4):
                skip = self.newlab("nold")
                e(f"s_xor_b32 s{S_T+1}, s{S_SPLIT}, {i}")
                e(f"s_add_u32 s{S_T+3}, s{S_T+1}, 8")
                e(f"s_lshl_b32 s{S_T+3}, 1, s{S_T+3}")
                e(f"s_andn2_b32 s{S_T+5}, s{sval}, s{S_GOT}")
                e(f"s_and_b32 s{S_T+5}, s{S_T+5}, s{S_T+3}")
                e(f"s_cbranch_scc0 {skip}")
                e(f"s_or_b32 s{S_GOT}, s{S_GOT}, s{S_T+3}")
                e(f"s_lshl_b32 s{S_T+1}, s{S_T+1}, 2")
                e(f"s_add_u32 s{S_T+1}, s{S_T+1}, s{S_CI}")
                e(f"s_lshl_b32 s{S_T+3}, s{S_T+1}, 9")
                e(f"s_add_u32 s{S_T+3}, s{S_T+3}, s{S_WSB}")
                e(f"s_add_u32 s{S_T+3}, s{S_T+3}, {WS_STAT}")
                e(f"buffer_load_dwordx2 v[{S+2*i}:{S+2*i+1}], v{A8}, s[{SRD_WS}:{SRD_WS+3}], s{S_T+3} offen sc1")
                e(f"s_lshl_b32 s{S_T+1}, s{S_T+1}, 13")
                e(f"s_add_u32 s{S_T+1}, s{S_T+1}, s{S_WSB}")
                e(f"s_add_u32 s{S_T+3}, s{S_T+1}, 4096")
                for rq in range(8):
                    so = S_T + 1 if rq < 4 else S_T + 3
                    r = V_X + 32 * (i - 1) + 4 * rq
                    e(f"buffer_load_dwordx4 v[{r}:{r+3}], v{A16}, s[{SRD_WS}:{SRD_WS+3}], s{so} offen offset:{(rq & 3)*1024} sc1")
                lab(skip)

        def refresh(l_done):
            e("s_waitcnt vmcnt(0)")
            e(f"v_readfirstlane_b32 s{S_TKT}, v{V_TK}")
            e("s_nop 0")
            issue_loads(S_TKT)
            e(f"s_cmp_eq_u32 s{S_GOT}, 0xf00")
            e(f"s_cbranch_scc1 {l_done}")
            e("s_mov_b64 exec, 1")
            e(f"buffer_load_dword v{V_TK}, v{V_ZERO}, s[{SRD_WS}:{SRD_WS+3}], s{S_CTR} offen sc1")
            e("s_mov_b64 exec, -1")

        c("---- merge the two accumulator sets (set 0 was scaled while waiting for the last V tile) ----")
        e("s_nop 7")
        e("s_nop 5")
        for i in range(0, 32, 2):
            e(f"v_pk_fma_f32 v[{V_O+i}:{V_O+i+1}], v[{V_O+32+i}:{V_O+33+i}], v[{V_F1}:{V_F1+1}], v[{V_O+i}:{V_O+i+1}] op_sel_hi:[1,0,1]")
        c("---- merge the 4 splits ----")
        e(f"s_and_b32 s{S_T+6}, s{S_TKT}, 0xff")
        e(f"s_cmp_ge_u32 s{S_T+6}, 3")
        e("s_cbranch_scc1 L_last")
        c("not last: publish partial (write-through), then set the done bit")
        e(f"s_lshl_b32 s{S_T}, s{S_SPLIT}, 2")
        e(f"s_add_u32 s{S_T}, s{S_T}, s{S_CI}")
        e(f"s_lshl_b32 s{S_T+1}, s{S_T}, 13")
        e(f"s_add_u32 s{S_T+1}, s{S_T+1}, s{S_WSB}")
        e(f"s_add_u32 s{S_T+2}, s{S_T+1}, 4096")
        e(f"s_lshl_b32 s{S_T+3}, s{S_T}, 9")
        e(f"s_add_u32 s{S_T+3}, s{S_T+3}, s{S_WSB}")
        e(f"s_add_u32 s{S_T+3}, s{S_T+3}, {WS_STAT}")
        e(f"buffer_store_dwordx2 v[{V_M}:{V_M+1}], v{A8}, s[{SRD_WS}:{SRD_WS+3}], s{S_T+3} offen sc1")
        for rq in range(8):
            so = S_T + 1 + (rq >> 2)
            e(f"buffer_store_dwordx4 v[{V_O+4*rq}:{V_O+4*rq+3}], v{A16}, s[{SRD_WS}:{SRD_WS+3}], s{so} offen offset:{(rq & 3)*1024} sc1")
        e(f"v_mov_b32 v{V_TK}, s{S_GOT}")
        e("s_waitcnt vmcnt(0)")
        e("s_mov_b64 exec, 1")
        e(f"buffer_atomic_or v{V_TK}, v{V_ZERO}, s[{SRD_WS}:{SRD_WS+3}], s{S_CTR} offen")
        e("s_mov_b64 exec, -1")
        if a.stamps:
            self.stamp(4)
            e(f"s_mov_b32 s{S_T+9}, 0")
            e("s_branch L_fin")
        else:
            e("s_endpgm")

        c("last arriver: fetch each partial as soon as its done bit shows up")
        lab("L_last")
        e(f"s_cmp_eq_u32 s{S_GOT}, 0xf00")
        e("s_cbranch_scc1 L_combine")
        c("(a refresh of the counter is already in flight from the last hook)")
        lab("L_wait_done")
        refresh("L_combine")
        self.spin_guard()
        e("s_branch L_wait_done")
        lab("L_combine")
        self.stamp(4)
        e(f"v_mov_b32 v{S}, v{V_M}")
        e(f"v_mov_b32 v{S+1}, v{V_L}")
        e(f"s_lshl_b32 s{S_T+8}, s{S_CI}, 7")
        c("every stats load is older than the 8 youngest loads")
        e("s_waitcnt vmcnt(8)")
        e(f"v_max_f32 v{T}, v{S}, v{S+2}")
        e(f"v_max3_f32 v{V_M}, v{T}, v{S+4}, v{S+6}")
        F = [S + 8, S + 10, S + 12, S + 14]
        for i in range(4):
            e(f"v_sub_f32 v{F[i]}, v{S+2*i}, v{V_M}")
        for i in range(4):
            e(f"v_exp_f32 v{F[i]}, v{F[i]}")
        e("s_nop 0")
        for i in range(4):
            e(f"v_mul_f32 v{F[i]+1}, v{F[i]}, v{S+2*i+1}")
        e(f"v_add_f32 v{T}, v{F[0]+1}, v{F[1]+1}")
        e(f"v_add_f32 v{T+1}, v{F[2]+1}, v{F[3]+1}")
        e(f"v_add_f32 v{V_L}, v{T}, v{T+1}")
        e(f"v_rcp_f32 v{V_ALPHA}, v{V_L}")
        e("s_nop 0")
        for i in range(4):
            e(f"v_mul_f32 v{F[i]}, v{F[i]}, v{V_ALPHA}")
        src = [V_O, V_X, V_X + 32, V_X + 64]
        for i in range(4):
            if i == 1:
                e("s_waitcnt vmcnt(0)")
            for r in range(0, 32, 2):
                self.pkmul(src[i] + r, F[i])
            if i == 1:
                for r in range(0, 32, 2):
                    self.pkadd(V_O + r, V_O + r, src[1] + r)
        for g8 in range(8):
            for r in (4 * g8, 4 * g8 + 2):
                self.pkadd(src[2] + r, src[2] + r, src[3] + r)
            for r in (4 * g8, 4 * g8 + 2):
                self.pkadd(V_O + r, V_O + r, src[2] + r)
            rr = V_X + 2 * g8
            e(f"v_cvt_pk_bf16_f32 v{rr}, v{V_O+4*g8}, v{V_O+4*g8+1}")
            e(f"v_cvt_pk_bf16_f32 v{rr+1}, v{V_O+4*g8+2}, v{V_O+4*g8+3}")
            e(f"buffer_store_dwordx2 v[{rr}:{rr+1}], v{AOUT}, s[{SRD_OUT}:{SRD_OUT+3}], s{S_T+8} offen offset:{g8*16}")
        c("nobody touches this counter any more: leave it zero (every launch re-zeroes it anyway)")
        e("s_mov_b64 exec, 1")
        e(f"buffer_store_dword v{V_ZERO}, v{V_ZERO}, s[{SRD_WS}:{SRD_WS+3}], s{S_CTR} offen sc1")
        e("s_mov_b64 exec, -1")
        if a.stamps:
            e("s_waitcnt vmcnt(0)")
            e(f"s_mov_b32 s{S_T+9}, 1")
            lab("L_fin")
            e(f"s_add_u32 s{S_T+7}, s{S_CI}, 1")
            self.stamp_store7(f"s{S_T+7}")
        lab("L_end")
        e("s_endpgm")

        c("---- end-of-stream hooks, run at units NU-8, NU-6, NU-4, NU-2 (out of line) ----")
        lab("L_hook")
        e(f"s_cmp_lg_u32 s{S_U}, {NU - 8}")
        e("s_cbranch_scc1 L_hook2")
        c("NU-8: final (m, l) of both producers -> merge factors, M, L")
        self.poll(str(NT // 2 + 2), sreg=S_PD0, off=8)
        self.poll(str(NT // 2 + 2), sreg=S_PD1, off=12)
        e(f"v_and_b32 v{T}, 31, v{V_LANE}")
        e(f"v_lshlrev_b32 v{T}, 3, v{T}")
        e(f"v_add_u32 v{T}, {LDS_STAT}, v{T}")
        e(f"ds_read_b64 v[{S}:{S+1}], v{T}")
        e(f"ds_read_b64 v[{S+2}:{S+3}], v{T} offset:256")
        e("s_waitcnt lgkmcnt(0)")
        e(f"v_max_f32 v{V_M}, v{S}, v{S+2}")
        e(f"v_sub_f32 v{V_F0}, v{S}, v{V_M}")
        e(f"v_sub_f32 v{V_F1}, v{S+2}, v{V_M}")
        e(f"v_exp_f32 v{V_F0}, v{V_F0}")
        e(f"v_exp_f32 v{V_F1}, v{V_F1}")
        e("s_nop 0")
        e(f"v_mul_f32 v{S+1}, v{S+1}, v{V_F0}")
        e(f"v_mul_f32 v{S+3}, v{S+3}, v{V_F1}")
        e(f"v_add_f32 v{V_L}, v{S+1}, v{S+3}")
        e("s_branch L_hook_done")
        lab("L_hook2")
        e(f"s_cmp_lg_u32 s{S_U}, {NU - 4}")
        e("s_cbranch_scc1 L_hook3")
        c("NU-4: take the arrival ticket")
        e(f"v_mov_b32 v{V_TK}, 1")
        e("s_mov_b64 exec, 1")
        e(f"buffer_atomic_add v{V_TK}, v{V_ZERO}, s[{SRD_WS}:{SRD_WS+3}], s{S_CTR} offen sc0")
        e("s_mov_b64 exec, -1")
        e("s_branch L_hook_done")
        lab("L_hook3")
        e(f"s_cmp_lg_u32 s{S_U}, {NU - 2}")
        e("s_cbranch_scc1 L_hook_done")
        c("NU-2: read the ticket; the last arriver starts loading what has been published")
        e("s_waitcnt vmcnt(0)")
        e(f"v_readfirstlane_b32 s{S_TKT}, v{V_TK}")
        e("s_nop 0")
        e(f"s_and_b32 s{S_T}, s{S_TKT}, 0xff")
        e(f"s_cmp_lt_u32 s{S_T}, 3")
        e("s_cbranch_scc1 L_hook_done")
        refresh("L_hook_done")
        e("s_branch L_hook_done")

        lab("L_scale0")
        for i in range(0, 32, 2):
            self.pkmul(V_O + i, V_F0)
        c("last arriver: one more look at the counter before the last V tile")
        e(f"s_and_b32 s{S_T}, s{S_TKT}, 0xff")
        e(f"s_cmp_lt_u32 s{S_T}, 3")
        e("s_cbranch_scc1 L_scale0_done")
        e(f"s_cmp_eq_u32 s{S_GOT}, 0xf00")
        e("s_cbranch_scc1 L_scale0_done")
        refresh("L_scale0_done")
        e("s_branch L_scale0_done")

        c("rare: counters not ready yet. Claim the job if nobody has, else wait for whoever did.")
        lab("L_check_loop")
        self.claim_and_init("L_vphase", "L_check_wait")
        lab("L_check_wait")
        e("s_sleep 8")
        self.spin_guard()
        e("s_branch L_check_loop")

        out += "\n".join(self.L) + "\n"
        out += f""".section .rodata,"a"
.p2align 6
.amdhsa_kernel {K}
  .amdhsa_next_free_vgpr {NVGPR}
  .amdhsa_next_free_sgpr 102
  .amdhsa_accum_offset {NVGPR}
  .amdhsa_group_segment_fixed_size 0
  .amdhsa_kernarg_size 72
  .amdhsa_user_sgpr_count 2
  .amdhsa_user_sgpr_kernarg_segment_ptr 1
  .amdhsa_system_sgpr_workgroup_id_x 1
.end_amdhsa_kernel
"""
        return out


def main():
    ap = argparse.ArgumentParser()
    ap.add_argument("-o", default=f"cdna_kernels/{NAME}.s")
    ap.add_argument("--polk", default="nt")
    ap.add_argument("--polv", default="nt")
    ap.add_argument("--polq", default="nt")
    ap.add_argument("--stamps", type=int, default=0)
    ap.add_argument("--group", type=int, default=8)
    ap.add_argument("--ring", type=int, default=3)
    ap.add_argument("--sleep", type=int, default=2)
    ap.add_argument("--spin", type=int, default=400000)
    ap.add_argument("--rmul", type=int, default=13)
    ap.add_argument("--su", default="8,32,80")
    ap.add_argument("--nowg0", type=int, default=0)
    args = ap.parse_args()
    for n in ("polk", "polv", "polq"):
        v = getattr(args, n)
        setattr(args, n, (" " + v.replace(",", " ")) if v else "")
    open(args.o, "w").write(G(args).gen())


if __name__ == "__main__":
    main()
```

```python
import argparse

from gen import HEADER, NAME, f32bits, CSCALE, CMASK
import gen6
from gen6 import (V_LANE, V_T, V_M, V_L, V_ALPHA, V_ZERO, V_FLAGA, V_RELA, V_BK, V_BV, V_PB, V_AB, V_A8, V_A16,
                  V_AOUT, V_PA, V_AA, V_PDA, V_F0, V_AK, V_AV, V_F1, V_TK, V_F, V_P, V_S, V_O, V_K, V_V, V_X, V_Q,
                  V_LD, NVGPR, S_SPLIT, S_WAVE, S_PAIR, SRD_K, SRD_V, SRD_Q, SRD_TK, S_J, SRD_MSK, SRD_OUT, SRD_WS,
                  SRD_DBG, S_OFF, S_OFF2, S_U, S_C, S_CM, S_SLOT, S_CI, S_NEED, S_LANDED, S_CTR, S_PCNT, S_SPIN,
                  S_T, S_TKT, S_GOT, S_ST, S_PD0, S_PD1, S_WSB, S_ISS, S_TB, NU, LDS_RING, LDS_P, LDS_AL, LDS_FLAG,
                  LDS_STAT, LDS_TOTAL, LDS_Q, LDS_TREE, WS_PAIR_SH, WS_STAT, WS_CTR, WS_STAMP)

assert gen6.N1 == 12 and gen6.NPS == 52
NT = 64
NPK = 12
NPS = 52
V_PK = 144
V_PKA = 240
V_MSK = 64
V_MT = 68
U6 = 102
WS_TS = 163840
S_LND = 40
S_MODE = 41
S_TS = 40
GATE1 = 16
GATE2 = 48


class G(gen6.G):
    def stamp_index(self):
        pass

    def stamp_store7(self, idx_sreg_expr):
        if not self.a.stamps:
            return
        e = self.e
        e("s_memtime s[98:99]")
        self.stamp(5)
        e(f"s_getreg_b32 s{S_T}, hwreg(HW_REG_XCC_ID)")
        e(f"s_mul_i32 s{S_T+2}, s2, 5")
        e(f"s_add_u32 s{S_T+2}, s{S_T+2}, {idx_sreg_expr}")
        e(f"s_lshl_b32 s{S_T+2}, s{S_T+2}, 6")
        e(f"s_add_u32 s{S_T+2}, s{S_T+2}, {WS_STAMP}")
        for i in range(6):
            e(f"v_mov_b32 v{V_S+i}, s{S_ST+2*i}")
        e(f"v_mov_b32 v{V_S+6}, s{S_T}")
        e(f"v_mov_b32 v{V_S+7}, s{S_T+9}")
        e(f"v_mov_b32 v{V_S+8}, s96")
        e(f"v_mov_b32 v{V_S+9}, s98")
        e(f"v_mov_b32 v{V_S+10}, 0")
        e(f"v_mov_b32 v{V_S+11}, s{S_SPIN}")
        e(f"v_mov_b32 v{V_T}, 0")
        e("s_mov_b64 exec, 1")
        for q in range(3):
            e(f"buffer_store_dwordx4 v[{V_S+4*q}:{V_S+4*q+3}], v{V_T}, s[{SRD_WS}:{SRD_WS+3}], s{S_T+2} offen offset:{16*q}")
        e("s_mov_b64 exec, -1")

    def slot8(self, kind):
        e = self.e
        e(f"s_mul_i32 s{S_T}, s{S_U}, 43691")
        e(f"s_lshr_b32 s{S_T}, s{S_T}, 17")
        e(f"s_mul_i32 s{S_T+1}, s{S_T}, 3")
        e(f"s_sub_u32 s{S_T+1}, s{S_U}, s{S_T+1}")
        e(f"s_lshl_b32 s{S_SLOT}, s{S_T+1}, 14")
        e(f"s_and_b32 s{S_T}, s{S_T}, 1")
        if kind == "K":
            e(f"s_cmp_lt_u32 s{S_U}, {gen6.N1}")
            e(f"s_cselect_b32 s{S_T}, s{S_T}, 0")
            e(f"s_mul_i32 s{S_T}, s{S_T}, {gen6.LDS_X}")
        else:
            e(f"s_cmp_ge_u32 s{S_U}, {U6}")
            e(f"s_cselect_b32 s{S_T}, s{S_T}, 0")
            e(f"s_mul_i32 s{S_T}, s{S_T}, {LDS_P}")
        e(f"s_add_u32 s{S_SLOT}, s{S_SLOT}, s{S_T}")

    def claim_and_init(self, l_ready, l_busy):
        e = self.e
        T = V_T
        e(f"v_mov_b32 v{T+6}, 1")
        e(f"v_mov_b32 v{T+7}, 0")
        e("s_mov_b64 exec, 1")
        e(f"buffer_atomic_cmpswap v[{T+6}:{T+7}], v{V_ZERO}, s[{SRD_DBG}:{SRD_DBG+3}], 0 offen sc0")
        e("s_mov_b64 exec, -1")
        e("s_waitcnt vmcnt(0)")
        e(f"v_readfirstlane_b32 s{S_T}, v{T+6}")
        e("s_nop 0")
        e(f"s_cmp_eq_u32 s{S_T}, 3")
        e(f"s_cbranch_scc1 {l_ready}")
        e(f"s_cmp_lg_u32 s{S_T}, 0")
        e(f"s_cbranch_scc1 {l_busy}")
        e(f"v_lshlrev_b32 v{T+6}, {WS_PAIR_SH}, v{V_LANE}")
        for base in (WS_CTR, WS_TS):
            for i in range(4):
                e(f"s_mov_b32 s{S_T}, {base + i*256}")
                e(f"buffer_store_dword v{V_ZERO}, v{T+6}, s[{SRD_WS}:{SRD_WS+3}], s{S_T} offen sc1")
        e("s_waitcnt vmcnt(0)")
        e(f"v_mov_b32 v{T+6}, 3")
        e("s_mov_b64 exec, 1")
        e(f"buffer_atomic_swap v{T+6}, v{V_ZERO}, s[{SRD_DBG}:{SRD_DBG+3}], 0 offen")
        e("s_mov_b64 exec, -1")
        e(f"s_branch {l_ready}")

    def p_addrs7(self):
        e = self.e
        e(f"s_add_u32 s{S_T}, s{S_J}, {NPS - NPK}")
        e(f"s_sub_u32 s{S_T+1}, s{S_J}, {NPK}")
        e(f"s_cmp_lt_u32 s{S_J}, {NPK}")
        e(f"s_cselect_b32 s{S_T}, s{S_T}, s{S_T+1}")
        e(f"s_lshl_b32 s{S_T+1}, s{S_T}, 11")
        e(f"s_lshl_b32 s{S_T}, s{S_T}, 7")
        e(f"v_add_u32 v{V_PA}, s{S_T+1}, v{V_PB}")
        e(f"v_add_u32 v{V_AA}, s{S_T}, v{V_AB}")

    def pv7(self, oset, psrc):
        for ks in range(2):
            for dtl in range(2):
                o = V_O + 32 * oset + 16 * dtl
                r = V_V + 8 * ks + 4 * dtl
                self.e(f"v_mfma_f32_32x32x16_bf16 v[{o}:{o+15}], v[{r}:{r+3}], v[{psrc+4*ks}:{psrc+4*ks+3}], v[{o}:{o+15}]")

    def release_const(self, val):
        self.e(f"v_mov_b32 v{V_F}, {val}")
        self.e(f"ds_write_b32 v{V_RELA}, v{V_F}")

    def gen(self):
        a = self.a
        e, lab, c = self.e, self.lab, self.c
        T = V_T
        S = V_S
        Gp, R = a.group, a.ring
        GPU = 16 // Gp
        K = NAME + "_kernel"
        out = HEADER + f"; @launch grid=(256,1,1) block=(448,1,1) lds={LDS_TOTAL}\n"
        out += '.amdgcn_target "amdgcn-amd-amdhsa--gfx950"\n'
        out += "".join("; " + ln + "\n" for ln in __doc__.strip().splitlines()[2:])
        out += '.text\n'
        out += f".globl {K}\n.p2align 8\n.type {K},@function\n{K}:\n"

        e("s_cmp_ge_u32 s2, 256")
        e("s_cbranch_scc1 L_end")
        if a.stamps:
            e("s_memtime s[96:97]")
        self.stamp(0)
        e("s_load_dwordx16 s[4:19], s[0:1], 0")
        e("s_load_dwordx2 s[20:21], s[0:1], 64")
        e(f"v_lshrrev_b32 v{T}, 6, v0")
        e(f"v_and_b32 v{V_LANE}, 63, v0")
        e(f"v_readfirstlane_b32 s{S_WAVE}, v{T}")
        e(f"v_lshrrev_b32 v{T+1}, 5, v{V_LANE}")
        e(f"v_and_b32 v{T+2}, 31, v{V_LANE}")
        e(f"s_and_b32 s{S_PAIR}, s2, 63")
        e(f"s_lshr_b32 s{S_SPLIT}, s2, 6")
        e(f"v_mov_b32 v{V_FLAGA}, {LDS_FLAG}")
        e(f"v_mov_b32 v{V_ZERO}, 0")
        e(f"s_mov_b32 s{S_SPIN}, {a.spin}")
        if a.stamps:
            e(f"s_mov_b32 s{S_T+9}, 0")
        e(f"s_cmp_lg_u32 s{S_WAVE}, 0")
        e("s_cbranch_scc1 L_notloader")

        c("================= loader wave =================")
        e("s_setprio 3")
        self.dma_offsets(V_LD, V_LD + 8)
        c("tile t of split s = rows of 16 KiB block 4*((t + 13*pair) & 63) + s of the pair")
        nrec = (4 << 20) - 49152
        e(f"s_mul_i32 s{S_TB}, s{S_PAIR}, {a.rmul}")
        e(f"s_and_b32 s{S_OFF}, s{S_TB}, 63")
        e(f"s_lshl_b32 s{S_OFF}, s{S_OFF}, 16")
        e(f"s_add_u32 s{S_OFF2}, s{S_OFF}, 8192")
        e(f"s_lshl_b32 s{S_T}, s{S_PAIR}, 22")
        e(f"s_lshl_b32 s{S_T+1}, s{S_SPLIT}, 14")
        e(f"s_add_u32 s{S_T}, s{S_T}, s{S_T+1}")
        e(f"s_mov_b32 s{S_SLOT}, 0")
        e("s_waitcnt lgkmcnt(0)")
        self.srd_off(SRD_K, 6, 7, S_T, nrec)
        soffs = [f"s{S_OFF}", f"s{S_OFF2}"]

        def m0_slot(q):
            e(f"s_add_u32 m0, s{S_SLOT}, {LDS_RING + q*4096}")

        def m0_abs(base):
            def f(q):
                e(f"s_mov_b32 m0, {base + q*4096}")
            return f

        def group(kind, g):
            for p in range(g * Gp, (g + 1) * Gp):
                if kind == "K":
                    self.piece("K", p, SRD_K, soffs, m0_slot, V_LD, a.polk)
                else:
                    self.piece("V", p, SRD_V, soffs, m0_slot, V_LD + 8, a.polv)

        def publish(dyn=False):
            if not dyn:
                e(f"s_waitcnt vmcnt({(R-1)*Gp})")
                e(f"s_sub_i32 s{S_T+2}, s{S_ISS}, {R-1}")
            else:
                lw, ln, ld = self.newlab("ww"), self.newlab("wn"), self.newlab("wd")
                e(f"s_cmp_eq_u32 s{S_MODE}, 1")
                e(f"s_cbranch_scc1 {lw}")
                e(f"s_cmp_eq_u32 s{S_MODE}, 2")
                e(f"s_cbranch_scc1 {ln}")
                e(f"s_waitcnt vmcnt({(R-1)*Gp})")
                e(f"s_sub_i32 s{S_T+2}, s{S_ISS}, {R-1}")
                e(f"s_branch {ld}")
                lab(lw)
                e(f"s_waitcnt vmcnt({(a.rb-1)*Gp})")
                e(f"s_sub_i32 s{S_T+2}, s{S_ISS}, {a.rb-1}")
                e(f"s_branch {ld}")
                lab(ln)
                e(f"s_waitcnt vmcnt({(a.rn-1)*Gp})")
                e(f"s_sub_i32 s{S_T+2}, s{S_ISS}, {a.rn-1}")
                lab(ld)
            e(f"s_max_i32 s{S_LND}, s{S_T+2}, s{S_LND}")
            e(f"v_mov_b32 v{V_F}, s{S_LND}")
            e(f"ds_write_b32 v{V_FLAGA}, v{V_F}")
            e(f"s_add_u32 s{S_ISS}, s{S_ISS}, 1")

        c("unit 0 goes out immediately")
        for g in range(GPU):
            group("K", g)
        self.srd_off(SRD_V, 8, 9, S_T, nrec)
        if a.stamps:
            self.srd(SRD_WS, 20, 21, 64 << 20)
        e(f"v_mov_b32 v{V_ALPHA}, 0")
        e(f"ds_write_b64 v{V_FLAGA}, v[{V_ALPHA}:{V_ALPHA+1}]")
        e(f"ds_write_b64 v{V_FLAGA}, v[{V_ALPHA}:{V_ALPHA+1}] offset:8")
        e(f"ds_write_b32 v{V_FLAGA}, v{V_ZERO} offset:40")
        e(f"s_mov_b32 s{S_ISS}, {GPU}")
        e(f"s_mov_b32 s{S_LND}, 0")
        e(f"s_mov_b32 s{S_MODE}, 0")
        e(f"s_mov_b32 s{S_U}, 1")
        e(f"s_mov_b32 s{S_J}, 1")
        e("s_waitcnt lgkmcnt(0)")
        e("s_barrier")

        def ld_phase(kind):
            lab(f"L_ld_{kind}")
            e(f"s_add_u32 s{S_OFF}, s{S_TB}, s{S_J}")
            e(f"s_and_b32 s{S_OFF}, s{S_OFF}, 63")
            e(f"s_lshl_b32 s{S_OFF}, s{S_OFF}, 16")
            e(f"s_add_u32 s{S_OFF2}, s{S_OFF}, 8192")
            self.slot8(kind)
            c("slot free?  every wave has released all units below u-2 (u-5 where the ring has 6 slots)")
            if kind == "K":
                e(f"s_cmp_lt_u32 s{S_U}, {gen6.N1}")
            else:
                e(f"s_cmp_ge_u32 s{S_U}, {U6 + 3}")
            e(f"s_cselect_b32 s{S_T+4}, 5, 2")

            def free_estimate():
                e(f"ds_read_b128 v[{V_S}:{V_S+3}], v{V_FLAGA} offset:16")
                e(f"ds_read_b128 v[{V_S+4}:{V_S+7}], v{V_FLAGA} offset:32")
                e("s_waitcnt lgkmcnt(0)")
                e(f"v_min3_u32 v{V_S}, v{V_S}, v{V_S+1}, v{V_S+2}")
                e(f"v_min3_u32 v{V_S+3}, v{V_S+3}, v{V_S+4}, v{V_S+5}")
                e(f"v_min_u32 v{V_S}, v{V_S}, v{V_S+3}")
                e("s_nop 0")
                e(f"v_readfirstlane_b32 s{S_T}, v{V_S}")
                e("s_nop 0")
                e(f"s_add_u32 s{S_T}, s{S_T}, s{S_T+4}")
            free_estimate()
            if kind == "V":
                c("window of this unit: n > 0: wide for n units from U6+3, n < 0: narrow for -n units")
                e(f"v_readfirstlane_b32 s{S_T+5}, v{V_S+6}")
                e("s_nop 0")
                e(f"s_cmp_gt_i32 s{S_T+5}, 0")
                e(f"s_cselect_b32 s{S_MODE}, 1, 2")
                e(f"s_abs_i32 s{S_T+5}, s{S_T+5}")
                e(f"s_add_u32 s{S_T+5}, s{S_T+5}, {U6 + 3}")
                e(f"s_cmp_lt_u32 s{S_U}, s{S_T+5}")
                e(f"s_cselect_b32 s{S_MODE}, s{S_MODE}, 0")
                e(f"s_cmp_ge_u32 s{S_U}, {U6 + 3}")
                e(f"s_cselect_b32 s{S_MODE}, s{S_MODE}, 0")
            publish(kind == "V")
            lab(f"L_ld_chk{kind}")
            e(f"s_cmp_ge_u32 s{S_T}, s{S_U}")
            e(f"s_cbranch_scc1 L_ld_free{kind}")
            if a.stamps:
                e(f"s_mov_b32 s{S_T+3}, 1")
                e(f"s_cmp_ge_u32 s{S_U}, 8")
                e(f"s_cselect_b32 s{S_T+3}, 0x100, s{S_T+3}")
                e(f"s_cmp_ge_u32 s{S_U}, 28")
                e(f"s_cselect_b32 s{S_T+3}, 0x10000, s{S_T+3}")
                e(f"s_cmp_ge_u32 s{S_U}, 62")
                e(f"s_cselect_b32 s{S_T+3}, 0x1000000, s{S_T+3}")
                e(f"s_add_u32 s{S_T+9}, s{S_T+9}, s{S_T+3}")
            self.spin_guard()
            free_estimate()
            e(f"s_branch L_ld_chk{kind}")
            lab(f"L_ld_free{kind}")
            if a.stamps:
                su = [int(v) for v in a.su.split(",")]
                for ti, si in ((su[0], 1), (su[1], 2), (su[2], 4)):
                    l2 = self.newlab("pst")
                    e(f"s_cmp_lg_u32 s{S_U}, {ti}")
                    e(f"s_cbranch_scc1 {l2}")
                    self.stamp(si)
                    lab(l2)
            group(kind, 0)
            for g in range(1, GPU):
                publish(kind == "V")
                group(kind, g)
            e(f"s_add_u32 s{S_U}, s{S_U}, 1")
            e(f"s_add_u32 s{S_J}, s{S_J}, 1")
            e(f"s_cmp_lt_u32 s{S_J}, {NT}")
            e(f"s_cbranch_scc1 L_ld_{kind}")
            e(f"s_mov_b32 s{S_J}, 0")

        assert R - 1 <= 2 * GPU and a.rb - 1 <= 2 * GPU and a.rb * Gp <= 63
        ld_phase("K")
        ld_phase("V")
        c("drain")
        for r in range(a.rb - 1, -1, -1):
            e(f"s_waitcnt vmcnt({r*Gp})")
            e(f"s_max_i32 s{S_LND}, s{S_LND}, {NU*GPU - r}")
            e(f"v_mov_b32 v{V_F}, s{S_LND}")
            e(f"ds_write_b32 v{V_FLAGA}, v{V_F}")
        self.stamp(3)
        self.stamp_store7("0")
        e("s_endpgm")

        lab("L_notloader")
        e(f"v_lshlrev_b32 v{V_A16}, 4, v{V_LANE}")
        e(f"v_add_u32 v{V_PB}, {LDS_P}, v{V_A16}")
        e(f"v_lshlrev_b32 v{V_AB}, 2, v{T+2}")
        e(f"v_add_u32 v{V_AB}, {LDS_AL}, v{V_AB}")
        e(f"s_mov_b32 s{S_LANDED}, 0")
        e(f"s_cmp_ge_u32 s{S_WAVE}, 3")
        e("s_cbranch_scc1 L_pvwave")

        c("================= producer waves =================")
        e(f"s_sub_u32 s{S_CI}, s{S_WAVE}, 1")
        e(f"s_lshl_b32 s{S_T}, s{S_CI}, 2")
        e(f"s_add_u32 s{S_T+1}, s{S_T}, {LDS_FLAG + 32}")
        e(f"v_mov_b32 v{V_RELA}, s{S_T+1}")
        e(f"s_add_u32 s{S_T+1}, s{S_T}, {LDS_FLAG + 8}")
        e(f"v_mov_b32 v{V_PDA}, s{S_T+1}")
        c("producer p never reads units below p")
        self.release(S_CI)
        e(f"v_and_b32 v{T+3}, 15, v{T+2}")
        e(f"v_xor_b32 v{T+3}, v{T+3}, v{T+1}")
        e(f"v_lshlrev_b32 v{T+3}, 4, v{T+3}")
        e(f"v_lshl_or_b32 v{V_BK}, v{T+2}, 9, v{T+3}")
        e(f"s_mov_b32 s{S_C}, 0x{f32bits(CSCALE):08x}")
        e(f"s_mov_b32 s{S_CM}, 0x{f32bits(CMASK):08x}")
        e(f"v_mov_b32 v{V_M}, 0xff800000")
        e(f"v_mov_b32 v{V_L}, 0")
        c("tree duty: producer 0 of split 3")
        e(f"s_xor_b32 s{S_T+8}, s{S_SPLIT}, 3")
        e(f"s_or_b32 s{S_T+8}, s{S_T+8}, s{S_CI}")
        e("s_waitcnt lgkmcnt(0)")
        e(f"s_cmp_lg_u32 s{S_T+8}, 0")
        e("s_cbranch_scc1 L_p_nomask")
        self.srd(SRD_MSK, 14, 15, 4096)
        e(f"v_and_b32 v{T+6}, 15, v{V_LANE}")
        e(f"v_lshlrev_b32 v{T+6}, 5, v{T+6}")
        e(f"v_lshl_or_b32 v{T+6}, v{T+1}, 3, v{T+6}")
        e(f"s_lshr_b32 s{S_T+4}, s{S_PAIR}, 3")
        e(f"s_lshl_b32 s{S_T+4}, s{S_T+4}, 9")
        e(f"buffer_load_dwordx2 v[{V_MSK}:{V_MSK+1}], v{T+6}, s[{SRD_MSK}:{SRD_MSK+3}], s{S_T+4} offen")
        e(f"buffer_load_dwordx2 v[{V_MSK+2}:{V_MSK+3}], v{T+6}, s[{SRD_MSK}:{SRD_MSK+3}], s{S_T+4} offen offset:16")
        lab("L_p_nomask")
        e("s_barrier")
        self.k_addrs(str(LDS_Q))
        self.poll("4", sreg=S_NEED, off=4, precheck=False, sleep=1)
        self.read_k(V_Q)
        e(f"s_cmp_lg_u32 s{S_T+8}, 0")
        e("s_cbranch_scc1 L_p_notree")
        c("---- tree tile (16 keys, masked): P goes to the start of the tree staging area ----")
        self.k_addrs(str(LDS_TREE))
        self.read_k()
        e("s_waitcnt vmcnt(0)")
        for i in range(4):
            e(f"v_lshlrev_b32 v{V_MT+2*i}, 16, v{V_MSK+i}")
            e(f"v_and_b32 v{V_MT+2*i+1}, 0xffff0000, v{V_MSK+i}")
        for i in range(8):
            e(f"v_sub_f32 v{V_MT+i}, 1.0, v{V_MT+i}")
        for i in range(8):
            e(f"v_mul_f32 v{V_MT+i}, s{S_CM}, v{V_MT+i}")
        e("s_waitcnt lgkmcnt(0)")
        for kk in range(16):
            self.qk_mfma(kk)
        e("s_nop 15")
        for i in range(8):
            e(f"v_fma_f32 v{S+i}, v{S+i}, s{S_C}, v{V_MT+i}")
        e(f"v_max3_f32 v{T}, v{S}, v{S+1}, v{S+2}")
        e(f"v_max3_f32 v{T+1}, v{S+3}, v{S+4}, v{S+5}")
        e(f"v_max3_f32 v{T}, v{T}, v{S+6}, v{S+7}")
        e(f"v_max_f32 v{T}, v{T}, v{T+1}")
        self.xhalf("v_max_f32", V_M, T, T + 1)
        for i in range(8):
            e(f"v_sub_f32 v{S+i}, v{S+i}, v{V_M}")
        for i in range(8):
            e(f"v_exp_f32 v{S+i}, v{S+i}")
        e("s_nop 0")
        e(f"v_add_f32 v{V_L}, v{S}, v{S+1}")
        for i in range(2, 8):
            e(f"v_add_f32 v{V_L}, v{V_L}, v{S+i}")
        for i in range(4):
            e(f"v_cvt_pk_bf16_f32 v{V_P+i}, v{S+2*i}, v{S+2*i+1}")
        e(f"ds_write_b128 v{V_PB}, v[{V_P}:{V_P+3}] offset:{LDS_TREE - LDS_P}")
        lab("L_p_notree")
        c("count 1 = start-up work (tree tile, if any) done")
        e(f"s_mov_b32 s{S_PCNT}, 1")
        e(f"v_mov_b32 v{V_TK}, 1")
        e("s_waitcnt lgkmcnt(0)")
        e(f"ds_write_b32 v{V_PDA}, v{V_TK}")
        e(f"s_mov_b32 s{S_J}, s{S_CI}")
        self.L.append(".p2align 6")
        lab("L_kloop")
        e(f"s_mov_b32 s{S_U}, s{S_J}")
        self.slot_of_u()
        self.k_addrs(f"s{S_SLOT}")
        self.p_addrs7()
        e(f"s_add_u32 s{S_NEED}, s{S_U}, 1")
        e(f"s_mul_i32 s{S_NEED}, s{S_NEED}, {GPU}")
        e(f"s_add_u32 s{S_T+2}, s{S_U}, 2")
        e(f"s_cmp_ge_u32 s{S_T+2}, {NT}")
        e(f"s_cselect_b32 s{S_T+2}, {NU}, s{S_T+2}")
        self.poll(f"s{S_NEED}", sleep=1)
        self.read_k()
        e(f"v_mov_b32 v{V_F}, s{S_T+2}")
        for kk in range(16):
            if kk < 8:
                e(f"s_waitcnt lgkmcnt({15 - kk})")
            elif kk == 8:
                e("s_waitcnt lgkmcnt(0)")
                e(f"ds_write_b32 v{V_RELA}, v{V_F}")
            self.qk_mfma(kk)
        e(f"s_add_u32 s{S_PCNT}, s{S_PCNT}, 1")
        e(f"v_mov_b32 v{V_TK}, s{S_PCNT}")
        e("s_nop 15")
        self.softmax()
        e("s_waitcnt lgkmcnt(0)")
        e(f"ds_write_b32 v{V_PDA}, v{V_TK}")
        e(f"s_add_u32 s{S_J}, s{S_J}, 2")
        e(f"s_cmp_lt_u32 s{S_J}, {NT}")
        e("s_cbranch_scc1 L_kloop")
        c("publish (m, l) of this producer")
        e(f"v_mov_b32 v{T+2}, v{V_M}")
        e(f"v_mov_b32 v{T}, v{V_L}")
        self.xhalf("v_add_f32", T + 3, T, T + 1)
        e(f"s_lshl_b32 s{S_T}, s{S_CI}, 8")
        e(f"s_add_u32 s{S_T}, s{S_T}, {LDS_STAT}")
        e(f"v_and_b32 v{T}, 31, v{V_LANE}")
        e(f"v_lshlrev_b32 v{T}, 3, v{T}")
        e(f"v_add_u32 v{T}, s{S_T}, v{T}")
        e(f"ds_write_b64 v{T}, v[{T+2}:{T+3}]")
        e(f"v_mov_b32 v{V_TK}, {NT//2 + 2}")
        e("s_waitcnt lgkmcnt(0)")
        e(f"ds_write_b32 v{V_PDA}, v{V_TK}")
        e("s_waitcnt lgkmcnt(0)")
        e("s_endpgm")

        lab("L_pvwave")
        c("================= PV waves =================")
        e(f"s_sub_u32 s{S_CI}, s{S_WAVE}, 3")
        e(f"s_lshl_b32 s{S_T}, s{S_CI}, 2")
        e(f"s_add_u32 s{S_T+1}, s{S_T}, {LDS_FLAG + 16}")
        e(f"v_mov_b32 v{V_RELA}, s{S_T+1}")
        self.release_const(GATE1)
        c("stage Q (and the tree K/V of split 3) into LDS")
        self.dma_offsets(V_PK, V_PK + 8)
        e(f"s_lshl_b32 s{S_T+1}, s{S_PAIR}, 14")
        e(f"s_lshl_b32 s{S_T+2}, s{S_PAIR}, 13")
        e(f"s_and_b32 s{S_T+3}, s{S_CI}, 1")
        e(f"s_mul_i32 s{S_T+3}, s{S_T+3}, {128 | 4096}")
        for i in range(4):
            e(f"v_xor_b32 v{V_PK+12+i}, s{S_T+3}, v{V_PK+i}")
        e(f"s_lshr_b32 s{S_T+4}, s{S_CI}, 1")
        e(f"s_lshl_b32 s{S_T+4}, s{S_T+4}, 13")
        e(f"s_lshl_b32 s{S_T+5}, s{S_CI}, 12")
        e("s_waitcnt lgkmcnt(0)")
        self.srd_off(SRD_Q, 4, 5, S_T + 1, 16384)
        e(f"s_add_u32 m0, s{S_T+5}, {LDS_Q}")
        e("s_nop 0")
        for i in range(4):
            e(f"buffer_load_dwordx4 v{V_PK+12+i}, s[{SRD_Q}:{SRD_Q+3}], s{S_T+4} offen offset:{i*1024}{a.polq} lds")
        e(f"s_cmp_lg_u32 s{S_SPLIT}, 3")
        e("s_cbranch_scc1 L_c_notree0")
        e(f"s_cmp_lg_u32 s{S_CI}, 2")
        e("s_cbranch_scc1 L_c_tk_done")
        self.srd_off(SRD_TK, 10, 11, S_T + 2, 8192)
        for j in range(8):
            self.piece("K", j, SRD_TK, ["0"], m0_abs(LDS_TREE), V_PK, a.polq)
        lab("L_c_tk_done")
        e(f"s_cmp_lg_u32 s{S_CI}, 3")
        e("s_cbranch_scc1 L_c_notree0")
        self.srd_off(SRD_TK, 12, 13, S_T + 2, 8192)
        for j in range(8):
            self.piece("V", j, SRD_TK, ["0"], m0_abs(LDS_TREE + 8192), V_PK + 8, a.polq)
        lab("L_c_notree0")
        e("s_barrier")
        self.stamp(1)
        self.stamp(2)
        self.srd_off(SRD_OUT, 16, 17, S_T + 1, 16384)
        self.srd(SRD_WS, 20, 21, 64 << 20)
        self.srd(SRD_DBG, 18, 19, 256)
        e(f"v_bfe_u32 v{T+3}, v{V_LANE}, 2, 2")
        e(f"v_lshl_add_u32 v{T+4}, v{T+1}, 2, v{T+3}")
        e(f"v_lshlrev_b32 v{T+4}, 9, v{T+4}")
        e(f"v_lshl_or_b32 v{T+4}, v{T+3}, 6, v{T+4}")
        e(f"v_bfe_u32 v{T+3}, v{V_LANE}, 4, 1")
        e(f"v_lshl_or_b32 v{T+4}, v{T+3}, 5, v{T+4}")
        e(f"v_and_b32 v{T+3}, 3, v{V_LANE}")
        e(f"v_lshl_or_b32 v{T+4}, v{T+3}, 3, v{T+4}")
        c("d-tiles 2c, 2c+1: xor (dt&3)<<6, + (dt>>2)*256")
        e(f"s_and_b32 s{S_T}, s{S_CI}, 1")
        e(f"s_lshl_b32 s{S_T}, s{S_T}, 7")
        e(f"s_lshr_b32 s{S_T+1}, s{S_CI}, 1")
        e(f"s_lshl_b32 s{S_T+1}, s{S_T+1}, 8")
        e(f"s_or_b32 s{S_T}, s{S_T}, s{S_T+1}")
        e(f"v_xor_b32 v{V_BV}, s{S_T}, v{T+4}")
        e(f"v_lshlrev_b32 v{V_A8}, 3, v{V_LANE}")
        c("output address: q = l&31, d = 64*c + 8*g8 + 4*h")
        e(f"v_lshlrev_b32 v{V_AOUT}, 9, v{T+2}")
        e(f"v_lshl_or_b32 v{V_AOUT}, v{T+1}, 3, v{V_AOUT}")
        e(f"s_mov_b32 s{S_PD0}, 0")
        e(f"s_mov_b32 s{S_PD1}, 0")
        e(f"s_add_u32 s{S_T}, s{S_SPLIT}, 8")
        e(f"s_lshl_b32 s{S_GOT}, 1, s{S_T}")
        e(f"s_mov_b32 s{S_TKT}, 0")
        e(f"s_lshl_b32 s{S_WSB}, s{S_PAIR}, {WS_PAIR_SH}")
        e(f"s_lshl_b32 s{S_CTR}, s{S_CI}, 8")
        e(f"s_add_u32 s{S_CTR}, s{S_CTR}, s{S_WSB}")
        e(f"s_add_u32 s{S_CTR}, s{S_CTR}, {WS_CTR}")
        for i in range(64):
            e(f"v_mov_b32 v{V_O+i}, 0")
        e(f"v_mov_b32 v{V_TK}, 1")
        c("own staged pieces landed -> count")
        e("s_waitcnt vmcnt(0)")
        e("s_mov_b64 exec, 1")
        e(f"ds_add_u32 v{V_FLAGA}, v{V_TK} offset:4")
        e("s_mov_b64 exec, -1")
        e(f"s_cmp_lg_u32 s{S_SPLIT}, 3")
        e("s_cbranch_scc1 L_v_notree")
        c("---- tree tile: O set 0 = V_tree^T P_tree^T (P ready implies all staging has landed) ----")
        self.poll("1", sreg=S_PD0, off=8, precheck=False, sleep=2)
        e(f"ds_read_b128 v[{V_P}:{V_P+3}], v{V_PB} offset:{LDS_TREE - LDS_P}")
        self.v_addrs(str(LDS_TREE + 8192))
        self.read_v([0])
        e("s_waitcnt lgkmcnt(0)")
        self.pv([0], 0, first=True)
        lab("L_v_notree")
        self.release_const(GATE2)
        c("counter initialisation: PV wave 2 of workgroup 0 claims d_debug[0] and zeroes all merge counters")
        e(f"s_xor_b32 s{S_T}, s{S_CI}, 2")
        e(f"s_or_b32 s{S_T}, s{S_T}, s2")
        e(f"s_cmp_lg_u32 s{S_T}, {9999 if a.nowg0 else 0}")
        e("s_cbranch_scc1 L_park")
        self.claim_and_init("L_park", "L_park")
        lab("L_park")
        c("---- park the first 12 P tiles in registers ----")
        self.poll(str(NPK // 2 + 1), sreg=S_PD0, off=8, sleep=4)
        self.poll(str(NPK // 2 + 1), sreg=S_PD1, off=12, sleep=4)
        e(f"v_add_u32 v{V_PA}, {(NPS - NPK) * 2048}, v{V_PB}")
        for j in range(NPK):
            e(f"ds_read_b128 v[{V_PK+8*j}:{V_PK+8*j+3}], v{V_PA} offset:{j*2048}")
            e(f"ds_read_b128 v[{V_PK+8*j+4}:{V_PK+8*j+7}], v{V_PA} offset:{j*2048 + 1024}")
            e(f"ds_read_b32 v{V_PKA+j}, v{V_AB} offset:{(NPS - NPK + j) * 128}")
        e("s_waitcnt lgkmcnt(0)")
        self.release_const(NT)
        c("PV wave 2 makes sure the merge counters have been zeroed before the V phase")
        c("(the ring dependency then covers every other wave of the workgroup)")
        e(f"s_cmp_lg_u32 s{S_CI}, 2")
        e("s_cbranch_scc1 L_vphase")
        e(f"s_mov_b32 s{S_NEED}, {32 * GPU}")
        self.poll(f"s{S_NEED}", sleep=8)
        e("s_mov_b64 exec, 1")
        e(f"buffer_load_dword v{V_TK}, v{V_ZERO}, s[{SRD_DBG}:{SRD_DBG+3}], 0 offen sc1")
        e("s_mov_b64 exec, -1")
        e("s_waitcnt vmcnt(0)")
        e(f"v_readfirstlane_b32 s{S_T}, v{V_TK}")
        e("s_nop 0")
        e(f"s_cmp_lg_u32 s{S_T}, 3")
        e("s_cbranch_scc1 L_check_loop")

        lab("L_vphase")
        c("idle until the K phase is nearly over")
        e(f"s_mov_b32 s{S_NEED}, {(NT - 2) * GPU}")
        self.poll(f"s{S_NEED}", sleep=8)
        c("---- V phase, parked tiles ----")
        for j in range(NPK):
            u = NT + j
            st = j & 1
            self.v_addrs(str((u % 3) * 16384))
            e(f"v_mov_b32 v{V_ALPHA}, v{V_PKA+j}")
            for i in range(0, 32, 2):
                self.pkmul(V_O + 32 * st + i, V_ALPHA)
            self.poll(str((u + 1) * GPU), sleep=1)
            self.read_v([0, 1])
            e(f"v_mov_b32 v{V_F}, {u + 1}")
            e("s_waitcnt lgkmcnt(0)")
            e(f"ds_write_b32 v{V_RELA}, v{V_F}")
            self.pv7(st, V_PK + 8 * j)
        c("---- V phase, tiles from LDS ----")
        e(f"s_mov_b32 s{S_J}, {NPK}")
        self.L.append(".p2align 6")
        lab("L_vloop")
        for st in range(2):
            spd = S_PD0 if st == 0 else S_PD1
            e(f"s_add_u32 s{S_U}, s{S_J}, {NT}")
            self.slot8("V")
            self.v_addrs(f"s{S_SLOT}")
            self.p_addrs7()
            e(f"s_lshr_b32 s{S_NEED}, s{S_J}, 1")
            e(f"s_add_u32 s{S_NEED}, s{S_NEED}, 2")
            self.poll(f"s{S_NEED}", sreg=spd, off=8 + 4 * st, sleep=2)
            e(f"ds_read_b32 v{V_ALPHA}, v{V_AA}")
            e(f"ds_read_b128 v[{V_P}:{V_P+3}], v{V_PA}")
            e(f"ds_read_b128 v[{V_P+4}:{V_P+7}], v{V_PA} offset:1024")
            if st == 0:
                e(f"s_cmp_ge_u32 s{S_U}, {NT + a.c1}")
                e("s_cbranch_scc1 L_hook")
                lab("L_hook_done")
            e(f"s_add_u32 s{S_T+2}, s{S_U}, 1")
            e(f"s_mul_i32 s{S_NEED}, s{S_T+2}, {GPU}")
            e("s_waitcnt lgkmcnt(0)")
            for i in range(0, 32, 2):
                self.pkmul(V_O + 32 * st + i, V_ALPHA)
            if st == 1:
                e(f"s_cmp_eq_u32 s{S_U}, {NU - 1}")
                e("s_cbranch_scc1 L_scale0")
                lab("L_scale0_done")
            self.poll(f"s{S_NEED}", sleep=1)
            self.read_v([0, 1])
            e(f"v_mov_b32 v{V_F}, s{S_T+2}")
            e(f"s_add_u32 s{S_J}, s{S_J}, 1")
            e("s_waitcnt lgkmcnt(0)")
            e(f"ds_write_b32 v{V_RELA}, v{V_F}")
            self.pv7(st, V_P)
        e(f"s_cmp_lt_u32 s{S_J}, {NT}")
        e("s_cbranch_scc1 L_vloop")

        self.stamp(3)
        A8, A16, AOUT = V_A8, V_A16, V_AOUT

        def issue_loads(sval):
            for i in range(1, 4):
                skip = self.newlab("nold")
                e(f"s_xor_b32 s{S_T+1}, s{S_SPLIT}, {i}")
                e(f"s_add_u32 s{S_T+3}, s{S_T+1}, 8")
                e(f"s_lshl_b32 s{S_T+3}, 1, s{S_T+3}")
                e(f"s_andn2_b32 s{S_T+5}, s{sval}, s{S_GOT}")
                e(f"s_and_b32 s{S_T+5}, s{S_T+5}, s{S_T+3}")
                e(f"s_cbranch_scc0 {skip}")
                e(f"s_or_b32 s{S_GOT}, s{S_GOT}, s{S_T+3}")
                e(f"s_lshl_b32 s{S_T+1}, s{S_T+1}, 2")
                e(f"s_add_u32 s{S_T+1}, s{S_T+1}, s{S_CI}")
                e(f"s_lshl_b32 s{S_T+3}, s{S_T+1}, 9")
                e(f"s_add_u32 s{S_T+3}, s{S_T+3}, s{S_WSB}")
                e(f"s_add_u32 s{S_T+3}, s{S_T+3}, {WS_STAT}")
                e(f"buffer_load_dwordx2 v[{S+2*i}:{S+2*i+1}], v{A8}, s[{SRD_WS}:{SRD_WS+3}], s{S_T+3} offen sc1")
                e(f"s_lshl_b32 s{S_T+1}, s{S_T+1}, 13")
                e(f"s_add_u32 s{S_T+1}, s{S_T+1}, s{S_WSB}")
                e(f"s_add_u32 s{S_T+3}, s{S_T+1}, 4096")
                for rq in range(8):
                    so = S_T + 1 if rq < 4 else S_T + 3
                    r = V_X + 32 * (i - 1) + 4 * rq
                    e(f"buffer_load_dwordx4 v[{r}:{r+3}], v{A16}, s[{SRD_WS}:{SRD_WS+3}], s{so} offen offset:{(rq & 3)*1024} sc1")
                lab(skip)

        def refresh(l_done):
            e("s_waitcnt vmcnt(0)")
            e(f"v_readfirstlane_b32 s{S_TKT}, v{V_TK}")
            e("s_nop 0")
            issue_loads(S_TKT)
            e(f"s_cmp_eq_u32 s{S_GOT}, 0xf00")
            e(f"s_cbranch_scc1 {l_done}")
            e("s_mov_b64 exec, 1")
            e(f"buffer_load_dword v{V_TK}, v{V_ZERO}, s[{SRD_WS}:{SRD_WS+3}], s{S_CTR} offen sc1")
            e("s_mov_b64 exec, -1")

        c("---- merge the two accumulator sets (set 0 was scaled while waiting for the last V tile) ----")
        e("s_nop 7")
        e("s_nop 5")
        for i in range(0, 32, 2):
            e(f"v_pk_fma_f32 v[{V_O+i}:{V_O+i+1}], v[{V_O+32+i}:{V_O+33+i}], v[{V_F1}:{V_F1+1}], v[{V_O+i}:{V_O+i+1}] op_sel_hi:[1,0,1]")
        c("---- merge the 4 splits ----")
        e(f"s_and_b32 s{S_T+6}, s{S_TKT}, 0xff")
        e(f"s_cmp_ge_u32 s{S_T+6}, 3")
        e("s_cbranch_scc1 L_last")
        c("not last: publish partial (write-through), then set the done bit")
        e(f"s_lshl_b32 s{S_T}, s{S_SPLIT}, 2")
        e(f"s_add_u32 s{S_T}, s{S_T}, s{S_CI}")
        e(f"s_lshl_b32 s{S_T+1}, s{S_T}, 13")
        e(f"s_add_u32 s{S_T+1}, s{S_T+1}, s{S_WSB}")
        e(f"s_add_u32 s{S_T+2}, s{S_T+1}, 4096")
        e(f"s_lshl_b32 s{S_T+3}, s{S_T}, 9")
        e(f"s_add_u32 s{S_T+3}, s{S_T+3}, s{S_WSB}")
        e(f"s_add_u32 s{S_T+3}, s{S_T+3}, {WS_STAT}")
        e(f"buffer_store_dwordx2 v[{V_M}:{V_M+1}], v{A8}, s[{SRD_WS}:{SRD_WS+3}], s{S_T+3} offen sc1")
        for rq in range(8):
            so = S_T + 1 + (rq >> 2)
            e(f"buffer_store_dwordx4 v[{V_O+4*rq}:{V_O+4*rq+3}], v{A16}, s[{SRD_WS}:{SRD_WS+3}], s{so} offen offset:{(rq & 3)*1024} sc1")
        e(f"v_mov_b32 v{V_TK}, s{S_GOT}")
        e("s_waitcnt vmcnt(0)")
        e("s_mov_b64 exec, 1")
        e(f"buffer_atomic_or v{V_TK}, v{V_ZERO}, s[{SRD_WS}:{SRD_WS+3}], s{S_CTR} offen")
        e("s_mov_b64 exec, -1")
        if a.stamps:
            self.stamp(4)
            e(f"s_mov_b32 s{S_T+9}, 0")
            e("s_branch L_fin")
        else:
            e("s_endpgm")

        c("last arriver: fetch each partial as soon as its done bit shows up")
        lab("L_last")
        e(f"s_cmp_eq_u32 s{S_GOT}, 0xf00")
        e("s_cbranch_scc1 L_combine")
        c("(a refresh of the counter is already in flight from the last hook)")
        lab("L_wait_done")
        refresh("L_combine")
        self.spin_guard()
        e("s_branch L_wait_done")
        lab("L_combine")
        self.stamp(4)
        e(f"v_mov_b32 v{S}, v{V_M}")
        e(f"v_mov_b32 v{S+1}, v{V_L}")
        e(f"s_lshl_b32 s{S_T+8}, s{S_CI}, 7")
        c("every stats load is older than the 8 youngest loads")
        e("s_waitcnt vmcnt(8)")
        e(f"v_max_f32 v{T}, v{S}, v{S+2}")
        e(f"v_max3_f32 v{V_M}, v{T}, v{S+4}, v{S+6}")
        F = [S + 8, S + 10, S + 12, S + 14]
        for i in range(4):
            e(f"v_sub_f32 v{F[i]}, v{S+2*i}, v{V_M}")
        for i in range(4):
            e(f"v_exp_f32 v{F[i]}, v{F[i]}")
        e("s_nop 0")
        for i in range(4):
            e(f"v_mul_f32 v{F[i]+1}, v{F[i]}, v{S+2*i+1}")
        e(f"v_add_f32 v{T}, v{F[0]+1}, v{F[1]+1}")
        e(f"v_add_f32 v{T+1}, v{F[2]+1}, v{F[3]+1}")
        e(f"v_add_f32 v{V_L}, v{T}, v{T+1}")
        e(f"v_rcp_f32 v{V_ALPHA}, v{V_L}")
        e("s_nop 0")
        for i in range(4):
            e(f"v_mul_f32 v{F[i]}, v{F[i]}, v{V_ALPHA}")
        src = [V_O, V_X, V_X + 32, V_X + 64]
        for i in range(4):
            if i == 1:
                e("s_waitcnt vmcnt(0)")
            for r in range(0, 32, 2):
                self.pkmul(src[i] + r, F[i])
            if i == 1:
                for r in range(0, 32, 2):
                    self.pkadd(V_O + r, V_O + r, src[1] + r)
        for g8 in range(8):
            for r in (4 * g8, 4 * g8 + 2):
                self.pkadd(src[2] + r, src[2] + r, src[3] + r)
            for r in (4 * g8, 4 * g8 + 2):
                self.pkadd(V_O + r, V_O + r, src[2] + r)
            rr = V_X + 2 * g8
            e(f"v_cvt_pk_bf16_f32 v{rr}, v{V_O+4*g8}, v{V_O+4*g8+1}")
            e(f"v_cvt_pk_bf16_f32 v{rr+1}, v{V_O+4*g8+2}, v{V_O+4*g8+3}")
            e(f"buffer_store_dwordx2 v[{rr}:{rr+1}], v{AOUT}, s[{SRD_OUT}:{SRD_OUT+3}], s{S_T+8} offen offset:{g8*16}")
        c("nobody touches this counter any more: leave it zero (every launch re-zeroes it anyway)")
        e("s_mov_b64 exec, 1")
        e(f"buffer_store_dword v{V_ZERO}, v{V_ZERO}, s[{SRD_WS}:{SRD_WS+3}], s{S_CTR} offen sc1")
        e("s_mov_b64 exec, -1")
        if a.stamps:
            e("s_waitcnt vmcnt(0)")
            e(f"s_mov_b32 s{S_T+9}, 1")
            lab("L_fin")
            e(f"s_add_u32 s{S_T+7}, s{S_CI}, 1")
            self.stamp_store7(f"s{S_T+7}")
        lab("L_end")
        e("s_endpgm")

        c("---- end-of-stream hooks, run at units NU-8, NU-6, NU-4, NU-2 (out of line) ----")
        lab("L_hook")
        e(f"s_cmp_lt_u32 s{S_U}, {NU - 8}")
        e("s_cbranch_scc1 L_bal")
        e(f"s_cmp_lg_u32 s{S_U}, {NU - 8}")
        e("s_cbranch_scc1 L_hook2")
        c("NU-8: final (m, l) of both producers -> merge factors, M, L")
        self.poll(str(NT // 2 + 2), sreg=S_PD0, off=8)
        self.poll(str(NT // 2 + 2), sreg=S_PD1, off=12)
        e(f"v_and_b32 v{T}, 31, v{V_LANE}")
        e(f"v_lshlrev_b32 v{T}, 3, v{T}")
        e(f"v_add_u32 v{T}, {LDS_STAT}, v{T}")
        e(f"ds_read_b64 v[{S}:{S+1}], v{T}")
        e(f"ds_read_b64 v[{S+2}:{S+3}], v{T} offset:256")
        e("s_waitcnt lgkmcnt(0)")
        e(f"v_max_f32 v{V_M}, v{S}, v{S+2}")
        e(f"v_sub_f32 v{V_F0}, v{S}, v{V_M}")
        e(f"v_sub_f32 v{V_F1}, v{S+2}, v{V_M}")
        e(f"v_exp_f32 v{V_F0}, v{V_F0}")
        e(f"v_exp_f32 v{V_F1}, v{V_F1}")
        e("s_nop 0")
        e(f"v_mul_f32 v{S+1}, v{S+1}, v{V_F0}")
        e(f"v_mul_f32 v{S+3}, v{S+3}, v{V_F1}")
        e(f"v_add_f32 v{V_L}, v{S+1}, v{S+3}")
        e("s_branch L_hook_done")
        lab("L_hook2")
        e(f"s_cmp_lg_u32 s{S_U}, {NU - 4}")
        e("s_cbranch_scc1 L_hook3")
        c("NU-4: take the arrival ticket")
        e(f"v_mov_b32 v{V_TK}, 1")
        e("s_mov_b64 exec, 1")
        e(f"buffer_atomic_add v{V_TK}, v{V_ZERO}, s[{SRD_WS}:{SRD_WS+3}], s{S_CTR} offen sc0")
        e("s_mov_b64 exec, -1")
        e("s_branch L_hook_done")
        lab("L_hook3")
        e(f"s_cmp_lg_u32 s{S_U}, {NU - 2}")
        e("s_cbranch_scc1 L_hook_done")
        c("NU-2: read the ticket; the last arriver starts loading what has been published")
        e("s_waitcnt vmcnt(0)")
        e(f"v_readfirstlane_b32 s{S_TKT}, v{V_TK}")
        e("s_nop 0")
        e(f"s_and_b32 s{S_T}, s{S_TKT}, 0xff")
        e(f"s_cmp_lt_u32 s{S_T}, 3")
        e("s_cbranch_scc1 L_hook_done")
        refresh("L_hook_done")
        e("s_branch L_hook_done")

        c("---- load balancing between workgroups (PV wave 2): compare own progress with 64 others ----")
        lab("L_bal")
        e(f"s_cmp_lg_u32 s{S_CI}, 2")
        e("s_cbranch_scc1 L_hook_done")
        e(f"s_cmp_lg_u32 s{S_U}, {NT + a.c1}")
        e("s_cbranch_scc1 L_bal2")
        e(f"s_memrealtime s[{S_TS}:{S_TS+1}]")
        e(f"s_lshl_b32 s{S_T}, s{S_SPLIT}, 8")
        e(f"s_add_u32 s{S_T}, s{S_T}, s{S_WSB}")
        e(f"s_add_u32 s{S_T}, s{S_T}, {WS_TS}")
        e("s_waitcnt lgkmcnt(0)")
        e(f"s_or_b32 s{S_TS}, s{S_TS}, 1")
        e(f"v_mov_b32 v{T}, s{S_TS}")
        e("s_mov_b64 exec, 1")
        e(f"buffer_store_dword v{T}, v{V_ZERO}, s[{SRD_WS}:{SRD_WS+3}], s{S_T} offen sc1")
        e("s_mov_b64 exec, -1")
        e("s_branch L_hook_done")
        lab("L_bal2")
        e(f"s_cmp_lg_u32 s{S_U}, {NT + a.c2}")
        e("s_cbranch_scc1 L_bal3")
        e(f"v_lshlrev_b32 v{T+1}, {WS_PAIR_SH}, v{V_LANE}")
        e(f"s_lshl_b32 s{S_T}, s{S_SPLIT}, 8")
        e(f"s_add_u32 s{S_T}, s{S_T}, {WS_TS}")
        e(f"buffer_load_dword v{S}, v{T+1}, s[{SRD_WS}:{SRD_WS+3}], s{S_T} offen sc1")
        e("s_branch L_hook_done")
        lab("L_bal3")
        e(f"s_cmp_lg_u32 s{S_U}, {NT + a.c2 + 2}")
        e("s_cbranch_scc1 L_hook_done")
        e("s_waitcnt vmcnt(0)")
        e(f"v_sub_u32 v{S+1}, s{S_TS}, v{S}")
        e(f"v_cvt_f32_i32 v{S+1}, v{S+1}")
        e(f"v_mov_b32 v{S+3}, 0x{f32bits(2000.0):08x}")
        e(f"v_cmp_lt_f32 vcc, |v{S+1}|, v{S+3}")
        e(f"v_mov_b32 v{S+2}, 1.0")
        e("s_nop 1")
        e(f"v_cndmask_b32 v{S+1}, 0, v{S+1}, vcc")
        e(f"v_cndmask_b32 v{S+2}, 0, v{S+2}, vcc")
        for off in (0x041F, 0x081F, 0x101F, 0x201F, 0x401F):
            e(f"ds_swizzle_b32 v{S+3}, v{S+1} offset:{off}")
            e(f"ds_swizzle_b32 v{S+4}, v{S+2} offset:{off}")
            e("s_waitcnt lgkmcnt(0)")
            e(f"v_add_f32 v{S+1}, v{S+1}, v{S+3}")
            e(f"v_add_f32 v{S+2}, v{S+2}, v{S+4}")
        self.xhalf("v_add_f32", S + 1, S + 1, S + 3)
        self.xhalf("v_add_f32", S + 2, S + 2, S + 4)
        e(f"v_max_f32 v{S+2}, 1.0, v{S+2}")
        e(f"v_rcp_f32 v{S+2}, v{S+2}")
        e("s_nop 0")
        e(f"v_mul_f32 v{S+1}, v{S+1}, v{S+2}")
        e(f"v_mul_f32 v{S+1}, 0x{f32bits(a.gain / 100.0):08x}, v{S+1}")
        e(f"v_cvt_i32_f32 v{S+1}, v{S+1}")
        e(f"v_max_i32 v{S+1}, {-a.nmax}, v{S+1}")
        e(f"ds_write_b32 v{V_FLAGA}, v{S+1} offset:40")
        e("s_branch L_hook_done")

        lab("L_scale0")
        for i in range(0, 32, 2):
            self.pkmul(V_O + i, V_F0)
        c("last arriver: one more look at the counter before the last V tile")
        e(f"s_and_b32 s{S_T}, s{S_TKT}, 0xff")
        e(f"s_cmp_lt_u32 s{S_T}, 3")
        e("s_cbranch_scc1 L_scale0_done")
        e(f"s_cmp_eq_u32 s{S_GOT}, 0xf00")
        e("s_cbranch_scc1 L_scale0_done")
        refresh("L_scale0_done")
        e("s_branch L_scale0_done")

        c("rare: counters not ready yet. Claim the job if nobody has, else wait for whoever did.")
        lab("L_check_loop")
        self.claim_and_init("L_vphase", "L_check_wait")
        lab("L_check_wait")
        e("s_sleep 8")
        self.spin_guard()
        e("s_branch L_check_loop")

        out += "\n".join(self.L) + "\n"
        out += f""".section .rodata,"a"
.p2align 6
.amdhsa_kernel {K}
  .amdhsa_next_free_vgpr {NVGPR}
  .amdhsa_next_free_sgpr 102
  .amdhsa_accum_offset {NVGPR}
  .amdhsa_group_segment_fixed_size 0
  .amdhsa_kernarg_size 72
  .amdhsa_user_sgpr_count 2
  .amdhsa_user_sgpr_kernarg_segment_ptr 1
  .amdhsa_system_sgpr_workgroup_id_x 1
.end_amdhsa_kernel
"""
        return out


def main():
    ap = argparse.ArgumentParser()
    ap.add_argument("-o", default=f"cdna_kernels/{NAME}.s")
    ap.add_argument("--polk", default="nt")
    ap.add_argument("--polv", default="nt")
    ap.add_argument("--polq", default="nt")
    ap.add_argument("--stamps", type=int, default=0)
    ap.add_argument("--group", type=int, default=8)
    ap.add_argument("--ring", type=int, default=3)
    ap.add_argument("--sleep", type=int, default=2)
    ap.add_argument("--spin", type=int, default=400000)
    ap.add_argument("--rmul", type=int, default=13)
    ap.add_argument("--su", default="8,32,80")
    ap.add_argument("--nowg0", type=int, default=0)
    ap.add_argument("--gain", type=float, default=6)
    ap.add_argument("--c1", type=int, default=24)
    ap.add_argument("--c2", type=int, default=34)
    ap.add_argument("--rb", type=int, default=5)
    ap.add_argument("--rn", type=int, default=2)
    ap.add_argument("--nmax", type=int, default=16)
    args = ap.parse_args()
    for n in ("polk", "polv", "polq"):
        v = getattr(args, n)
        setattr(args, n, (" " + v.replace(",", " ")) if v else "")
    open(args.o, "w").write(G(args).gen())


if __name__ == "__main__":
    main()
```

```python
import argparse

from gen import HEADER, NAME, f32bits, CSCALE, CMASK
import gen6
from gen6 import (V_LANE, V_T, V_M, V_L, V_ALPHA, V_ZERO, V_FLAGA, V_RELA, V_BK, V_BV, V_PB, V_AB, V_A8, V_A16,
                  V_AOUT, V_PA, V_AA, V_PDA, V_F0, V_AK, V_AV, V_F1, V_TK, V_F, V_P, V_S, V_O, V_K, V_V, V_X, V_Q,
                  V_LD, NVGPR, S_SPLIT, S_WAVE, S_PAIR, SRD_K, SRD_V, SRD_Q, SRD_TK, S_J, SRD_MSK, SRD_OUT, SRD_WS,
                  SRD_DBG, S_OFF, S_OFF2, S_U, S_C, S_CM, S_SLOT, S_CI, S_NEED, S_LANDED, S_CTR, S_PCNT, S_SPIN,
                  S_T, S_TKT, S_GOT, S_ST, S_PD0, S_PD1, S_WSB, S_ISS, S_TB, NU, LDS_RING, LDS_P, LDS_AL, LDS_FLAG,
                  LDS_STAT, LDS_TOTAL, LDS_Q, LDS_TREE, WS_PAIR_SH, WS_STAT, WS_CTR, WS_STAMP)

assert gen6.N1 == 12 and gen6.NPS == 52
NT = 64
NPK = 12
NPS = 52
V_PK = 144
V_PKA = 240
V_MSK = 64
V_MT = 68
GATE1 = 16
GATE2 = 48


class G(gen6.G):
    def stamp_index(self):
        pass

    def stamp_store7(self, idx_sreg_expr):
        if not self.a.stamps:
            return
        e = self.e
        e("s_memtime s[98:99]")
        self.stamp(5)
        e(f"s_getreg_b32 s{S_T}, hwreg(HW_REG_XCC_ID)")
        e(f"s_mul_i32 s{S_T+2}, s2, 5")
        e(f"s_add_u32 s{S_T+2}, s{S_T+2}, {idx_sreg_expr}")
        e(f"s_lshl_b32 s{S_T+2}, s{S_T+2}, 6")
        e(f"s_add_u32 s{S_T+2}, s{S_T+2}, {WS_STAMP}")
        for i in range(6):
            e(f"v_mov_b32 v{V_S+i}, s{S_ST+2*i}")
        e(f"v_mov_b32 v{V_S+6}, s{S_T}")
        e(f"v_mov_b32 v{V_S+7}, s{S_T+9}")
        e(f"v_mov_b32 v{V_S+8}, s96")
        e(f"v_mov_b32 v{V_S+9}, s98")
        e(f"v_mov_b32 v{V_S+10}, 0")
        e(f"v_mov_b32 v{V_S+11}, s{S_SPIN}")
        e(f"v_mov_b32 v{V_T}, 0")
        e("s_mov_b64 exec, 1")
        for q in range(3):
            e(f"buffer_store_dwordx4 v[{V_S+4*q}:{V_S+4*q+3}], v{V_T}, s[{SRD_WS}:{SRD_WS+3}], s{S_T+2} offen offset:{16*q}")
        e("s_mov_b64 exec, -1")

    def p_addrs7(self):
        e = self.e
        e(f"s_add_u32 s{S_T}, s{S_J}, {NPS - NPK}")
        e(f"s_sub_u32 s{S_T+1}, s{S_J}, {NPK}")
        e(f"s_cmp_lt_u32 s{S_J}, {NPK}")
        e(f"s_cselect_b32 s{S_T}, s{S_T}, s{S_T+1}")
        e(f"s_lshl_b32 s{S_T+1}, s{S_T}, 11")
        e(f"s_lshl_b32 s{S_T}, s{S_T}, 7")
        e(f"v_add_u32 v{V_PA}, s{S_T+1}, v{V_PB}")
        e(f"v_add_u32 v{V_AA}, s{S_T}, v{V_AB}")

    def pv7(self, oset, psrc):
        for ks in range(2):
            for dtl in range(2):
                o = V_O + 32 * oset + 16 * dtl
                r = V_V + 8 * ks + 4 * dtl
                self.e(f"v_mfma_f32_32x32x16_bf16 v[{o}:{o+15}], v[{r}:{r+3}], v[{psrc+4*ks}:{psrc+4*ks+3}], v[{o}:{o+15}]")

    def release_const(self, val):
        self.e(f"v_mov_b32 v{V_F}, {val}")
        self.e(f"ds_write_b32 v{V_RELA}, v{V_F}")

    def gen(self):
        a = self.a
        e, lab, c = self.e, self.lab, self.c
        T = V_T
        S = V_S
        Gp, R = a.group, a.ring
        GPU = 16 // Gp
        K = NAME + "_kernel"
        out = HEADER + f"; @launch grid=(256,1,1) block=(448,1,1) lds={LDS_TOTAL}\n"
        out += '.amdgcn_target "amdgcn-amd-amdhsa--gfx950"\n'
        out += "".join("; " + ln + "\n" for ln in __doc__.strip().splitlines()[2:])
        out += '.text\n'
        out += f".globl {K}\n.p2align 8\n.type {K},@function\n{K}:\n"

        e("s_cmp_ge_u32 s2, 256")
        e("s_cbranch_scc1 L_end")
        if a.stamps:
            e("s_memtime s[96:97]")
        self.stamp(0)
        e("s_load_dwordx16 s[4:19], s[0:1], 0")
        e("s_load_dwordx2 s[20:21], s[0:1], 64")
        e(f"v_lshrrev_b32 v{T}, 6, v0")
        e(f"v_and_b32 v{V_LANE}, 63, v0")
        e(f"v_readfirstlane_b32 s{S_WAVE}, v{T}")
        e(f"v_lshrrev_b32 v{T+1}, 5, v{V_LANE}")
        e(f"v_and_b32 v{T+2}, 31, v{V_LANE}")
        e(f"s_and_b32 s{S_PAIR}, s2, 63")
        e(f"s_lshr_b32 s{S_SPLIT}, s2, 6")
        e(f"v_mov_b32 v{V_FLAGA}, {LDS_FLAG}")
        e(f"v_mov_b32 v{V_ZERO}, 0")
        e(f"s_mov_b32 s{S_SPIN}, {a.spin}")
        if a.stamps:
            e(f"s_mov_b32 s{S_T+9}, 0")
        e(f"s_cmp_lg_u32 s{S_WAVE}, 0")
        e("s_cbranch_scc1 L_notloader")

        c("================= loader wave =================")
        e("s_setprio 3")
        self.dma_offsets(V_LD, V_LD + 8)
        c("tile t of split s = rows of 16 KiB block 4*((t + 13*pair) & 63) + s of the pair")
        nrec = (4 << 20) - 49152
        e(f"s_mul_i32 s{S_TB}, s{S_PAIR}, {a.rmul}")
        e(f"s_and_b32 s{S_OFF}, s{S_TB}, 63")
        e(f"s_lshl_b32 s{S_OFF}, s{S_OFF}, 16")
        e(f"s_add_u32 s{S_OFF2}, s{S_OFF}, 8192")
        e(f"s_lshl_b32 s{S_T}, s{S_PAIR}, 22")
        e(f"s_lshl_b32 s{S_T+1}, s{S_SPLIT}, 14")
        e(f"s_add_u32 s{S_T}, s{S_T}, s{S_T+1}")
        e(f"s_mov_b32 s{S_SLOT}, 0")
        e("s_waitcnt lgkmcnt(0)")
        self.srd_off(SRD_K, 6, 7, S_T, nrec)
        soffs = [f"s{S_OFF}", f"s{S_OFF2}"]

        def m0_slot(q):
            e(f"s_add_u32 m0, s{S_SLOT}, {LDS_RING + q*4096}")

        def m0_abs(base):
            def f(q):
                e(f"s_mov_b32 m0, {base + q*4096}")
            return f

        def group(kind, g):
            for p in range(g * Gp, (g + 1) * Gp):
                if kind == "K":
                    self.piece("K", p, SRD_K, soffs, m0_slot, V_LD, a.polk)
                else:
                    self.piece("V", p, SRD_V, soffs, m0_slot, V_LD + 8, a.polv)

        def publish():
            e(f"s_waitcnt vmcnt({(R-1)*Gp})")
            e(f"s_sub_i32 s{S_T+2}, s{S_ISS}, {R-1}")
            e(f"s_max_i32 s{S_T+2}, s{S_T+2}, 0")
            e(f"v_mov_b32 v{V_F}, s{S_T+2}")
            e(f"ds_write_b32 v{V_FLAGA}, v{V_F}")
            e(f"s_add_u32 s{S_ISS}, s{S_ISS}, 1")

        c("unit 0 goes out immediately")
        for g in range(GPU):
            group("K", g)
        self.srd_off(SRD_V, 8, 9, S_T, nrec)
        if a.stamps:
            self.srd(SRD_WS, 20, 21, 64 << 20)
        e(f"v_mov_b32 v{V_ALPHA}, 0")
        e(f"ds_write_b64 v{V_FLAGA}, v[{V_ALPHA}:{V_ALPHA+1}]")
        e(f"ds_write_b64 v{V_FLAGA}, v[{V_ALPHA}:{V_ALPHA+1}] offset:8")
        e(f"s_mov_b32 s{S_ISS}, {GPU}")
        e(f"s_mov_b32 s{S_U}, 1")
        e(f"s_mov_b32 s{S_J}, 1")
        e("s_waitcnt lgkmcnt(0)")
        e("s_barrier")

        def ld_phase(kind):
            lab(f"L_ld_{kind}")
            e(f"s_add_u32 s{S_OFF}, s{S_TB}, s{S_J}")
            e(f"s_and_b32 s{S_OFF}, s{S_OFF}, 63")
            e(f"s_lshl_b32 s{S_OFF}, s{S_OFF}, 16")
            e(f"s_add_u32 s{S_OFF2}, s{S_OFF}, 8192")
            self.slot_of_u(early=(kind == "K"))
            c("slot free?  every wave has released all units below u-2 (u-5 in the 6-slot start-up ring)")
            e(f"s_cmp_lt_u32 s{S_U}, {gen6.N1}")
            e(f"s_cselect_b32 s{S_T+4}, 5, 2")

            def free_estimate():
                e(f"ds_read_b128 v[{V_S}:{V_S+3}], v{V_FLAGA} offset:16")
                e(f"ds_read_b64 v[{V_S+4}:{V_S+5}], v{V_FLAGA} offset:32")
                e("s_waitcnt lgkmcnt(0)")
                e(f"v_min3_u32 v{V_S}, v{V_S}, v{V_S+1}, v{V_S+2}")
                e(f"v_min3_u32 v{V_S+3}, v{V_S+3}, v{V_S+4}, v{V_S+5}")
                e(f"v_min_u32 v{V_S}, v{V_S}, v{V_S+3}")
                e("s_nop 0")
                e(f"v_readfirstlane_b32 s{S_T}, v{V_S}")
                e("s_nop 0")
                e(f"s_add_u32 s{S_T}, s{S_T}, s{S_T+4}")
            free_estimate()
            publish()
            lab(f"L_ld_chk{kind}")
            e(f"s_cmp_ge_u32 s{S_T}, s{S_U}")
            e(f"s_cbranch_scc1 L_ld_free{kind}")
            if a.stamps:
                e(f"s_mov_b32 s{S_T+3}, 1")
                e(f"s_cmp_ge_u32 s{S_U}, 8")
                e(f"s_cselect_b32 s{S_T+3}, 0x100, s{S_T+3}")
                e(f"s_cmp_ge_u32 s{S_U}, 28")
                e(f"s_cselect_b32 s{S_T+3}, 0x10000, s{S_T+3}")
                e(f"s_cmp_ge_u32 s{S_U}, 62")
                e(f"s_cselect_b32 s{S_T+3}, 0x1000000, s{S_T+3}")
                e(f"s_add_u32 s{S_T+9}, s{S_T+9}, s{S_T+3}")
            self.spin_guard()
            free_estimate()
            e(f"s_branch L_ld_chk{kind}")
            lab(f"L_ld_free{kind}")
            if a.stamps:
                su = [int(v) for v in a.su.split(",")]
                for ti, si in ((su[0], 1), (su[1], 2), (su[2], 4)):
                    l2 = self.newlab("pst")
                    e(f"s_cmp_lg_u32 s{S_U}, {ti}")
                    e(f"s_cbranch_scc1 {l2}")
                    self.stamp(si)
                    lab(l2)
            group(kind, 0)
            for g in range(1, GPU):
                publish()
                group(kind, g)
            e(f"s_add_u32 s{S_U}, s{S_U}, 1")
            e(f"s_add_u32 s{S_J}, s{S_J}, 1")
            e(f"s_cmp_lt_u32 s{S_J}, {NT}")
            e(f"s_cbranch_scc1 L_ld_{kind}")
            e(f"s_mov_b32 s{S_J}, 0")

        assert R - 1 <= 2 * GPU
        ld_phase("K")
        ld_phase("V")
        c("drain")
        for r in range(R - 1, -1, -1):
            e(f"s_waitcnt vmcnt({r*Gp})")
            e(f"v_mov_b32 v{V_F}, {NU*GPU - r}")
            e(f"ds_write_b32 v{V_FLAGA}, v{V_F}")
        self.stamp(3)
        self.stamp_store7("0")
        e("s_endpgm")

        lab("L_notloader")
        e(f"v_lshlrev_b32 v{V_A16}, 4, v{V_LANE}")
        e(f"v_add_u32 v{V_PB}, {LDS_P}, v{V_A16}")
        e(f"v_lshlrev_b32 v{V_AB}, 2, v{T+2}")
        e(f"v_add_u32 v{V_AB}, {LDS_AL}, v{V_AB}")
        e(f"s_mov_b32 s{S_LANDED}, 0")
        e(f"s_cmp_ge_u32 s{S_WAVE}, 3")
        e("s_cbranch_scc1 L_pvwave")

        c("================= producer waves =================")
        e(f"s_sub_u32 s{S_CI}, s{S_WAVE}, 1")
        e(f"s_lshl_b32 s{S_T}, s{S_CI}, 2")
        e(f"s_add_u32 s{S_T+1}, s{S_T}, {LDS_FLAG + 32}")
        e(f"v_mov_b32 v{V_RELA}, s{S_T+1}")
        e(f"s_add_u32 s{S_T+1}, s{S_T}, {LDS_FLAG + 8}")
        e(f"v_mov_b32 v{V_PDA}, s{S_T+1}")
        c("producer p never reads units below p")
        self.release(S_CI)
        e(f"v_and_b32 v{T+3}, 15, v{T+2}")
        e(f"v_xor_b32 v{T+3}, v{T+3}, v{T+1}")
        e(f"v_lshlrev_b32 v{T+3}, 4, v{T+3}")
        e(f"v_lshl_or_b32 v{V_BK}, v{T+2}, 9, v{T+3}")
        e(f"s_mov_b32 s{S_C}, 0x{f32bits(CSCALE):08x}")
        e(f"s_mov_b32 s{S_CM}, 0x{f32bits(CMASK):08x}")
        e(f"v_mov_b32 v{V_M}, 0xff800000")
        e(f"v_mov_b32 v{V_L}, 0")
        c("tree duty: producer 0 of split 3")
        e(f"s_xor_b32 s{S_T+8}, s{S_SPLIT}, 3")
        e(f"s_or_b32 s{S_T+8}, s{S_T+8}, s{S_CI}")
        e("s_waitcnt lgkmcnt(0)")
        e(f"s_cmp_lg_u32 s{S_T+8}, 0")
        e("s_cbranch_scc1 L_p_nomask")
        self.srd(SRD_MSK, 14, 15, 4096)
        e(f"v_and_b32 v{T+6}, 15, v{V_LANE}")
        e(f"v_lshlrev_b32 v{T+6}, 5, v{T+6}")
        e(f"v_lshl_or_b32 v{T+6}, v{T+1}, 3, v{T+6}")
        e(f"s_lshr_b32 s{S_T+4}, s{S_PAIR}, 3")
        e(f"s_lshl_b32 s{S_T+4}, s{S_T+4}, 9")
        e(f"buffer_load_dwordx2 v[{V_MSK}:{V_MSK+1}], v{T+6}, s[{SRD_MSK}:{SRD_MSK+3}], s{S_T+4} offen")
        e(f"buffer_load_dwordx2 v[{V_MSK+2}:{V_MSK+3}], v{T+6}, s[{SRD_MSK}:{SRD_MSK+3}], s{S_T+4} offen offset:16")
        lab("L_p_nomask")
        e("s_barrier")
        self.k_addrs(str(LDS_Q))
        self.poll("4", sreg=S_NEED, off=4, precheck=False, sleep=1)
        self.read_k(V_Q)
        e(f"s_cmp_lg_u32 s{S_T+8}, 0")
        e("s_cbranch_scc1 L_p_notree")
        c("---- tree tile (16 keys, masked): P goes to the start of the tree staging area ----")
        self.k_addrs(str(LDS_TREE))
        self.read_k()
        e("s_waitcnt vmcnt(0)")
        for i in range(4):
            e(f"v_lshlrev_b32 v{V_MT+2*i}, 16, v{V_MSK+i}")
            e(f"v_and_b32 v{V_MT+2*i+1}, 0xffff0000, v{V_MSK+i}")
        for i in range(8):
            e(f"v_sub_f32 v{V_MT+i}, 1.0, v{V_MT+i}")
        for i in range(8):
            e(f"v_mul_f32 v{V_MT+i}, s{S_CM}, v{V_MT+i}")
        e("s_waitcnt lgkmcnt(0)")
        for kk in range(16):
            self.qk_mfma(kk)
        e("s_nop 15")
        for i in range(8):
            e(f"v_fma_f32 v{S+i}, v{S+i}, s{S_C}, v{V_MT+i}")
        e(f"v_max3_f32 v{T}, v{S}, v{S+1}, v{S+2}")
        e(f"v_max3_f32 v{T+1}, v{S+3}, v{S+4}, v{S+5}")
        e(f"v_max3_f32 v{T}, v{T}, v{S+6}, v{S+7}")
        e(f"v_max_f32 v{T}, v{T}, v{T+1}")
        self.xhalf("v_max_f32", V_M, T, T + 1)
        for i in range(8):
            e(f"v_sub_f32 v{S+i}, v{S+i}, v{V_M}")
        for i in range(8):
            e(f"v_exp_f32 v{S+i}, v{S+i}")
        e("s_nop 0")
        e(f"v_add_f32 v{V_L}, v{S}, v{S+1}")
        for i in range(2, 8):
            e(f"v_add_f32 v{V_L}, v{V_L}, v{S+i}")
        for i in range(4):
            e(f"v_cvt_pk_bf16_f32 v{V_P+i}, v{S+2*i}, v{S+2*i+1}")
        e(f"ds_write_b128 v{V_PB}, v[{V_P}:{V_P+3}] offset:{LDS_TREE - LDS_P}")
        lab("L_p_notree")
        c("count 1 = start-up work (tree tile, if any) done")
        e(f"s_mov_b32 s{S_PCNT}, 1")
        e(f"v_mov_b32 v{V_TK}, 1")
        e("s_waitcnt lgkmcnt(0)")
        e(f"ds_write_b32 v{V_PDA}, v{V_TK}")
        e(f"s_mov_b32 s{S_J}, s{S_CI}")
        self.L.append(".p2align 6")
        lab("L_kloop")
        e(f"s_mov_b32 s{S_U}, s{S_J}")
        self.slot_of_u()
        self.k_addrs(f"s{S_SLOT}")
        self.p_addrs7()
        e(f"s_add_u32 s{S_NEED}, s{S_U}, 1")
        e(f"s_mul_i32 s{S_NEED}, s{S_NEED}, {GPU}")
        e(f"s_add_u32 s{S_T+2}, s{S_U}, 2")
        e(f"s_cmp_ge_u32 s{S_T+2}, {NT}")
        e(f"s_cselect_b32 s{S_T+2}, {NU}, s{S_T+2}")
        self.poll(f"s{S_NEED}", sleep=1)
        self.read_k()
        e(f"v_mov_b32 v{V_F}, s{S_T+2}")
        for kk in range(16):
            if kk < 8:
                e(f"s_waitcnt lgkmcnt({15 - kk})")
            elif kk == 8:
                e("s_waitcnt lgkmcnt(0)")
                e(f"ds_write_b32 v{V_RELA}, v{V_F}")
            self.qk_mfma(kk)
        e(f"s_add_u32 s{S_PCNT}, s{S_PCNT}, 1")
        e(f"v_mov_b32 v{V_TK}, s{S_PCNT}")
        e("s_nop 15")
        self.softmax()
        e("s_waitcnt lgkmcnt(0)")
        e(f"ds_write_b32 v{V_PDA}, v{V_TK}")
        e(f"s_add_u32 s{S_J}, s{S_J}, 2")
        e(f"s_cmp_lt_u32 s{S_J}, {NT}")
        e("s_cbranch_scc1 L_kloop")
        c("publish (m, l) of this producer")
        e(f"v_mov_b32 v{T+2}, v{V_M}")
        e(f"v_mov_b32 v{T}, v{V_L}")
        self.xhalf("v_add_f32", T + 3, T, T + 1)
        e(f"s_lshl_b32 s{S_T}, s{S_CI}, 8")
        e(f"s_add_u32 s{S_T}, s{S_T}, {LDS_STAT}")
        e(f"v_and_b32 v{T}, 31, v{V_LANE}")
        e(f"v_lshlrev_b32 v{T}, 3, v{T}")
        e(f"v_add_u32 v{T}, s{S_T}, v{T}")
        e(f"ds_write_b64 v{T}, v[{T+2}:{T+3}]")
        e(f"v_mov_b32 v{V_TK}, {NT//2 + 2}")
        e("s_waitcnt lgkmcnt(0)")
        e(f"ds_write_b32 v{V_PDA}, v{V_TK}")
        e("s_waitcnt lgkmcnt(0)")
        e("s_endpgm")

        lab("L_pvwave")
        c("================= PV waves =================")
        e(f"s_sub_u32 s{S_CI}, s{S_WAVE}, 3")
        e(f"s_lshl_b32 s{S_T}, s{S_CI}, 2")
        e(f"s_add_u32 s{S_T+1}, s{S_T}, {LDS_FLAG + 16}")
        e(f"v_mov_b32 v{V_RELA}, s{S_T+1}")
        self.release_const(GATE1)
        c("stage Q (and the tree K/V of split 3) into LDS")
        self.dma_offsets(V_PK, V_PK + 8)
        e(f"s_lshl_b32 s{S_T+1}, s{S_PAIR}, 14")
        e(f"s_lshl_b32 s{S_T+2}, s{S_PAIR}, 13")
        e(f"s_and_b32 s{S_T+3}, s{S_CI}, 1")
        e(f"s_mul_i32 s{S_T+3}, s{S_T+3}, {128 | 4096}")
        for i in range(4):
            e(f"v_xor_b32 v{V_PK+12+i}, s{S_T+3}, v{V_PK+i}")
        e(f"s_lshr_b32 s{S_T+4}, s{S_CI}, 1")
        e(f"s_lshl_b32 s{S_T+4}, s{S_T+4}, 13")
        e(f"s_lshl_b32 s{S_T+5}, s{S_CI}, 12")
        e("s_waitcnt lgkmcnt(0)")
        self.srd_off(SRD_Q, 4, 5, S_T + 1, 16384)
        e(f"s_add_u32 m0, s{S_T+5}, {LDS_Q}")
        e("s_nop 0")
        for i in range(4):
            e(f"buffer_load_dwordx4 v{V_PK+12+i}, s[{SRD_Q}:{SRD_Q+3}], s{S_T+4} offen offset:{i*1024}{a.polq} lds")
        e(f"s_cmp_lg_u32 s{S_SPLIT}, 3")
        e("s_cbranch_scc1 L_c_notree0")
        e(f"s_cmp_lg_u32 s{S_CI}, 2")
        e("s_cbranch_scc1 L_c_tk_done")
        self.srd_off(SRD_TK, 10, 11, S_T + 2, 8192)
        for j in range(8):
            self.piece("K", j, SRD_TK, ["0"], m0_abs(LDS_TREE), V_PK, a.polq)
        lab("L_c_tk_done")
        e(f"s_cmp_lg_u32 s{S_CI}, 3")
        e("s_cbranch_scc1 L_c_notree0")
        self.srd_off(SRD_TK, 12, 13, S_T + 2, 8192)
        for j in range(8):
            self.piece("V", j, SRD_TK, ["0"], m0_abs(LDS_TREE + 8192), V_PK + 8, a.polq)
        lab("L_c_notree0")
        e("s_barrier")
        self.stamp(1)
        self.stamp(2)
        self.srd_off(SRD_OUT, 16, 17, S_T + 1, 16384)
        self.srd(SRD_WS, 20, 21, 64 << 20)
        self.srd(SRD_DBG, 18, 19, 256)
        e(f"v_bfe_u32 v{T+3}, v{V_LANE}, 2, 2")
        e(f"v_lshl_add_u32 v{T+4}, v{T+1}, 2, v{T+3}")
        e(f"v_lshlrev_b32 v{T+4}, 9, v{T+4}")
        e(f"v_lshl_or_b32 v{T+4}, v{T+3}, 6, v{T+4}")
        e(f"v_bfe_u32 v{T+3}, v{V_LANE}, 4, 1")
        e(f"v_lshl_or_b32 v{T+4}, v{T+3}, 5, v{T+4}")
        e(f"v_and_b32 v{T+3}, 3, v{V_LANE}")
        e(f"v_lshl_or_b32 v{T+4}, v{T+3}, 3, v{T+4}")
        c("d-tiles 2c, 2c+1: xor (dt&3)<<6, + (dt>>2)*256")
        e(f"s_and_b32 s{S_T}, s{S_CI}, 1")
        e(f"s_lshl_b32 s{S_T}, s{S_T}, 7")
        e(f"s_lshr_b32 s{S_T+1}, s{S_CI}, 1")
        e(f"s_lshl_b32 s{S_T+1}, s{S_T+1}, 8")
        e(f"s_or_b32 s{S_T}, s{S_T}, s{S_T+1}")
        e(f"v_xor_b32 v{V_BV}, s{S_T}, v{T+4}")
        e(f"v_lshlrev_b32 v{V_A8}, 3, v{V_LANE}")
        c("output address: q = l&31, d = 64*c + 8*g8 + 4*h")
        e(f"v_lshlrev_b32 v{V_AOUT}, 9, v{T+2}")
        e(f"v_lshl_or_b32 v{V_AOUT}, v{T+1}, 3, v{V_AOUT}")
        e(f"s_mov_b32 s{S_PD0}, 0")
        e(f"s_mov_b32 s{S_PD1}, 0")
        e(f"s_add_u32 s{S_T}, s{S_SPLIT}, 8")
        e(f"s_lshl_b32 s{S_GOT}, 1, s{S_T}")
        e(f"s_mov_b32 s{S_TKT}, 0")
        e(f"s_lshl_b32 s{S_WSB}, s{S_PAIR}, {WS_PAIR_SH}")
        e(f"s_lshl_b32 s{S_CTR}, s{S_CI}, 8")
        e(f"s_add_u32 s{S_CTR}, s{S_CTR}, s{S_WSB}")
        e(f"s_add_u32 s{S_CTR}, s{S_CTR}, {WS_CTR}")
        if a.touch:
            c("PV wave 3 touches every page the workgroup needs later: warms the address translation caches")
            e(f"s_cmp_lg_u32 s{S_CI}, 3")
            e("s_cbranch_scc1 L_notouch")
            e(f"s_lshl_b32 s{S_T}, s{S_PAIR}, 22")
            self.srd_off(SRD_K, 6, 7, S_T, 4 << 20)
            self.srd_off(SRD_V, 8, 9, S_T, 4 << 20)
            e(f"v_lshlrev_b32 v{T+3}, 19, v{V_LANE}")
            e(f"s_add_u32 s{S_T}, s{S_WSB}, {gen6.WS_SPARE + 4096}")
            e("s_mov_b64 exec, 0xff")
            e(f"buffer_load_dword v{S}, v{T+3}, s[{SRD_K}:{SRD_K+3}], 0 offen nt")
            e(f"buffer_load_dword v{S+1}, v{T+3}, s[{SRD_V}:{SRD_V+3}], 0 offen nt")
            e("s_mov_b64 exec, 1")
            e(f"buffer_load_dword v{S+2}, v{V_ZERO}, s[{SRD_WS}:{SRD_WS+3}], s{S_T} offen nt")
            e(f"buffer_load_dword v{S+3}, v{V_ZERO}, s[{SRD_OUT}:{SRD_OUT+3}], 0 offen nt")
            e("s_mov_b64 exec, -1")
            lab("L_notouch")
        for i in range(64):
            e(f"v_mov_b32 v{V_O+i}, 0")
        e(f"v_mov_b32 v{V_TK}, 1")
        c("own staged pieces landed -> count")
        e("s_waitcnt vmcnt(0)")
        e("s_mov_b64 exec, 1")
        e(f"ds_add_u32 v{V_FLAGA}, v{V_TK} offset:4")
        e("s_mov_b64 exec, -1")
        e(f"s_cmp_lg_u32 s{S_SPLIT}, 3")
        e("s_cbranch_scc1 L_v_notree")
        c("---- tree tile: O set 0 = V_tree^T P_tree^T (P ready implies all staging has landed) ----")
        self.poll("1", sreg=S_PD0, off=8, precheck=False, sleep=2)
        e(f"ds_read_b128 v[{V_P}:{V_P+3}], v{V_PB} offset:{LDS_TREE - LDS_P}")
        self.v_addrs(str(LDS_TREE + 8192))
        self.read_v([0])
        e("s_waitcnt lgkmcnt(0)")
        self.pv([0], 0, first=True)
        lab("L_v_notree")
        self.release_const(GATE2)
        c("counter initialisation: PV wave 2 of workgroup 0 claims d_debug[0] and zeroes all merge counters")
        e(f"s_xor_b32 s{S_T}, s{S_CI}, 2")
        e(f"s_or_b32 s{S_T}, s{S_T}, s2")
        e(f"s_cmp_lg_u32 s{S_T}, {9999 if a.nowg0 else 0}")
        e("s_cbranch_scc1 L_park")
        self.claim_and_init("L_park", "L_park")
        lab("L_park")
        c("---- park the first 12 P tiles in registers ----")
        self.poll(str(NPK // 2 + 1), sreg=S_PD0, off=8, sleep=4)
        self.poll(str(NPK // 2 + 1), sreg=S_PD1, off=12, sleep=4)
        e(f"v_add_u32 v{V_PA}, {(NPS - NPK) * 2048}, v{V_PB}")
        for j in range(NPK):
            e(f"ds_read_b128 v[{V_PK+8*j}:{V_PK+8*j+3}], v{V_PA} offset:{j*2048}")
            e(f"ds_read_b128 v[{V_PK+8*j+4}:{V_PK+8*j+7}], v{V_PA} offset:{j*2048 + 1024}")
            e(f"ds_read_b32 v{V_PKA+j}, v{V_AB} offset:{(NPS - NPK + j) * 128}")
        e("s_waitcnt lgkmcnt(0)")
        self.release_const(NT)
        c("PV wave 2 makes sure the merge counters have been zeroed before the V phase")
        c("(the ring dependency then covers every other wave of the workgroup)")
        e(f"s_cmp_lg_u32 s{S_CI}, 2")
        e("s_cbranch_scc1 L_vphase")
        e(f"s_mov_b32 s{S_NEED}, {32 * GPU}")
        self.poll(f"s{S_NEED}", sleep=8)
        e("s_mov_b64 exec, 1")
        e(f"buffer_load_dword v{V_TK}, v{V_ZERO}, s[{SRD_DBG}:{SRD_DBG+3}], 0 offen sc1")
        e("s_mov_b64 exec, -1")
        e("s_waitcnt vmcnt(0)")
        e(f"v_readfirstlane_b32 s{S_T}, v{V_TK}")
        e("s_nop 0")
        e(f"s_cmp_lg_u32 s{S_T}, 3")
        e("s_cbranch_scc1 L_check_loop")

        lab("L_vphase")
        c("idle until the K phase is nearly over")
        e(f"s_mov_b32 s{S_NEED}, {(NT - 2) * GPU}")
        self.poll(f"s{S_NEED}", sleep=8)
        c("---- V phase, parked tiles ----")
        for j in range(NPK):
            u = NT + j
            st = j & 1
            self.v_addrs(str((u % 3) * 16384))
            e(f"v_mov_b32 v{V_ALPHA}, v{V_PKA+j}")
            for i in range(0, 32, 2):
                self.pkmul(V_O + 32 * st + i, V_ALPHA)
            self.poll(str((u + 1) * GPU), sleep=1)
            self.read_v([0, 1])
            e(f"v_mov_b32 v{V_F}, {u + 1}")
            e("s_waitcnt lgkmcnt(0)")
            e(f"ds_write_b32 v{V_RELA}, v{V_F}")
            self.pv7(st, V_PK + 8 * j)
        c("---- V phase, tiles from LDS ----")
        e(f"s_mov_b32 s{S_J}, {NPK}")
        self.L.append(".p2align 6")
        lab("L_vloop")
        for st in range(2):
            spd = S_PD0 if st == 0 else S_PD1
            e(f"s_add_u32 s{S_U}, s{S_J}, {NT}")
            self.slot_of_u(early=False)
            self.v_addrs(f"s{S_SLOT}")
            self.p_addrs7()
            e(f"s_lshr_b32 s{S_NEED}, s{S_J}, 1")
            e(f"s_add_u32 s{S_NEED}, s{S_NEED}, 2")
            self.poll(f"s{S_NEED}", sreg=spd, off=8 + 4 * st, sleep=2)
            e(f"ds_read_b32 v{V_ALPHA}, v{V_AA}")
            e(f"ds_read_b128 v[{V_P}:{V_P+3}], v{V_PA}")
            e(f"ds_read_b128 v[{V_P+4}:{V_P+7}], v{V_PA} offset:1024")
            if st == 0:
                e(f"s_cmp_ge_u32 s{S_U}, {NU - 8}")
                e("s_cbranch_scc1 L_hook")
                lab("L_hook_done")
            e(f"s_add_u32 s{S_T+2}, s{S_U}, 1")
            e(f"s_mul_i32 s{S_NEED}, s{S_T+2}, {GPU}")
            e("s_waitcnt lgkmcnt(0)")
            for i in range(0, 32, 2):
                self.pkmul(V_O + 32 * st + i, V_ALPHA)
            if st == 1:
                e(f"s_cmp_eq_u32 s{S_U}, {NU - 1}")
                e("s_cbranch_scc1 L_scale0")
                lab("L_scale0_done")
            self.poll(f"s{S_NEED}", sleep=1)
            self.read_v([0, 1])
            e(f"v_mov_b32 v{V_F}, s{S_T+2}")
            e(f"s_add_u32 s{S_J}, s{S_J}, 1")
            e("s_waitcnt lgkmcnt(0)")
            e(f"ds_write_b32 v{V_RELA}, v{V_F}")
            self.pv7(st, V_P)
        e(f"s_cmp_lt_u32 s{S_J}, {NT}")
        e("s_cbranch_scc1 L_vloop")

        self.stamp(3)
        A8, A16, AOUT = V_A8, V_A16, V_AOUT

        def issue_loads(sval):
            for i in range(1, 4):
                skip = self.newlab("nold")
                e(f"s_xor_b32 s{S_T+1}, s{S_SPLIT}, {i}")
                e(f"s_add_u32 s{S_T+3}, s{S_T+1}, 8")
                e(f"s_lshl_b32 s{S_T+3}, 1, s{S_T+3}")
                e(f"s_andn2_b32 s{S_T+5}, s{sval}, s{S_GOT}")
                e(f"s_and_b32 s{S_T+5}, s{S_T+5}, s{S_T+3}")
                e(f"s_cbranch_scc0 {skip}")
                e(f"s_or_b32 s{S_GOT}, s{S_GOT}, s{S_T+3}")
                e(f"s_lshl_b32 s{S_T+1}, s{S_T+1}, 2")
                e(f"s_add_u32 s{S_T+1}, s{S_T+1}, s{S_CI}")
                e(f"s_lshl_b32 s{S_T+3}, s{S_T+1}, 9")
                e(f"s_add_u32 s{S_T+3}, s{S_T+3}, s{S_WSB}")
                e(f"s_add_u32 s{S_T+3}, s{S_T+3}, {WS_STAT}")
                e(f"buffer_load_dwordx2 v[{S+2*i}:{S+2*i+1}], v{A8}, s[{SRD_WS}:{SRD_WS+3}], s{S_T+3} offen sc1")
                e(f"s_lshl_b32 s{S_T+1}, s{S_T+1}, 13")
                e(f"s_add_u32 s{S_T+1}, s{S_T+1}, s{S_WSB}")
                e(f"s_add_u32 s{S_T+3}, s{S_T+1}, 4096")
                for rq in range(8):
                    so = S_T + 1 if rq < 4 else S_T + 3
                    r = V_X + 32 * (i - 1) + 4 * rq
                    e(f"buffer_load_dwordx4 v[{r}:{r+3}], v{A16}, s[{SRD_WS}:{SRD_WS+3}], s{so} offen offset:{(rq & 3)*1024} sc1")
                lab(skip)

        def refresh(l_done):
            e("s_waitcnt vmcnt(0)")
            e(f"v_readfirstlane_b32 s{S_TKT}, v{V_TK}")
            e("s_nop 0")
            issue_loads(S_TKT)
            e(f"s_cmp_eq_u32 s{S_GOT}, 0xf00")
            e(f"s_cbranch_scc1 {l_done}")
            e("s_mov_b64 exec, 1")
            e(f"buffer_load_dword v{V_TK}, v{V_ZERO}, s[{SRD_WS}:{SRD_WS+3}], s{S_CTR} offen sc1")
            e("s_mov_b64 exec, -1")

        c("---- merge the two accumulator sets (set 0 was scaled while waiting for the last V tile) ----")
        e("s_nop 7")
        e("s_nop 5")
        for i in range(0, 32, 2):
            e(f"v_pk_fma_f32 v[{V_O+i}:{V_O+i+1}], v[{V_O+32+i}:{V_O+33+i}], v[{V_F1}:{V_F1+1}], v[{V_O+i}:{V_O+i+1}] op_sel_hi:[1,0,1]")
        c("---- merge the 4 splits ----")
        e(f"s_and_b32 s{S_T+6}, s{S_TKT}, 0xff")
        e(f"s_cmp_ge_u32 s{S_T+6}, 3")
        e("s_cbranch_scc1 L_last")
        c("not last: publish partial (write-through), then set the done bit")
        e(f"s_lshl_b32 s{S_T}, s{S_SPLIT}, 2")
        e(f"s_add_u32 s{S_T}, s{S_T}, s{S_CI}")
        e(f"s_lshl_b32 s{S_T+1}, s{S_T}, 13")
        e(f"s_add_u32 s{S_T+1}, s{S_T+1}, s{S_WSB}")
        e(f"s_add_u32 s{S_T+2}, s{S_T+1}, 4096")
        e(f"s_lshl_b32 s{S_T+3}, s{S_T}, 9")
        e(f"s_add_u32 s{S_T+3}, s{S_T+3}, s{S_WSB}")
        e(f"s_add_u32 s{S_T+3}, s{S_T+3}, {WS_STAT}")
        e(f"buffer_store_dwordx2 v[{V_M}:{V_M+1}], v{A8}, s[{SRD_WS}:{SRD_WS+3}], s{S_T+3} offen sc1")
        for rq in range(8):
            so = S_T + 1 + (rq >> 2)
            e(f"buffer_store_dwordx4 v[{V_O+4*rq}:{V_O+4*rq+3}], v{A16}, s[{SRD_WS}:{SRD_WS+3}], s{so} offen offset:{(rq & 3)*1024} sc1")
        e(f"v_mov_b32 v{V_TK}, s{S_GOT}")
        e("s_waitcnt vmcnt(0)")
        e("s_mov_b64 exec, 1")
        e(f"buffer_atomic_or v{V_TK}, v{V_ZERO}, s[{SRD_WS}:{SRD_WS+3}], s{S_CTR} offen")
        e("s_mov_b64 exec, -1")
        if a.stamps:
            self.stamp(4)
            e(f"s_mov_b32 s{S_T+9}, 0")
            e("s_branch L_fin")
        else:
            e("s_endpgm")

        c("last arriver: fetch each partial as soon as its done bit shows up")
        lab("L_last")
        e(f"s_cmp_eq_u32 s{S_GOT}, 0xf00")
        e("s_cbranch_scc1 L_combine")
        c("(a refresh of the counter is already in flight from the last hook)")
        lab("L_wait_done")
        refresh("L_combine")
        self.spin_guard()
        e("s_branch L_wait_done")
        lab("L_combine")
        self.stamp(4)
        e(f"v_mov_b32 v{S}, v{V_M}")
        e(f"v_mov_b32 v{S+1}, v{V_L}")
        e(f"s_lshl_b32 s{S_T+8}, s{S_CI}, 7")
        c("every stats load is older than the 8 youngest loads")
        e("s_waitcnt vmcnt(8)")
        e(f"v_max_f32 v{T}, v{S}, v{S+2}")
        e(f"v_max3_f32 v{V_M}, v{T}, v{S+4}, v{S+6}")
        F = [S + 8, S + 10, S + 12, S + 14]
        for i in range(4):
            e(f"v_sub_f32 v{F[i]}, v{S+2*i}, v{V_M}")
        for i in range(4):
            e(f"v_exp_f32 v{F[i]}, v{F[i]}")
        e("s_nop 0")
        for i in range(4):
            e(f"v_mul_f32 v{F[i]+1}, v{F[i]}, v{S+2*i+1}")
        e(f"v_add_f32 v{T}, v{F[0]+1}, v{F[1]+1}")
        e(f"v_add_f32 v{T+1}, v{F[2]+1}, v{F[3]+1}")
        e(f"v_add_f32 v{V_L}, v{T}, v{T+1}")
        e(f"v_rcp_f32 v{V_ALPHA}, v{V_L}")
        e("s_nop 0")
        for i in range(4):
            e(f"v_mul_f32 v{F[i]}, v{F[i]}, v{V_ALPHA}")
        src = [V_O, V_X, V_X + 32, V_X + 64]
        for i in range(4):
            if i == 1:
                e("s_waitcnt vmcnt(0)")
            for r in range(0, 32, 2):
                self.pkmul(src[i] + r, F[i])
            if i == 1:
                for r in range(0, 32, 2):
                    self.pkadd(V_O + r, V_O + r, src[1] + r)
        for g8 in range(8):
            for r in (4 * g8, 4 * g8 + 2):
                self.pkadd(src[2] + r, src[2] + r, src[3] + r)
            for r in (4 * g8, 4 * g8 + 2):
                self.pkadd(V_O + r, V_O + r, src[2] + r)
            rr = V_X + 2 * g8
            e(f"v_cvt_pk_bf16_f32 v{rr}, v{V_O+4*g8}, v{V_O+4*g8+1}")
            e(f"v_cvt_pk_bf16_f32 v{rr+1}, v{V_O+4*g8+2}, v{V_O+4*g8+3}")
            e(f"buffer_store_dwordx2 v[{rr}:{rr+1}], v{AOUT}, s[{SRD_OUT}:{SRD_OUT+3}], s{S_T+8} offen offset:{g8*16}")
        c("nobody touches this counter any more: leave it zero (every launch re-zeroes it anyway)")
        e("s_mov_b64 exec, 1")
        e(f"buffer_store_dword v{V_ZERO}, v{V_ZERO}, s[{SRD_WS}:{SRD_WS+3}], s{S_CTR} offen sc1")
        e("s_mov_b64 exec, -1")
        if a.stamps:
            e("s_waitcnt vmcnt(0)")
            e(f"s_mov_b32 s{S_T+9}, 1")
            lab("L_fin")
            e(f"s_add_u32 s{S_T+7}, s{S_CI}, 1")
            self.stamp_store7(f"s{S_T+7}")
        lab("L_end")
        e("s_endpgm")

        c("---- end-of-stream hooks, run at units NU-8, NU-6, NU-4, NU-2 (out of line) ----")
        lab("L_hook")
        e(f"s_cmp_lg_u32 s{S_U}, {NU - 8}")
        e("s_cbranch_scc1 L_hook2")
        c("NU-8: final (m, l) of both producers -> merge factors, M, L")
        self.poll(str(NT // 2 + 2), sreg=S_PD0, off=8)
        self.poll(str(NT // 2 + 2), sreg=S_PD1, off=12)
        e(f"v_and_b32 v{T}, 31, v{V_LANE}")
        e(f"v_lshlrev_b32 v{T}, 3, v{T}")
        e(f"v_add_u32 v{T}, {LDS_STAT}, v{T}")
        e(f"ds_read_b64 v[{S}:{S+1}], v{T}")
        e(f"ds_read_b64 v[{S+2}:{S+3}], v{T} offset:256")
        e("s_waitcnt lgkmcnt(0)")
        e(f"v_max_f32 v{V_M}, v{S}, v{S+2}")
        e(f"v_sub_f32 v{V_F0}, v{S}, v{V_M}")
        e(f"v_sub_f32 v{V_F1}, v{S+2}, v{V_M}")
        e(f"v_exp_f32 v{V_F0}, v{V_F0}")
        e(f"v_exp_f32 v{V_F1}, v{V_F1}")
        e("s_nop 0")
        e(f"v_mul_f32 v{S+1}, v{S+1}, v{V_F0}")
        e(f"v_mul_f32 v{S+3}, v{S+3}, v{V_F1}")
        e(f"v_add_f32 v{V_L}, v{S+1}, v{S+3}")
        e("s_branch L_hook_done")
        lab("L_hook2")
        e(f"s_cmp_lg_u32 s{S_U}, {NU - 4}")
        e("s_cbranch_scc1 L_hook3")
        c("NU-4: take the arrival ticket")
        e(f"v_mov_b32 v{V_TK}, 1")
        e("s_mov_b64 exec, 1")
        e(f"buffer_atomic_add v{V_TK}, v{V_ZERO}, s[{SRD_WS}:{SRD_WS+3}], s{S_CTR} offen sc0")
        e("s_mov_b64 exec, -1")
        e("s_branch L_hook_done")
        lab("L_hook3")
        e(f"s_cmp_lg_u32 s{S_U}, {NU - 2}")
        e("s_cbranch_scc1 L_hook_done")
        c("NU-2: read the ticket; the last arriver starts loading what has been published")
        e("s_waitcnt vmcnt(0)")
        e(f"v_readfirstlane_b32 s{S_TKT}, v{V_TK}")
        e("s_nop 0")
        e(f"s_and_b32 s{S_T}, s{S_TKT}, 0xff")
        e(f"s_cmp_lt_u32 s{S_T}, 3")
        e("s_cbranch_scc1 L_hook_done")
        refresh("L_hook_done")
        e("s_branch L_hook_done")

        lab("L_scale0")
        for i in range(0, 32, 2):
            self.pkmul(V_O + i, V_F0)
        c("last arriver: one more look at the counter before the last V tile")
        e(f"s_and_b32 s{S_T}, s{S_TKT}, 0xff")
        e(f"s_cmp_lt_u32 s{S_T}, 3")
        e("s_cbranch_scc1 L_scale0_done")
        e(f"s_cmp_eq_u32 s{S_GOT}, 0xf00")
        e("s_cbranch_scc1 L_scale0_done")
        refresh("L_scale0_done")
        e("s_branch L_scale0_done")

        c("rare: counters not ready yet. Claim the job if nobody has, else wait for whoever did.")
        lab("L_check_loop")
        self.claim_and_init("L_vphase", "L_check_wait")
        lab("L_check_wait")
        e("s_sleep 8")
        self.spin_guard()
        e("s_branch L_check_loop")

        out += "\n".join(self.L) + "\n"
        out += f""".section .rodata,"a"
.p2align 6
.amdhsa_kernel {K}
  .amdhsa_next_free_vgpr {NVGPR}
  .amdhsa_next_free_sgpr 102
  .amdhsa_accum_offset {NVGPR}
  .amdhsa_group_segment_fixed_size 0
  .amdhsa_kernarg_size 72
  .amdhsa_user_sgpr_count 2
  .amdhsa_user_sgpr_kernarg_segment_ptr 1
  .amdhsa_system_sgpr_workgroup_id_x 1
.end_amdhsa_kernel
"""
        return out


def main():
    ap = argparse.ArgumentParser()
    ap.add_argument("-o", default=f"cdna_kernels/{NAME}.s")
    ap.add_argument("--polk", default="nt")
    ap.add_argument("--polv", default="nt")
    ap.add_argument("--polq", default="nt")
    ap.add_argument("--stamps", type=int, default=0)
    ap.add_argument("--group", type=int, default=8)
    ap.add_argument("--ring", type=int, default=3)
    ap.add_argument("--sleep", type=int, default=2)
    ap.add_argument("--spin", type=int, default=400000)
    ap.add_argument("--rmul", type=int, default=13)
    ap.add_argument("--su", default="8,32,80")
    ap.add_argument("--nowg0", type=int, default=0)
    ap.add_argument("--touch", type=int, default=0)
    args = ap.parse_args()
    for n in ("polk", "polv", "polq"):
        v = getattr(args, n)
        setattr(args, n, (" " + v.replace(",", " ")) if v else "")
    open(args.o, "w").write(G(args).gen())


if __name__ == "__main__":
    main()
```

```python
import argparse

from gen import HEADER, NAME, f32bits, CSCALE, CMASK
import gen6
from gen6 import (V_LANE, V_T, V_M, V_L, V_ALPHA, V_ZERO, V_FLAGA, V_RELA, V_BK, V_BV, V_PB, V_AB, V_A8, V_A16,
                  V_AOUT, V_PA, V_AA, V_PDA, V_F0, V_AK, V_AV, V_F1, V_TK, V_F, V_P, V_S, V_O, V_K, V_V, V_X, V_Q,
                  V_LD, NVGPR, S_SPLIT, S_WAVE, S_PAIR, SRD_K, SRD_V, SRD_Q, SRD_TK, S_J, SRD_MSK, SRD_OUT, SRD_WS,
                  SRD_DBG, S_OFF, S_OFF2, S_U, S_C, S_CM, S_SLOT, S_CI, S_NEED, S_LANDED, S_CTR, S_PCNT, S_SPIN,
                  S_T, S_TKT, S_GOT, S_ST, S_PD0, S_PD1, S_WSB, S_ISS, S_TB, NU, LDS_RING, LDS_P, LDS_AL, LDS_FLAG,
                  LDS_STAT, LDS_TOTAL, LDS_Q, LDS_TREE, WS_PAIR_SH, WS_STAT, WS_CTR, WS_STAMP)

assert gen6.N1 == 12 and gen6.NPS == 52
NT = 64
NPK = 12
NPS = 52
V_PK = 144
V_PKA = 240
V_MSK = 64
V_MT = 68
V_H = 96
V_HS = 112
V_XS = V_X + 64
GATE1 = 16
GATE2 = 48


class G(gen6.G):
    def stamp_index(self):
        pass

    def stamp_store7(self, idx_sreg_expr):
        if not self.a.stamps:
            return
        e = self.e
        e("s_memtime s[98:99]")
        self.stamp(5)
        e(f"s_getreg_b32 s{S_T}, hwreg(HW_REG_XCC_ID)")
        e(f"s_mul_i32 s{S_T+2}, s2, 5")
        e(f"s_add_u32 s{S_T+2}, s{S_T+2}, {idx_sreg_expr}")
        e(f"s_lshl_b32 s{S_T+2}, s{S_T+2}, 6")
        e(f"s_add_u32 s{S_T+2}, s{S_T+2}, {WS_STAMP}")
        for i in range(6):
            e(f"v_mov_b32 v{V_S+i}, s{S_ST+2*i}")
        e(f"v_mov_b32 v{V_S+6}, s{S_T}")
        e(f"v_mov_b32 v{V_S+7}, s{S_T+9}")
        e(f"v_mov_b32 v{V_S+8}, s96")
        e(f"v_mov_b32 v{V_S+9}, s98")
        e(f"v_mov_b32 v{V_S+10}, 0")
        e(f"v_mov_b32 v{V_S+11}, s{S_SPIN}")
        e(f"v_mov_b32 v{V_T}, 0")
        e("s_mov_b64 exec, 1")
        for q in range(3):
            e(f"buffer_store_dwordx4 v[{V_S+4*q}:{V_S+4*q+3}], v{V_T}, s[{SRD_WS}:{SRD_WS+3}], s{S_T+2} offen offset:{16*q}")
        e("s_mov_b64 exec, -1")

    def p_addrs7(self):
        e = self.e
        e(f"s_add_u32 s{S_T}, s{S_J}, {NPS - NPK}")
        e(f"s_sub_u32 s{S_T+1}, s{S_J}, {NPK}")
        e(f"s_cmp_lt_u32 s{S_J}, {NPK}")
        e(f"s_cselect_b32 s{S_T}, s{S_T}, s{S_T+1}")
        e(f"s_lshl_b32 s{S_T+1}, s{S_T}, 11")
        e(f"s_lshl_b32 s{S_T}, s{S_T}, 7")
        e(f"v_add_u32 v{V_PA}, s{S_T+1}, v{V_PB}")
        e(f"v_add_u32 v{V_AA}, s{S_T}, v{V_AB}")

    def pv7(self, oset, psrc):
        for ks in range(2):
            for dtl in range(2):
                o = V_O + 32 * oset + 16 * dtl
                r = V_V + 8 * ks + 4 * dtl
                self.e(f"v_mfma_f32_32x32x16_bf16 v[{o}:{o+15}], v[{r}:{r+3}], v[{psrc+4*ks}:{psrc+4*ks+3}], v[{o}:{o+15}]")

    def release_const(self, val):
        self.e(f"v_mov_b32 v{V_F}, {val}")
        self.e(f"ds_write_b32 v{V_RELA}, v{V_F}")

    def gen(self):
        a = self.a
        e, lab, c = self.e, self.lab, self.c
        T = V_T
        S = V_S
        Gp, R = a.group, a.ring
        GPU = 16 // Gp
        K = NAME + "_kernel"
        out = HEADER + f"; @launch grid=(256,1,1) block=(448,1,1) lds={LDS_TOTAL}\n"
        out += '.amdgcn_target "amdgcn-amd-amdhsa--gfx950"\n'
        out += "".join("; " + ln + "\n" for ln in __doc__.strip().splitlines()[2:])
        out += '.text\n'
        out += f".globl {K}\n.p2align 8\n.type {K},@function\n{K}:\n"

        e("s_cmp_ge_u32 s2, 256")
        e("s_cbranch_scc1 L_end")
        if a.stamps:
            e("s_memtime s[96:97]")
        self.stamp(0)
        e("s_load_dwordx16 s[4:19], s[0:1], 0")
        e("s_load_dwordx2 s[20:21], s[0:1], 64")
        e(f"v_lshrrev_b32 v{T}, 6, v0")
        e(f"v_and_b32 v{V_LANE}, 63, v0")
        e(f"v_readfirstlane_b32 s{S_WAVE}, v{T}")
        e(f"v_lshrrev_b32 v{T+1}, 5, v{V_LANE}")
        e(f"v_and_b32 v{T+2}, 31, v{V_LANE}")
        e(f"s_and_b32 s{S_PAIR}, s2, 63")
        e(f"s_lshr_b32 s{S_SPLIT}, s2, 6")
        e(f"v_mov_b32 v{V_FLAGA}, {LDS_FLAG}")
        e(f"v_mov_b32 v{V_ZERO}, 0")
        e(f"s_mov_b32 s{S_SPIN}, {a.spin}")
        if a.stamps:
            e(f"s_mov_b32 s{S_T+9}, 0")
        e(f"s_cmp_lg_u32 s{S_WAVE}, 0")
        e("s_cbranch_scc1 L_notloader")

        c("================= loader wave =================")
        e("s_setprio 3")
        self.dma_offsets(V_LD, V_LD + 8)
        c("tile t of split s = rows of 16 KiB block 4*((t + 13*pair) & 63) + s of the pair")
        nrec = (4 << 20) - 49152
        e(f"s_mul_i32 s{S_TB}, s{S_PAIR}, {a.rmul}")
        e(f"s_and_b32 s{S_OFF}, s{S_TB}, 63")
        e(f"s_lshl_b32 s{S_OFF}, s{S_OFF}, 16")
        e(f"s_add_u32 s{S_OFF2}, s{S_OFF}, 8192")
        e(f"s_lshl_b32 s{S_T}, s{S_PAIR}, 22")
        e(f"s_lshl_b32 s{S_T+1}, s{S_SPLIT}, 14")
        e(f"s_add_u32 s{S_T}, s{S_T}, s{S_T+1}")
        e(f"s_mov_b32 s{S_SLOT}, 0")
        e("s_waitcnt lgkmcnt(0)")
        self.srd_off(SRD_K, 6, 7, S_T, nrec)
        soffs = [f"s{S_OFF}", f"s{S_OFF2}"]

        def m0_slot(q):
            e(f"s_add_u32 m0, s{S_SLOT}, {LDS_RING + q*4096}")

        def m0_abs(base):
            def f(q):
                e(f"s_mov_b32 m0, {base + q*4096}")
            return f

        def group(kind, g):
            for p in range(g * Gp, (g + 1) * Gp):
                if kind == "K":
                    self.piece("K", p, SRD_K, soffs, m0_slot, V_LD, a.polk)
                else:
                    self.piece("V", p, SRD_V, soffs, m0_slot, V_LD + 8, a.polv)

        def publish():
            e(f"s_waitcnt vmcnt({(R-1)*Gp})")
            e(f"s_sub_i32 s{S_T+2}, s{S_ISS}, {R-1}")
            e(f"s_max_i32 s{S_T+2}, s{S_T+2}, 0")
            e(f"v_mov_b32 v{V_F}, s{S_T+2}")
            e(f"ds_write_b32 v{V_FLAGA}, v{V_F}")
            e(f"s_add_u32 s{S_ISS}, s{S_ISS}, 1")

        c("unit 0 goes out immediately")
        for g in range(GPU):
            group("K", g)
        self.srd_off(SRD_V, 8, 9, S_T, nrec)
        if a.stamps:
            self.srd(SRD_WS, 20, 21, 64 << 20)
        e(f"v_mov_b32 v{V_ALPHA}, 0")
        e(f"ds_write_b64 v{V_FLAGA}, v[{V_ALPHA}:{V_ALPHA+1}]")
        e(f"ds_write_b64 v{V_FLAGA}, v[{V_ALPHA}:{V_ALPHA+1}] offset:8")
        e(f"s_mov_b32 s{S_ISS}, {GPU}")
        e(f"s_mov_b32 s{S_U}, 1")
        e(f"s_mov_b32 s{S_J}, 1")
        e("s_waitcnt lgkmcnt(0)")
        e("s_barrier")

        def ld_phase(kind):
            lab(f"L_ld_{kind}")
            e(f"s_add_u32 s{S_OFF}, s{S_TB}, s{S_J}")
            e(f"s_and_b32 s{S_OFF}, s{S_OFF}, 63")
            e(f"s_lshl_b32 s{S_OFF}, s{S_OFF}, 16")
            e(f"s_add_u32 s{S_OFF2}, s{S_OFF}, 8192")
            self.slot_of_u(early=(kind == "K"))
            c("slot free?  every wave has released all units below u-2 (u-5 in the 6-slot start-up ring)")
            e(f"s_cmp_lt_u32 s{S_U}, {gen6.N1}")
            e(f"s_cselect_b32 s{S_T+4}, 5, 2")

            def free_estimate():
                e(f"ds_read_b128 v[{V_S}:{V_S+3}], v{V_FLAGA} offset:16")
                e(f"ds_read_b64 v[{V_S+4}:{V_S+5}], v{V_FLAGA} offset:32")
                e("s_waitcnt lgkmcnt(0)")
                e(f"v_min3_u32 v{V_S}, v{V_S}, v{V_S+1}, v{V_S+2}")
                e(f"v_min3_u32 v{V_S+3}, v{V_S+3}, v{V_S+4}, v{V_S+5}")
                e(f"v_min_u32 v{V_S}, v{V_S}, v{V_S+3}")
                e("s_nop 0")
                e(f"v_readfirstlane_b32 s{S_T}, v{V_S}")
                e("s_nop 0")
                e(f"s_add_u32 s{S_T}, s{S_T}, s{S_T+4}")
            free_estimate()
            publish()
            lab(f"L_ld_chk{kind}")
            e(f"s_cmp_ge_u32 s{S_T}, s{S_U}")
            e(f"s_cbranch_scc1 L_ld_free{kind}")
            if a.stamps:
                e(f"s_mov_b32 s{S_T+3}, 1")
                e(f"s_cmp_ge_u32 s{S_U}, 8")
                e(f"s_cselect_b32 s{S_T+3}, 0x100, s{S_T+3}")
                e(f"s_cmp_ge_u32 s{S_U}, 28")
                e(f"s_cselect_b32 s{S_T+3}, 0x10000, s{S_T+3}")
                e(f"s_cmp_ge_u32 s{S_U}, 62")
                e(f"s_cselect_b32 s{S_T+3}, 0x1000000, s{S_T+3}")
                e(f"s_add_u32 s{S_T+9}, s{S_T+9}, s{S_T+3}")
            self.spin_guard()
            free_estimate()
            e(f"s_branch L_ld_chk{kind}")
            lab(f"L_ld_free{kind}")
            if a.stamps:
                su = [int(v) for v in a.su.split(",")]
                for ti, si in ((su[0], 1), (su[1], 2), (su[2], 4)):
                    l2 = self.newlab("pst")
                    e(f"s_cmp_lg_u32 s{S_U}, {ti}")
                    e(f"s_cbranch_scc1 {l2}")
                    self.stamp(si)
                    lab(l2)
            group(kind, 0)
            for g in range(1, GPU):
                publish()
                group(kind, g)
            e(f"s_add_u32 s{S_U}, s{S_U}, 1")
            e(f"s_add_u32 s{S_J}, s{S_J}, 1")
            e(f"s_cmp_lt_u32 s{S_J}, {NT}")
            e(f"s_cbranch_scc1 L_ld_{kind}")
            e(f"s_mov_b32 s{S_J}, 0")

        assert R - 1 <= 2 * GPU
        ld_phase("K")
        ld_phase("V")
        c("drain")
        for r in range(R - 1, -1, -1):
            e(f"s_waitcnt vmcnt({r*Gp})")
            e(f"v_mov_b32 v{V_F}, {NU*GPU - r}")
            e(f"ds_write_b32 v{V_FLAGA}, v{V_F}")
        self.stamp(3)
        self.stamp_store7("0")
        e("s_endpgm")

        lab("L_notloader")
        e(f"v_lshlrev_b32 v{V_A16}, 4, v{V_LANE}")
        e(f"v_add_u32 v{V_PB}, {LDS_P}, v{V_A16}")
        e(f"v_lshlrev_b32 v{V_AB}, 2, v{T+2}")
        e(f"v_add_u32 v{V_AB}, {LDS_AL}, v{V_AB}")
        e(f"s_mov_b32 s{S_LANDED}, 0")
        e(f"s_cmp_ge_u32 s{S_WAVE}, 3")
        e("s_cbranch_scc1 L_pvwave")

        c("================= producer waves =================")
        e(f"s_sub_u32 s{S_CI}, s{S_WAVE}, 1")
        e(f"s_lshl_b32 s{S_T}, s{S_CI}, 2")
        e(f"s_add_u32 s{S_T+1}, s{S_T}, {LDS_FLAG + 32}")
        e(f"v_mov_b32 v{V_RELA}, s{S_T+1}")
        e(f"s_add_u32 s{S_T+1}, s{S_T}, {LDS_FLAG + 8}")
        e(f"v_mov_b32 v{V_PDA}, s{S_T+1}")
        c("producer p never reads units below p")
        self.release(S_CI)
        e(f"v_and_b32 v{T+3}, 15, v{T+2}")
        e(f"v_xor_b32 v{T+3}, v{T+3}, v{T+1}")
        e(f"v_lshlrev_b32 v{T+3}, 4, v{T+3}")
        e(f"v_lshl_or_b32 v{V_BK}, v{T+2}, 9, v{T+3}")
        e(f"s_mov_b32 s{S_C}, 0x{f32bits(CSCALE):08x}")
        e(f"s_mov_b32 s{S_CM}, 0x{f32bits(CMASK):08x}")
        e(f"v_mov_b32 v{V_M}, 0xff800000")
        e(f"v_mov_b32 v{V_L}, 0")
        c("tree duty: producer 0 of split 3")
        e(f"s_xor_b32 s{S_T+8}, s{S_SPLIT}, 3")
        e(f"s_or_b32 s{S_T+8}, s{S_T+8}, s{S_CI}")
        e("s_waitcnt lgkmcnt(0)")
        e(f"s_cmp_lg_u32 s{S_T+8}, 0")
        e("s_cbranch_scc1 L_p_nomask")
        self.srd(SRD_MSK, 14, 15, 4096)
        e(f"v_and_b32 v{T+6}, 15, v{V_LANE}")
        e(f"v_lshlrev_b32 v{T+6}, 5, v{T+6}")
        e(f"v_lshl_or_b32 v{T+6}, v{T+1}, 3, v{T+6}")
        e(f"s_lshr_b32 s{S_T+4}, s{S_PAIR}, 3")
        e(f"s_lshl_b32 s{S_T+4}, s{S_T+4}, 9")
        e(f"buffer_load_dwordx2 v[{V_MSK}:{V_MSK+1}], v{T+6}, s[{SRD_MSK}:{SRD_MSK+3}], s{S_T+4} offen")
        e(f"buffer_load_dwordx2 v[{V_MSK+2}:{V_MSK+3}], v{T+6}, s[{SRD_MSK}:{SRD_MSK+3}], s{S_T+4} offen offset:16")
        lab("L_p_nomask")
        e("s_barrier")
        self.k_addrs(str(LDS_Q))
        self.poll("4", sreg=S_NEED, off=4, precheck=False, sleep=1)
        self.read_k(V_Q)
        e(f"s_cmp_lg_u32 s{S_T+8}, 0")
        e("s_cbranch_scc1 L_p_notree")
        c("---- tree tile (16 keys, masked): P goes to the start of the tree staging area ----")
        self.k_addrs(str(LDS_TREE))
        self.read_k()
        e("s_waitcnt vmcnt(0)")
        for i in range(4):
            e(f"v_lshlrev_b32 v{V_MT+2*i}, 16, v{V_MSK+i}")
            e(f"v_and_b32 v{V_MT+2*i+1}, 0xffff0000, v{V_MSK+i}")
        for i in range(8):
            e(f"v_sub_f32 v{V_MT+i}, 1.0, v{V_MT+i}")
        for i in range(8):
            e(f"v_mul_f32 v{V_MT+i}, s{S_CM}, v{V_MT+i}")
        e("s_waitcnt lgkmcnt(0)")
        for kk in range(16):
            self.qk_mfma(kk)
        e("s_nop 15")
        for i in range(8):
            e(f"v_fma_f32 v{S+i}, v{S+i}, s{S_C}, v{V_MT+i}")
        e(f"v_max3_f32 v{T}, v{S}, v{S+1}, v{S+2}")
        e(f"v_max3_f32 v{T+1}, v{S+3}, v{S+4}, v{S+5}")
        e(f"v_max3_f32 v{T}, v{T}, v{S+6}, v{S+7}")
        e(f"v_max_f32 v{T}, v{T}, v{T+1}")
        self.xhalf("v_max_f32", V_M, T, T + 1)
        for i in range(8):
            e(f"v_sub_f32 v{S+i}, v{S+i}, v{V_M}")
        for i in range(8):
            e(f"v_exp_f32 v{S+i}, v{S+i}")
        e("s_nop 0")
        e(f"v_add_f32 v{V_L}, v{S}, v{S+1}")
        for i in range(2, 8):
            e(f"v_add_f32 v{V_L}, v{V_L}, v{S+i}")
        for i in range(4):
            e(f"v_cvt_pk_bf16_f32 v{V_P+i}, v{S+2*i}, v{S+2*i+1}")
        e(f"ds_write_b128 v{V_PB}, v[{V_P}:{V_P+3}] offset:{LDS_TREE - LDS_P}")
        lab("L_p_notree")
        c("count 1 = start-up work (tree tile, if any) done")
        e(f"s_mov_b32 s{S_PCNT}, 1")
        e(f"v_mov_b32 v{V_TK}, 1")
        e("s_waitcnt lgkmcnt(0)")
        e(f"ds_write_b32 v{V_PDA}, v{V_TK}")
        e(f"s_mov_b32 s{S_J}, s{S_CI}")
        self.L.append(".p2align 6")
        lab("L_kloop")
        e(f"s_mov_b32 s{S_U}, s{S_J}")
        self.slot_of_u()
        self.k_addrs(f"s{S_SLOT}")
        self.p_addrs7()
        e(f"s_add_u32 s{S_NEED}, s{S_U}, 1")
        e(f"s_mul_i32 s{S_NEED}, s{S_NEED}, {GPU}")
        e(f"s_add_u32 s{S_T+2}, s{S_U}, 2")
        e(f"s_cmp_ge_u32 s{S_T+2}, {NT}")
        e(f"s_cselect_b32 s{S_T+2}, {NU}, s{S_T+2}")
        self.poll(f"s{S_NEED}", sleep=1)
        self.read_k()
        e(f"v_mov_b32 v{V_F}, s{S_T+2}")
        for kk in range(16):
            if kk < 8:
                e(f"s_waitcnt lgkmcnt({15 - kk})")
            elif kk == 8:
                e("s_waitcnt lgkmcnt(0)")
                e(f"ds_write_b32 v{V_RELA}, v{V_F}")
            self.qk_mfma(kk)
        e(f"s_add_u32 s{S_PCNT}, s{S_PCNT}, 1")
        e(f"v_mov_b32 v{V_TK}, s{S_PCNT}")
        e("s_nop 15")
        self.softmax()
        e("s_waitcnt lgkmcnt(0)")
        e(f"ds_write_b32 v{V_PDA}, v{V_TK}")
        e(f"s_add_u32 s{S_J}, s{S_J}, 2")
        e(f"s_cmp_lt_u32 s{S_J}, {NT}")
        e("s_cbranch_scc1 L_kloop")
        c("publish (m, l) of this producer")
        e(f"v_mov_b32 v{T+2}, v{V_M}")
        e(f"v_mov_b32 v{T}, v{V_L}")
        self.xhalf("v_add_f32", T + 3, T, T + 1)
        e(f"s_lshl_b32 s{S_T}, s{S_CI}, 8")
        e(f"s_add_u32 s{S_T}, s{S_T}, {LDS_STAT}")
        e(f"v_and_b32 v{T}, 31, v{V_LANE}")
        e(f"v_lshlrev_b32 v{T}, 3, v{T}")
        e(f"v_add_u32 v{T}, s{S_T}, v{T}")
        e(f"ds_write_b64 v{T}, v[{T+2}:{T+3}]")
        e(f"v_mov_b32 v{V_TK}, {NT//2 + 2}")
        e("s_waitcnt lgkmcnt(0)")
        e(f"ds_write_b32 v{V_PDA}, v{V_TK}")
        e("s_waitcnt lgkmcnt(0)")
        e("s_endpgm")

        lab("L_pvwave")
        c("================= PV waves =================")
        e(f"s_sub_u32 s{S_CI}, s{S_WAVE}, 3")
        e(f"s_lshl_b32 s{S_T}, s{S_CI}, 2")
        e(f"s_add_u32 s{S_T+1}, s{S_T}, {LDS_FLAG + 16}")
        e(f"v_mov_b32 v{V_RELA}, s{S_T+1}")
        self.release_const(GATE1)
        c("stage Q (and the tree K/V of split 3) into LDS")
        self.dma_offsets(V_PK, V_PK + 8)
        e(f"s_lshl_b32 s{S_T+1}, s{S_PAIR}, 14")
        e(f"s_lshl_b32 s{S_T+2}, s{S_PAIR}, 13")
        e(f"s_and_b32 s{S_T+3}, s{S_CI}, 1")
        e(f"s_mul_i32 s{S_T+3}, s{S_T+3}, {128 | 4096}")
        for i in range(4):
            e(f"v_xor_b32 v{V_PK+12+i}, s{S_T+3}, v{V_PK+i}")
        e(f"s_lshr_b32 s{S_T+4}, s{S_CI}, 1")
        e(f"s_lshl_b32 s{S_T+4}, s{S_T+4}, 13")
        e(f"s_lshl_b32 s{S_T+5}, s{S_CI}, 12")
        e("s_waitcnt lgkmcnt(0)")
        self.srd_off(SRD_Q, 4, 5, S_T + 1, 16384)
        e(f"s_add_u32 m0, s{S_T+5}, {LDS_Q}")
        e("s_nop 0")
        for i in range(4):
            e(f"buffer_load_dwordx4 v{V_PK+12+i}, s[{SRD_Q}:{SRD_Q+3}], s{S_T+4} offen offset:{i*1024}{a.polq} lds")
        e(f"s_cmp_lg_u32 s{S_SPLIT}, 3")
        e("s_cbranch_scc1 L_c_notree0")
        e(f"s_cmp_lg_u32 s{S_CI}, 2")
        e("s_cbranch_scc1 L_c_tk_done")
        self.srd_off(SRD_TK, 10, 11, S_T + 2, 8192)
        for j in range(8):
            self.piece("K", j, SRD_TK, ["0"], m0_abs(LDS_TREE), V_PK, a.polq)
        lab("L_c_tk_done")
        e(f"s_cmp_lg_u32 s{S_CI}, 3")
        e("s_cbranch_scc1 L_c_notree0")
        self.srd_off(SRD_TK, 12, 13, S_T + 2, 8192)
        for j in range(8):
            self.piece("V", j, SRD_TK, ["0"], m0_abs(LDS_TREE + 8192), V_PK + 8, a.polq)
        lab("L_c_notree0")
        e("s_barrier")
        self.stamp(1)
        self.stamp(2)
        self.srd_off(SRD_OUT, 16, 17, S_T + 1, 16384)
        self.srd(SRD_WS, 20, 21, 64 << 20)
        self.srd(SRD_DBG, 18, 19, 256)
        e(f"v_bfe_u32 v{T+3}, v{V_LANE}, 2, 2")
        e(f"v_lshl_add_u32 v{T+4}, v{T+1}, 2, v{T+3}")
        e(f"v_lshlrev_b32 v{T+4}, 9, v{T+4}")
        e(f"v_lshl_or_b32 v{T+4}, v{T+3}, 6, v{T+4}")
        e(f"v_bfe_u32 v{T+3}, v{V_LANE}, 4, 1")
        e(f"v_lshl_or_b32 v{T+4}, v{T+3}, 5, v{T+4}")
        e(f"v_and_b32 v{T+3}, 3, v{V_LANE}")
        e(f"v_lshl_or_b32 v{T+4}, v{T+3}, 3, v{T+4}")
        c("d-tiles 2c, 2c+1: xor (dt&3)<<6, + (dt>>2)*256")
        e(f"s_and_b32 s{S_T}, s{S_CI}, 1")
        e(f"s_lshl_b32 s{S_T}, s{S_T}, 7")
        e(f"s_lshr_b32 s{S_T+1}, s{S_CI}, 1")
        e(f"s_lshl_b32 s{S_T+1}, s{S_T+1}, 8")
        e(f"s_or_b32 s{S_T}, s{S_T}, s{S_T+1}")
        e(f"v_xor_b32 v{V_BV}, s{S_T}, v{T+4}")
        e(f"v_lshlrev_b32 v{V_A8}, 3, v{V_LANE}")
        c("output address: q = l&31, d = 64*c + 8*g8 + 4*h")
        e(f"v_lshlrev_b32 v{V_AOUT}, 9, v{T+2}")
        e(f"v_lshl_or_b32 v{V_AOUT}, v{T+1}, 3, v{V_AOUT}")
        e(f"s_mov_b32 s{S_PD0}, 0")
        e(f"s_mov_b32 s{S_PD1}, 0")
        e(f"s_add_u32 s{S_T}, s{S_SPLIT}, 8")
        e(f"s_lshl_b32 s{S_GOT}, 1, s{S_T}")
        e(f"s_mov_b32 s{S_TKT}, 0")
        e(f"s_lshl_b32 s{S_WSB}, s{S_PAIR}, {WS_PAIR_SH}")
        e(f"s_lshl_b32 s{S_CTR}, s{S_CI}, 8")
        e(f"s_add_u32 s{S_CTR}, s{S_CTR}, s{S_WSB}")
        e(f"s_add_u32 s{S_CTR}, s{S_CTR}, {WS_CTR}")
        if a.touch:
            c("PV wave 3 touches every page the workgroup needs later: warms the address translation caches")
            e(f"s_cmp_lg_u32 s{S_CI}, 3")
            e("s_cbranch_scc1 L_notouch")
            e(f"s_lshl_b32 s{S_T}, s{S_PAIR}, 22")
            self.srd_off(SRD_K, 6, 7, S_T, 4 << 20)
            self.srd_off(SRD_V, 8, 9, S_T, 4 << 20)
            e(f"v_lshlrev_b32 v{T+3}, 19, v{V_LANE}")
            e(f"s_add_u32 s{S_T}, s{S_WSB}, {gen6.WS_SPARE + 4096}")
            e("s_mov_b64 exec, 0xff")
            e(f"buffer_load_dword v{S}, v{T+3}, s[{SRD_K}:{SRD_K+3}], 0 offen nt")
            e(f"buffer_load_dword v{S+1}, v{T+3}, s[{SRD_V}:{SRD_V+3}], 0 offen nt")
            e("s_mov_b64 exec, 1")
            e(f"buffer_load_dword v{S+2}, v{V_ZERO}, s[{SRD_WS}:{SRD_WS+3}], s{S_T} offen nt")
            e(f"buffer_load_dword v{S+3}, v{V_ZERO}, s[{SRD_OUT}:{SRD_OUT+3}], 0 offen nt")
            e("s_mov_b64 exec, -1")
            lab("L_notouch")
        for i in range(64):
            e(f"v_mov_b32 v{V_O+i}, 0")
        e(f"v_mov_b32 v{V_TK}, 1")
        c("own staged pieces landed -> count")
        e("s_waitcnt vmcnt(0)")
        e("s_mov_b64 exec, 1")
        e(f"ds_add_u32 v{V_FLAGA}, v{V_TK} offset:4")
        e("s_mov_b64 exec, -1")
        e(f"s_cmp_lg_u32 s{S_SPLIT}, 3")
        e("s_cbranch_scc1 L_v_notree")
        c("---- tree tile: O set 0 = V_tree^T P_tree^T (P ready implies all staging has landed) ----")
        self.poll("1", sreg=S_PD0, off=8, precheck=False, sleep=2)
        e(f"ds_read_b128 v[{V_P}:{V_P+3}], v{V_PB} offset:{LDS_TREE - LDS_P}")
        self.v_addrs(str(LDS_TREE + 8192))
        self.read_v([0])
        e("s_waitcnt lgkmcnt(0)")
        self.pv([0], 0, first=True)
        lab("L_v_notree")
        self.release_const(GATE2)
        c("counter initialisation: PV wave 2 of workgroup 0 claims d_debug[0] and zeroes all merge counters")
        e(f"s_xor_b32 s{S_T}, s{S_CI}, 2")
        e(f"s_or_b32 s{S_T}, s{S_T}, s2")
        e(f"s_cmp_lg_u32 s{S_T}, {9999 if a.nowg0 else 0}")
        e("s_cbranch_scc1 L_park")
        self.claim_and_init("L_park", "L_park")
        lab("L_park")
        c("---- park the first 12 P tiles in registers ----")
        self.poll(str(NPK // 2 + 1), sreg=S_PD0, off=8, sleep=4)
        self.poll(str(NPK // 2 + 1), sreg=S_PD1, off=12, sleep=4)
        e(f"v_add_u32 v{V_PA}, {(NPS - NPK) * 2048}, v{V_PB}")
        for j in range(NPK):
            e(f"ds_read_b128 v[{V_PK+8*j}:{V_PK+8*j+3}], v{V_PA} offset:{j*2048}")
            e(f"ds_read_b128 v[{V_PK+8*j+4}:{V_PK+8*j+7}], v{V_PA} offset:{j*2048 + 1024}")
            e(f"ds_read_b32 v{V_PKA+j}, v{V_AB} offset:{(NPS - NPK + j) * 128}")
        e("s_waitcnt lgkmcnt(0)")
        self.release_const(NT)
        c("PV wave 2 makes sure the merge counters have been zeroed before the V phase")
        c("(the ring dependency then covers every other wave of the workgroup)")
        e(f"s_cmp_lg_u32 s{S_CI}, 2")
        e("s_cbranch_scc1 L_vphase")
        e(f"s_mov_b32 s{S_NEED}, {32 * GPU}")
        self.poll(f"s{S_NEED}", sleep=8)
        e("s_mov_b64 exec, 1")
        e(f"buffer_load_dword v{V_TK}, v{V_ZERO}, s[{SRD_DBG}:{SRD_DBG+3}], 0 offen sc1")
        e("s_mov_b64 exec, -1")
        e("s_waitcnt vmcnt(0)")
        e(f"v_readfirstlane_b32 s{S_T}, v{V_TK}")
        e("s_nop 0")
        e(f"s_cmp_lg_u32 s{S_T}, 3")
        e("s_cbranch_scc1 L_check_loop")

        lab("L_vphase")
        c("idle until the K phase is nearly over")
        e(f"s_mov_b32 s{S_NEED}, {(NT - 2) * GPU}")
        self.poll(f"s{S_NEED}", sleep=8)
        c("---- V phase, parked tiles ----")
        for j in range(NPK):
            u = NT + j
            st = j & 1
            self.v_addrs(str((u % 3) * 16384))
            e(f"v_mov_b32 v{V_ALPHA}, v{V_PKA+j}")
            for i in range(0, 32, 2):
                self.pkmul(V_O + 32 * st + i, V_ALPHA)
            self.poll(str((u + 1) * GPU), sleep=1)
            self.read_v([0, 1])
            e(f"v_mov_b32 v{V_F}, {u + 1}")
            e("s_waitcnt lgkmcnt(0)")
            e(f"ds_write_b32 v{V_RELA}, v{V_F}")
            self.pv7(st, V_PK + 8 * j)
        c("---- V phase, tiles from LDS ----")
        e(f"s_mov_b32 s{S_J}, {NPK}")
        self.L.append(".p2align 6")
        lab("L_vloop")
        for st in range(2):
            spd = S_PD0 if st == 0 else S_PD1
            e(f"s_add_u32 s{S_U}, s{S_J}, {NT}")
            self.slot_of_u(early=False)
            self.v_addrs(f"s{S_SLOT}")
            self.p_addrs7()
            e(f"s_lshr_b32 s{S_NEED}, s{S_J}, 1")
            e(f"s_add_u32 s{S_NEED}, s{S_NEED}, 2")
            self.poll(f"s{S_NEED}", sreg=spd, off=8 + 4 * st, sleep=2)
            e(f"ds_read_b32 v{V_ALPHA}, v{V_AA}")
            e(f"ds_read_b128 v[{V_P}:{V_P+3}], v{V_PA}")
            e(f"ds_read_b128 v[{V_P+4}:{V_P+7}], v{V_PA} offset:1024")
            if st == 0:
                e(f"s_cmp_ge_u32 s{S_U}, {NU - 8}")
                e("s_cbranch_scc1 L_hook")
                lab("L_hook_done")
            e(f"s_add_u32 s{S_T+2}, s{S_U}, 1")
            e(f"s_mul_i32 s{S_NEED}, s{S_T+2}, {GPU}")
            e("s_waitcnt lgkmcnt(0)")
            for i in range(0, 32, 2):
                self.pkmul(V_O + 32 * st + i, V_ALPHA)
            if st == 1:
                e(f"s_cmp_eq_u32 s{S_U}, {NU - 1}")
                e("s_cbranch_scc1 L_scale0")
                lab("L_scale0_done")
            self.poll(f"s{S_NEED}", sleep=1)
            self.read_v([0, 1])
            e(f"v_mov_b32 v{V_F}, s{S_T+2}")
            e(f"s_add_u32 s{S_J}, s{S_J}, 1")
            e("s_waitcnt lgkmcnt(0)")
            e(f"ds_write_b32 v{V_RELA}, v{V_F}")
            self.pv7(st, V_P)
        e(f"s_cmp_lt_u32 s{S_J}, {NT}")
        e("s_cbranch_scc1 L_vloop")

        self.stamp(3)
        A8, A16, AOUT = V_A8, V_A16, V_AOUT

        def issue_loads(sval):
            for j in range(4):
                skip = self.newlab("nold")
                e(f"s_andn2_b32 s{S_T+5}, s{sval}, s{S_GOT}")
                e(f"s_and_b32 s{S_T+5}, s{S_T+5}, {0x100 << j}")
                e(f"s_cbranch_scc0 {skip}")
                e(f"s_or_b32 s{S_GOT}, s{S_GOT}, {0x100 << j}")
                e(f"s_lshl_b32 s{S_T+3}, s{S_CI}, 10")
                e(f"s_add_u32 s{S_T+3}, s{S_T+3}, s{S_WSB}")
                e(f"s_add_u32 s{S_T+3}, s{S_T+3}, {WS_STAT + j*4096}")
                e(f"buffer_load_dwordx4 v[{V_XS+4*j}:{V_XS+4*j+3}], v{A16}, s[{SRD_WS}:{SRD_WS+3}], s{S_T+3} offen sc1")
                e(f"s_lshl_b32 s{S_T+1}, s{S_CI}, 12")
                e(f"s_add_u32 s{S_T+1}, s{S_T+1}, s{S_WSB}")
                e(f"s_add_u32 s{S_T+1}, s{S_T+1}, {j*16384}")
                for rq in range(4):
                    r = V_X + 16 * j + 4 * rq
                    e(f"buffer_load_dwordx4 v[{r}:{r+3}], v{A16}, s[{SRD_WS}:{SRD_WS+3}], s{S_T+1} offen offset:{rq*1024} sc1")
                lab(skip)

        def refresh(l_done):
            e("s_waitcnt vmcnt(0)")
            e(f"v_readfirstlane_b32 s{S_TKT}, v{V_TK}")
            e("s_nop 0")
            issue_loads(S_TKT)
            e(f"s_cmp_eq_u32 s{S_GOT}, 0xf00")
            e(f"s_cbranch_scc1 {l_done}")
            e("s_mov_b64 exec, 1")
            e(f"buffer_load_dword v{V_TK}, v{V_ZERO}, s[{SRD_WS}:{SRD_WS+3}], s{S_CTR} offen sc1")
            e("s_mov_b64 exec, -1")

        c("---- merge the two accumulator sets (set 0 was scaled while waiting for the last V tile) ----")
        e("s_nop 7")
        e("s_nop 5")
        for i in range(0, 32, 2):
            e(f"v_pk_fma_f32 v[{V_O+i}:{V_O+i+1}], v[{V_O+32+i}:{V_O+33+i}], v[{V_F1}:{V_F1+1}], v[{V_O+i}:{V_O+i+1}] op_sel_hi:[1,0,1]")
        c("---- partial -> fp16 pairs with a per-lane power-of-two scale (11 significant bits kept) ----")
        O = V_O
        for t3 in range(10):
            e(f"v_max3_f32 v{S+t3}, |v{O+3*t3}|, |v{O+3*t3+1}|, |v{O+3*t3+2}|")
        e(f"v_max3_f32 v{S}, v{S}, |v{O+30}|, |v{O+31}|")
        e(f"v_max3_f32 v{S+1}, v{S+1}, v{S+2}, v{S+3}")
        e(f"v_max3_f32 v{S+4}, v{S+4}, v{S+5}, v{S+6}")
        e(f"v_max3_f32 v{S+7}, v{S+7}, v{S+8}, v{S+9}")
        e(f"v_max3_f32 v{S}, v{S}, v{S+1}, v{S+4}")
        e(f"v_max_f32 v{S}, v{S}, v{S+7}")
        e(f"v_frexp_exp_i32_f32 v{S}, v{S}")
        e(f"v_sub_u32 v{S}, 15, v{S}")
        e(f"v_min_i32 v{S}, 100, v{S}")
        e(f"v_sub_u32 v{S+1}, 0, v{S}")
        e(f"v_ldexp_f32 v{V_ALPHA}, 1.0, v{S}")
        e(f"v_ldexp_f32 v{V_HS+2}, 1.0, v{S+1}")
        e(f"v_mov_b32 v{V_HS}, v{V_M}")
        e(f"v_mov_b32 v{V_HS+1}, v{V_L}")
        e(f"v_mov_b32 v{V_HS+3}, 0")
        for i in range(0, 32, 2):
            self.pkmul(O + i, V_ALPHA)
        for i in range(16):
            e(f"v_cvt_pk_f16_f32 v{V_H+i}, v{O+2*i}, v{O+2*i+1}")
        c("---- merge the 4 splits ----")
        e(f"s_and_b32 s{S_T+6}, s{S_TKT}, 0xff")
        e(f"s_cmp_ge_u32 s{S_T+6}, 3")
        e("s_cbranch_scc1 L_last")
        c("not last: publish partial (write-through), then set the done bit")
        e(f"s_lshl_b32 s{S_T}, s{S_SPLIT}, 2")
        e(f"s_add_u32 s{S_T}, s{S_T}, s{S_CI}")
        e(f"s_lshl_b32 s{S_T+1}, s{S_T}, 12")
        e(f"s_add_u32 s{S_T+1}, s{S_T+1}, s{S_WSB}")
        e(f"s_lshl_b32 s{S_T+3}, s{S_T}, 10")
        e(f"s_add_u32 s{S_T+3}, s{S_T+3}, s{S_WSB}")
        e(f"s_add_u32 s{S_T+3}, s{S_T+3}, {WS_STAT}")
        e(f"buffer_store_dwordx4 v[{V_HS}:{V_HS+3}], v{A16}, s[{SRD_WS}:{SRD_WS+3}], s{S_T+3} offen sc1")
        for rq in range(4):
            e(f"buffer_store_dwordx4 v[{V_H+4*rq}:{V_H+4*rq+3}], v{A16}, s[{SRD_WS}:{SRD_WS+3}], s{S_T+1} offen offset:{rq*1024} sc1")
        e(f"v_mov_b32 v{V_TK}, s{S_GOT}")
        e("s_waitcnt vmcnt(0)")
        e("s_mov_b64 exec, 1")
        e(f"buffer_atomic_or v{V_TK}, v{V_ZERO}, s[{SRD_WS}:{SRD_WS+3}], s{S_CTR} offen")
        e("s_mov_b64 exec, -1")
        if a.stamps:
            self.stamp(4)
            e(f"s_mov_b32 s{S_T+9}, 0")
            e("s_branch L_fin")
        else:
            e("s_endpgm")

        c("last arriver: own partial goes to register block [split]; fetch the others as their done bits show up")
        lab("L_last")
        for j in range(4):
            nxt = f"L_own{j+1}" if j < 3 else None
            if j:
                lab(f"L_own{j}")
            if nxt:
                e(f"s_cmp_lg_u32 s{S_SPLIT}, {j}")
                e(f"s_cbranch_scc1 {nxt}")
            for i in range(16):
                e(f"v_mov_b32 v{V_X+16*j+i}, v{V_H+i}")
            for i in range(3):
                e(f"v_mov_b32 v{V_XS+4*j+i}, v{V_HS+i}")
            if nxt:
                e("s_branch L_own_done")
        lab("L_own_done")
        e(f"s_cmp_eq_u32 s{S_GOT}, 0xf00")
        e("s_cbranch_scc1 L_combine")
        c("(a refresh of the counter is already in flight from the last hook)")
        lab("L_wait_done")
        refresh("L_combine")
        self.spin_guard()
        e("s_branch L_wait_done")
        lab("L_combine")
        self.stamp(4)
        e(f"s_lshl_b32 s{S_T+8}, s{S_CI}, 7")
        c("every stats load is older than the 4 youngest loads")
        e("s_waitcnt vmcnt(4)")
        e(f"v_max_f32 v{T}, v{V_XS}, v{V_XS+4}")
        e(f"v_max3_f32 v{V_M}, v{T}, v{V_XS+8}, v{V_XS+12}")
        F = [S, S + 1, S + 2, S + 3]
        for j in range(4):
            e(f"v_sub_f32 v{F[j]}, v{V_XS+4*j}, v{V_M}")
        for j in range(4):
            e(f"v_exp_f32 v{F[j]}, v{F[j]}")
        e("s_nop 0")
        e(f"v_mul_f32 v{V_L}, v{F[0]}, v{V_XS+1}")
        for j in range(1, 4):
            e(f"v_fma_f32 v{V_L}, v{F[j]}, v{V_XS+4*j+1}, v{V_L}")
        e(f"v_rcp_f32 v{V_ALPHA}, v{V_L}")
        for j in range(4):
            e(f"v_mul_f32 v{F[j]}, v{F[j]}, v{V_XS+4*j+2}")
        for j in range(4):
            e(f"v_mul_f32 v{F[j]}, v{F[j]}, v{V_ALPHA}")
        e("s_waitcnt vmcnt(0)")
        for g8 in range(8):
            for j in range(4):
                for i in range(4):
                    r = 4 * g8 + i
                    h = V_X + 16 * j + (r >> 1)
                    acc = "0" if j == 0 else f"v{O+r}"
                    e(f"v_fma_mix_f32 v{O+r}, v{h}, v{F[j]}, {acc} op_sel:[{r & 1},0,0] op_sel_hi:[1,0,0]")
            rr = V_H + 2 * g8
            e(f"v_cvt_pk_bf16_f32 v{rr}, v{O+4*g8}, v{O+4*g8+1}")
            e(f"v_cvt_pk_bf16_f32 v{rr+1}, v{O+4*g8+2}, v{O+4*g8+3}")
            e(f"buffer_store_dwordx2 v[{rr}:{rr+1}], v{AOUT}, s[{SRD_OUT}:{SRD_OUT+3}], s{S_T+8} offen offset:{g8*16}")
        c("nobody touches this counter any more: leave it zero (every launch re-zeroes it anyway)")
        e("s_mov_b64 exec, 1")
        e(f"buffer_store_dword v{V_ZERO}, v{V_ZERO}, s[{SRD_WS}:{SRD_WS+3}], s{S_CTR} offen sc1")
        e("s_mov_b64 exec, -1")
        if a.stamps:
            e("s_waitcnt vmcnt(0)")
            e(f"s_mov_b32 s{S_T+9}, 1")
            lab("L_fin")
            e(f"s_add_u32 s{S_T+7}, s{S_CI}, 1")
            self.stamp_store7(f"s{S_T+7}")
        lab("L_end")
        e("s_endpgm")

        c("---- end-of-stream hooks, run at units NU-8, NU-6, NU-4, NU-2 (out of line) ----")
        lab("L_hook")
        e(f"s_cmp_lg_u32 s{S_U}, {NU - 8}")
        e("s_cbranch_scc1 L_hook2")
        c("NU-8: final (m, l) of both producers -> merge factors, M, L")
        self.poll(str(NT // 2 + 2), sreg=S_PD0, off=8)
        self.poll(str(NT // 2 + 2), sreg=S_PD1, off=12)
        e(f"v_and_b32 v{T}, 31, v{V_LANE}")
        e(f"v_lshlrev_b32 v{T}, 3, v{T}")
        e(f"v_add_u32 v{T}, {LDS_STAT}, v{T}")
        e(f"ds_read_b64 v[{S}:{S+1}], v{T}")
        e(f"ds_read_b64 v[{S+2}:{S+3}], v{T} offset:256")
        e("s_waitcnt lgkmcnt(0)")
        e(f"v_max_f32 v{V_M}, v{S}, v{S+2}")
        e(f"v_sub_f32 v{V_F0}, v{S}, v{V_M}")
        e(f"v_sub_f32 v{V_F1}, v{S+2}, v{V_M}")
        e(f"v_exp_f32 v{V_F0}, v{V_F0}")
        e(f"v_exp_f32 v{V_F1}, v{V_F1}")
        e("s_nop 0")
        e(f"v_mul_f32 v{S+1}, v{S+1}, v{V_F0}")
        e(f"v_mul_f32 v{S+3}, v{S+3}, v{V_F1}")
        e(f"v_add_f32 v{V_L}, v{S+1}, v{S+3}")
        e("s_branch L_hook_done")
        lab("L_hook2")
        e(f"s_cmp_lg_u32 s{S_U}, {NU - 4}")
        e("s_cbranch_scc1 L_hook3")
        c("NU-4: take the arrival ticket")
        e(f"v_mov_b32 v{V_TK}, 1")
        e("s_mov_b64 exec, 1")
        e(f"buffer_atomic_add v{V_TK}, v{V_ZERO}, s[{SRD_WS}:{SRD_WS+3}], s{S_CTR} offen sc0")
        e("s_mov_b64 exec, -1")
        e("s_branch L_hook_done")
        lab("L_hook3")
        e(f"s_cmp_lg_u32 s{S_U}, {NU - 2}")
        e("s_cbranch_scc1 L_hook_done")
        c("NU-2: read the ticket; the last arriver starts loading what has been published")
        e("s_waitcnt vmcnt(0)")
        e(f"v_readfirstlane_b32 s{S_TKT}, v{V_TK}")
        e("s_nop 0")
        e(f"s_and_b32 s{S_T}, s{S_TKT}, 0xff")
        e(f"s_cmp_lt_u32 s{S_T}, 3")
        e("s_cbranch_scc1 L_hook_done")
        refresh("L_hook_done")
        e("s_branch L_hook_done")

        lab("L_scale0")
        for i in range(0, 32, 2):
            self.pkmul(V_O + i, V_F0)
        c("last arriver: one more look at the counter before the last V tile")
        e(f"s_and_b32 s{S_T}, s{S_TKT}, 0xff")
        e(f"s_cmp_lt_u32 s{S_T}, 3")
        e("s_cbranch_scc1 L_scale0_done")
        e(f"s_cmp_eq_u32 s{S_GOT}, 0xf00")
        e("s_cbranch_scc1 L_scale0_done")
        refresh("L_scale0_done")
        e("s_branch L_scale0_done")

        c("rare: counters not ready yet. Claim the job if nobody has, else wait for whoever did.")
        lab("L_check_loop")
        self.claim_and_init("L_vphase", "L_check_wait")
        lab("L_check_wait")
        e("s_sleep 8")
        self.spin_guard()
        e("s_branch L_check_loop")

        out += "\n".join(self.L) + "\n"
        out += f""".section .rodata,"a"
.p2align 6
.amdhsa_kernel {K}
  .amdhsa_next_free_vgpr {NVGPR}
  .amdhsa_next_free_sgpr 102
  .amdhsa_accum_offset {NVGPR}
  .amdhsa_group_segment_fixed_size 0
  .amdhsa_kernarg_size 72
  .amdhsa_user_sgpr_count 2
  .amdhsa_user_sgpr_kernarg_segment_ptr 1
  .amdhsa_system_sgpr_workgroup_id_x 1
.end_amdhsa_kernel
"""
        return out


def main():
    ap = argparse.ArgumentParser()
    ap.add_argument("-o", default=f"cdna_kernels/{NAME}.s")
    ap.add_argument("--polk", default="nt")
    ap.add_argument("--polv", default="nt")
    ap.add_argument("--polq", default="nt")
    ap.add_argument("--stamps", type=int, default=0)
    ap.add_argument("--group", type=int, default=8)
    ap.add_argument("--ring", type=int, default=3)
    ap.add_argument("--sleep", type=int, default=2)
    ap.add_argument("--spin", type=int, default=400000)
    ap.add_argument("--rmul", type=int, default=13)
    ap.add_argument("--su", default="8,32,80")
    ap.add_argument("--nowg0", type=int, default=0)
    ap.add_argument("--touch", type=int, default=0)
    ap.add_argument("--halfx", type=int, default=0)
    args = ap.parse_args()
    for n in ("polk", "polv", "polq"):
        v = getattr(args, n)
        setattr(args, n, (" " + v.replace(",", " ")) if v else "")
    open(args.o, "w").write(G(args).gen())


if __name__ == "__main__":
    main()
```
